```python
import torch

def _softmax(x, axis=-1):
    return torch.softmax(x, dim=axis)

def _gelu(x):
    return torch.nn.functional.gelu(x, approximate='tanh')

def _silu(x):
    return torch.nn.functional.silu(x)

def _sigmoid(x):
    return torch.sigmoid(x)

def _layernorm(x, axis=-1, eps=1e-05):
    m = x.mean(dim=axis, keepdim=True)
    v = x.var(dim=axis, keepdim=True, unbiased=False)
    return (x - m) / torch.sqrt(v + eps)

def _scatter_add(tgt, idx, src, axis=0):
    return tgt.clone().index_add_(axis, idx, src)

def _segment_sum(src, seg, n):
    out = torch.zeros((n,) + src.shape[1:], dtype=src.dtype)
    return out.index_add_(0, seg, src)

def _pad(x, pw):
    flat = tuple((v for pair in reversed(pw) for v in pair))
    return torch.nn.functional.pad(x, flat)
kernel_name = 'adaLN_cond__memory_aug_recurrent_mem_tr__dense_activation_gelu__prompt'

def setup_inputs():

    _w = lambda a: (lambda t: t.to(torch.bfloat16) if t.is_floating_point() else t)(torch.as_tensor(a))

    def _A_setup():
        B, S, Dm = (1, 2048, 640)
        H, Dh = (32, 192)
        M, seg = (8, 32)
        seg = min(seg, S)
        S = S // seg * seg
        return {'x': _w((lambda *s: torch.randn(*s, dtype=torch.bfloat16) * 0.05)(B, S, Dm)), 'mem0': _w((lambda *s: torch.randn(*s, dtype=torch.bfloat16) * 0.8)(B, M, Dm)), 'Wq': _w((lambda *s: torch.randn(*s, dtype=torch.bfloat16) * 1.6)(Dm, H, Dh) * Dm ** (-0.5)), 'Wk': _w((lambda *s: torch.randn(*s, dtype=torch.bfloat16) * 1.6)(Dm, H, Dh) * Dm ** (-0.5)), 'Wv': _w((lambda *s: torch.randn(*s, dtype=torch.bfloat16) * 0.8)(Dm, H, Dh) * Dm ** (-0.5)), 'Wo': _w((lambda *s: torch.randn(*s, dtype=torch.bfloat16) * 0.8)(H, Dh, Dm) * (H * Dh) ** (-0.5)), 'seg_len': seg}
    _A_in = _A_setup()

    def _B_setup():
        B, S, D, F = (1, 2048, 640, 1536)
        return {'x': _w((lambda *s: torch.randn(*s, dtype=torch.bfloat16) * 0.05)(B, S, D)), 'w1': _w((lambda *s: torch.randn(*s, dtype=torch.bfloat16) * 1.6)(D, F) * D ** (-0.5)), 'b1': _w((lambda *s: torch.randn(*s, dtype=torch.bfloat16) * 1.6)(F) * 0.01), 'w2': _w((lambda *s: torch.randn(*s, dtype=torch.bfloat16) * 0.2)(F, D) * F ** (-0.5)), 'b2': _w((lambda *s: torch.randn(*s, dtype=torch.bfloat16) * 0.2)(D) * 0.01)}
    _B_in = _B_setup()
    return {'A_x': _A_in['x'], 'A_mem0': _A_in['mem0'], 'A_Wq': _A_in['Wq'], 'A_Wk': _A_in['Wk'], 'A_Wv': _A_in['Wv'], 'A_Wo': _A_in['Wo'], 'A_seg_len': _A_in['seg_len'], 'B_x': _B_in['x'], 'B_w1': _B_in['w1'], 'B_b1': _B_in['b1'], 'B_w2': _B_in['w2'], 'B_b2': _B_in['b2'], 'c': _w((lambda *s: torch.randn(*s, dtype=torch.bfloat16) * 0.05)(1, 640) * 8.0), 'w_mod': _w((lambda *s: torch.randn(*s, dtype=torch.bfloat16) * 0.05)(640, 6 * 640) * 640 ** (-0.5) * 8.0)}

def reference(A_x, A_mem0, A_Wq, A_Wk, A_Wv, A_Wo, A_seg_len, B_x, B_w1, B_b1, B_w2, B_b2, c, w_mod):

    def _A_ref(x, mem0, Wq, Wk, Wv, Wo, seg_len):
        B, S, Dm = x.shape
        H, Dh = (Wq.shape[1], Wq.shape[2])
        M = mem0.shape[1]
        scale = Dh ** (-0.5)
        n_seg = S // seg_len
        L = M + seg_len
        idx = torch.arange(L)
        mask = (idx[:, None] < M) | (idx[:, None] >= idx[None, :])
        mem = mem0
        outs = []
        for s in range(n_seg):
            xs = x[:, s * seg_len:(s + 1) * seg_len, :].clone()
            h = torch.concatenate([mem, xs], axis=1)
            q = torch.einsum('btd,dhe->bhte', h, Wq)
            k = torch.einsum('btd,dhe->bhte', h, Wk)
            v = torch.einsum('btd,dhe->bhte', h, Wv)
            scores = torch.einsum('bhqe,bhke->bhqk', q, k) * scale
            scores = torch.where(mask[None, None], scores, -1000000000.0)
            p = _softmax(scores, axis=-1)
            o = torch.einsum('bhqk,bhke->bhqe', p, v)
            o = torch.einsum('bhte,hed->btd', o, Wo)
            mem = o[:, :M, :].clone()
            outs.append(o[:, M:, :])
        return torch.concatenate(outs, axis=1)

    def _B_ref(x, w1, b1, w2, b2):
        h = torch.einsum('bsd,df->bsf', x, w1) + b1
        h = _gelu(h)
        return torch.einsum('bsf,fd->bsd', h, w2) + b2
    x = A_x
    mod = (_silu(c) @ w_mod).reshape(c.shape[0], 6, 1, -1)
    sa, ca, ga, sb, cb, gb = (mod[:, 0].clone(), mod[:, 1].clone(), mod[:, 2].clone(), mod[:, 3].clone(), mod[:, 4].clone(), mod[:, 5].clone())
    h = _layernorm(x, axis=-1) * (1 + ca) + sa
    x = x + ga * _A_ref(h, A_mem0, A_Wq, A_Wk, A_Wv, A_Wo, A_seg_len)
    h = _layernorm(x, axis=-1) * (1 + cb) + sb
    x = x + gb * _B_ref(h, B_w1, B_b1, B_w2, B_b2)
    return x
```

```python
import re

REG_RE = re.compile(r'^(-|abs\()?\s*([vas])(\d+)\)?$')
RANGE_RE = re.compile(r'^(-)?([vas])\[(\d+):(\d+)\]$')

def regs_of(op):
    op = op.strip()
    m = RANGE_RE.match(op)
    if m:
        return {(m.group(2), i) for i in range(int(m.group(3)), int(m.group(4)) + 1)}
    m = REG_RE.match(op)
    if m:
        return {(m.group(2), int(m.group(3)))}
    if op == 'vcc': return {('s', 'vcc')}
    if op in ('vcc_lo', 'vcc_hi'): return {('s', 'vcc')}
    if op in ('exec', 'exec_lo', 'exec_hi'): return {('s', 'exec')}
    if op == 'm0': return {('s', 'm0')}
    return set()

TRANS = ('v_exp_f32', 'v_log_f32', 'v_rcp_f32', 'v_rsq_f32', 'v_sqrt_f32', 'v_sin_f32', 'v_cos_f32', 'v_rcp_iflag_f32')

class Ins:
    def __init__(self, text):
        self.text = text
        t = text.split(';')[0].strip()
        self.label = None; self.mn = None; self.ops = []; self.mods = ''
        self.kind = 'other'; self.w = set(); self.r = set()
        if not t: self.kind = 'blank'; return
        if t.endswith(':'): self.kind = 'label'; self.label = t[:-1]; return
        if t.startswith('.'): self.kind = 'directive'; return
        parts = t.split(None, 1)
        self.mn = parts[0]
        rest = parts[1] if len(parts) > 1 else ''
        ops = []; depth = 0; cur = ''
        for ch in rest:
            if ch in '([': depth += 1
            if ch in ')]': depth -= 1
            if ch == ',' and depth == 0: ops.append(cur.strip()); cur = ''
            else: cur += ch
        if cur.strip(): ops.append(cur.strip())
        if ops:
            last = ops[-1].split(None, 1)
            if len(last) > 1 and not ops[-1].startswith('abs(') :
                ops[-1] = last[0]; self.mods = last[1]
        self.ops = ops
        self.classify()

    def classify(self):
        mn = self.mn; ops = self.ops; R = [regs_of(o) for o in ops]
        U = lambda l: set().union(*l) if l else set()
        self.srcC = set(); self.passes = 0; self.ab = set()
        if mn.startswith('v_mfma'):
            self.kind = 'mfma'; self.w = R[0]; self.ab = R[1] | R[2]; self.srcC = R[3]; self.r = self.ab | self.srcC
            self.passes = 8 if '32x32' in mn else 4
        elif mn.startswith('v_smfmac'):
            self.kind = 'mfma'; self.w = R[0]; self.ab = R[1] | R[2] | R[3]; self.srcC = R[0]; self.r = self.ab | self.srcC
            self.passes = 8 if '32x32' in mn else 4
        elif mn.startswith('v_'):
            self.kind = 'valu'
            base = mn.replace('_e32', '').replace('_e64', '').replace('_dpp', '').replace('_sdwa', '')
            self.base = base
            if base.startswith('v_permlane') and 'swap' in base:
                self.w = R[0] | R[1]; self.r = R[0] | R[1]
            elif base.startswith('v_cmp'):
                self.w = R[0]; self.r = U(R[1:])
            elif base in ('v_add_co_u32', 'v_sub_co_u32', 'v_addc_co_u32', 'v_subb_co_u32', 'v_subrev_co_u32', 'v_div_scale_f32', 'v_mad_u64_u32'):
                self.w = R[0] | R[1]; self.r = U(R[2:])
            else:
                self.w = R[0]; self.r = U(R[1:])
                if base == 'v_swap_b32':
                    self.w = R[0] | R[1]; self.r = R[0] | R[1]
                if base in ('v_fmac_f32', 'v_writelane_b32', 'v_dot2c_f32_bf16', 'v_pk_fmac_f16') or mn.endswith('_dpp') or mn.endswith('_sdwa'):
                    self.r |= R[0]
                if base == 'v_cndmask_b32' and len(ops) == 3: self.r |= {('s', 'vcc')}
            self.dpp = mn.endswith('_dpp')
            self.trans = base in TRANS
        elif mn.startswith('ds_'):
            self.kind = 'ds'
            if mn.startswith('ds_read') or mn.startswith('ds_bpermute') or mn.startswith('ds_permute') or mn.startswith('ds_swizzle') or '_rtn' in mn:
                self.w = R[0]; self.r = U(R[1:])
            else:
                self.r = U(R)
        elif mn.startswith('buffer_') or mn.startswith('global_'):
            self.kind = 'vmem'
            lds = ('lds' in self.mods.split()) or ('load_lds' in mn)
            self.lds = lds
            if mn in ('buffer_inv', 'buffer_wbl2'):
                pass
            elif '_load' in mn and not lds:
                self.w = R[0]; self.r = U(R[1:])
            elif '_load' in mn:
                self.r = U(R) | {('s', 'm0')}
            elif 'atomic' in mn and 'sc0' in self.mods.split():
                if mn.startswith('buffer_'): self.w = R[0]; self.r = U(R)
                else: self.w = R[0]; self.r = U(R[1:])
            else:
                self.r = U(R)
            self.widestore = set()
            if '_store_dwordx4' in mn or '_store_dwordx3' in mn:
                self.widestore = R[0] if mn.startswith('buffer_') else R[1]
        elif mn.startswith('s_load') or mn.startswith('s_buffer_load') or mn in ('s_memtime', 's_memrealtime') or mn.startswith('s_atomic'):
            self.kind = 'smem'; self.w = R[0]; self.r = U(R[1:])
        elif mn == 's_waitcnt': self.kind = 'wait'
        elif mn == 's_nop': self.kind = 'nop'
        elif mn.startswith('s_cbranch') or mn == 's_branch': self.kind = 'branch'
        elif mn in ('s_barrier', 's_endpgm', 's_sleep', 's_setprio'): self.kind = 'salu0'
        elif mn.startswith('s_cmp') or mn.startswith('s_bitcmp'): self.kind = 'salu'; self.r = U(R)
        elif mn.startswith('s_'):
            self.kind = 'salu'; self.w = R[0] if R else set(); self.r = U(R[1:])
            if 'saveexec' in mn: self.w |= {('s', 'exec')}
        else:
            raise ValueError("unknown instruction: " + self.text)

    def states(self):
        if self.kind in ('label', 'blank', 'directive'): return 0
        if self.kind == 'nop': return int(self.ops[0], 0) + 1
        return 1

def vreg(s): return {x for x in s if x[0] in 'va'}
def sreg(s): return {x for x in s if x[0] == 's'}

def need(p, c):
    n = 0
    if p.kind == 'valu':
        pw = vreg(p.w); ps = sreg(p.w)
        if c.kind == 'mfma' and pw & c.r: n = max(n, 2)
        if c.kind == 'valu':
            if c.base.startswith('v_permlane') and pw & c.r: n = max(n, 2)
            if c.dpp and pw & c.r: n = max(n, 2)
            if c.base in ('v_readlane_b32', 'v_readfirstlane_b32') and pw & c.r: n = max(n, 1)
            if p.trans and not c.trans and pw & c.r: n = max(n, 1)
            if p.mn.endswith('_sdwa') and pw & (c.r | c.w): n = max(n, 1)
            if ps & c.r:
                n = max(n, 4 if c.base in ('v_readlane_b32', 'v_writelane_b32') else 2)
        if c.kind == 'vmem' and ps & c.r: n = max(n, 5)
        if p.trans and c.kind in ('ds', 'vmem', 'mfma') and pw & c.r: n = max(n, 2 if c.kind == 'mfma' else 1)
    if p.kind == 'mfma':
        P = p.passes
        if c.kind == 'mfma':
            if p.w & c.ab: n = max(n, P + 4)
            if p.w & c.srcC:
                if not (c.srcC == p.w and c.passes == P): n = max(n, P + 2)
            elif p.w & c.w: n = max(n, P + 4)
        elif c.kind in ('valu', 'ds', 'vmem'):
            if p.w & (c.r | c.w): n = max(n, P + 4)
        if c.kind == 'valu' and p.srcC & c.w: n = max(n, P - 1)
        if c.kind in ('ds', 'vmem') and p.srcC & c.w: n = max(n, P - 1)
    if p.kind == 'salu' and ('s', 'm0') in p.w:
        if (c.kind == 'vmem' and getattr(c, 'lds', False)) or (c.kind == 'valu' and ('s', 'm0') in c.r): n = max(n, 1)
    if p.kind == 'vmem' and p.widestore:
        if c.kind == 'valu' and p.widestore & c.w: n = max(n, 2)
        elif c.kind in ('ds', 'vmem', 'mfma') and p.widestore & c.w: n = max(n, 1)
    return n

def pad_needed(prev, c):
    d = 0; worst = 0
    for p in reversed(prev):
        if d >= 20: break
        if p.kind not in ('label', 'blank', 'directive'):
            k = need(p, c) - d
            worst = max(worst, k)
        d += p.states()
    return worst

def nops(n):
    out = []
    while n > 0:
        k = min(n, 16); out.append(Ins(f"  s_nop {k-1}")); n -= k
    return out

class Asm:
    def __init__(self):
        self.lines = []
    def __call__(self, text):
        for l in text.split('\n'):
            if l.strip(): self.lines.append(l if l.startswith(' ') or l.rstrip().endswith(':') or l.startswith('.') or l.startswith(';') else '  ' + l)
    def label(self, name): self.lines.append(name + ':')

    def finish(self):
        ins = [Ins(l) for l in self.lines]
        ins = self.autowait(ins)
        ins = self.hazards(ins)
        return '\n'.join(i.text for i in ins) + '\n'

    @staticmethod
    def autowait(ins):
        out = []; vm = []; lg = []
        smem = False
        for c in ins:
            if c.kind == 'label':
                vm = [(d, True) for d, f in vm]; lg = [(d, True) for d, f in lg]
                out.append(c); continue
            if c.kind == 'wait':
                m = re.search(r'vmcnt\((\d+)\)', c.text)
                if m:
                    n = int(m.group(1)); vm = vm[len(vm) - n:] if n < len(vm) else vm
                    if n == 0: vm = []
                m = re.search(r'lgkmcnt\((\d+)\)', c.text)
                if m:
                    n = int(m.group(1)); lg = lg[len(lg) - n:] if n < len(lg) else lg
                    if n == 0: lg = []; smem = False
                out.append(c); continue
            touch = c.r | c.w
            wv = wl = None
            for q, name in ((vm, 'vm'), (lg, 'lg')):
                idx = -1
                for i, (d, f) in enumerate(q):
                    if d & touch: idx = i
                if idx >= 0:
                    if q[idx][1]:
                        raise ValueError("dependence on a load issued before a label needs a manual wait: " + c.text)
                    n = len(q) - 1 - idx
                    if name == 'vm': wv = min(n, 63)
                    else: wl = 0 if smem else min(n, 15)
            if wv is not None or wl is not None:
                t = "  s_waitcnt" + (f" vmcnt({wv})" if wv is not None else "") + (f" lgkmcnt({wl})" if wl is not None else "")
                out.append(Ins(t))
                if wv is not None: vm = vm[len(vm) - wv:] if wv else []
                if wl is not None:
                    lg = lg[len(lg) - wl:] if wl else []
                    if wl == 0: smem = False
            if c.kind == 'vmem': vm.append((set(c.w), False))
            elif c.kind == 'ds': lg.append((set(c.w), False))
            elif c.kind == 'smem': lg.append((set(c.w), False)); smem = True
            if c.kind == 'branch' and c.mn == 's_branch' or c.mn == 's_endpgm':
                vm = []; lg = []; smem = False
            out.append(c)
        return out

    @staticmethod
    def hazards(ins):
        out = []
        for c in ins:
            if c.kind not in ('label', 'blank', 'directive'):
                hist = []
                for p in reversed(out[-60:]):
                    if p.mn in ('s_branch', 's_endpgm'): break
                    hist.append(p)
                hist.reverse()
                k = pad_needed(hist, c)
                if k > 0: out += nops(k)
            out.append(c)
        changed = True
        while changed:
            changed = False
            pos = {c.label: i for i, c in enumerate(out) if c.kind == 'label'}
            for i, c in enumerate(out):
                if c.kind == 'branch' and c.ops[0] in pos:
                    hist = []
                    for p in reversed(out[max(0, i - 60):i]):
                        if p.mn in ('s_branch', 's_endpgm'): break
                        hist.append(p)
                    hist.reverse(); hist.append(c)
                    j = pos[c.ops[0]]; worst = 0; d = 0
                    seq = list(hist)
                    while j < len(out) and d < 20:
                        x = out[j]
                        if x.kind not in ('label', 'blank', 'directive'):
                            worst = max(worst, pad_needed(seq, x)); d += x.states()
                        seq.append(x)
                        if x.mn in ('s_branch', 's_endpgm'): break
                        j += 1
                    if worst > 0:
                        out[i:i] = nops(worst); changed = True; break
        return out
```

```python
from asmgen import Asm
from layout import *
from k_prep import srd, f2u
import math

SLOT = 24576
SPIN_MAX = 200000

def R(kind, i, n=1):
    return f"{kind}{i}" if n == 1 else f"{kind}[{i}:{i+n-1}]"

def lane_decomp(a):
    a("""v_and_b32 v1, 63, v0
v_lshrrev_b32 v2, 4, v1
v_and_b32 v3, 15, v1""")

def loader(a, stages, shift, tmp):
    vW = {}; need = {(s['kind'], s['style'], s['stride']) for s in stages}
    t = tmp
    rho, pi, swz, x, y = t, t + 1, t + 2, t + 3, t + 4
    a(f"""v_lshrrev_b32 v{rho}, 3, v1
v_and_b32 v{pi}, 7, v1
v_lshrrev_b32 v{x}, 1, v{pi}
v_lshrrev_b32 v{y}, 1, v{rho}
v_xor_b32 v{x}, v{x}, v{y}
v_lshlrev_b32 v{swz}, 5, v{x}
v_and_b32 v{x}, 1, v{pi}
v_lshl_add_u32 v{swz}, v{x}, 4, v{swz}""")
    nxt = t + 5
    for key in sorted(need):
        kind, style, stride = key
        v = nxt; nxt += 1; vW[key] = v
        if style == 'nat':
            a(f"v_lshrrev_b32 v{x}, 2, v{rho}\nv_and_b32 v{y}, 3, v{rho}\nv_lshl_add_u32 v{v}, v{x}, 3, v{y}")
        elif style == 'sp':
            a(f"v_bfe_u32 v{x}, v{rho}, 1, 1\nv_lshlrev_b32 v{v}, 3, v{x}\nv_lshrrev_b32 v{x}, 2, v{rho}\nv_lshl_add_u32 v{v}, v{x}, 2, v{v}\nv_and_b32 v{x}, 1, v{rho}\nv_add_u32 v{v}, v{v}, v{x}")
        else:
            a(f"v_mov_b32 v{v}, v{rho}")
        if kind == 'W':
            if style == 'lin':
                a(f"s_lshl_b32 s22, s17, 4")
            else:
                a(f"s_lshr_b32 s22, s17, 1\ns_lshl_b32 s22, s22, 5\ns_and_b32 s23, s17, 1\ns_lshl_b32 s23, s23, {2 if style == 'nat' else 1}\ns_add_u32 s22, s22, s23")
            a(f"v_add_u32 v{v}, s22, v{v}\ns_mov_b32 s22, {stride}\nv_mul_lo_u32 v{v}, v{v}, s22\nv_add_u32 v{v}, v{v}, v{swz}")
        else:
            a(f"s_and_b32 s22, s17, 1\ns_lshl_b32 s22, s22, {3 if style == 'lin' else 4}\nv_add_u32 v{v}, s22, v{v}\ns_mov_b32 s22, {stride}\nv_mul_lo_u32 v{v}, v{v}, s22\nv_add_u32 v{v}, v{v}, v{swz}")
            a(f"s_lshr_b32 s22, s17, 1\ns_mul_i32 s22, s22, 640\nv_add_u32 v{v}, s22, v{v}")
    a("s_mul_i32 s24, s17, 6144\ns_and_b32 s25, s17, 1\ns_mul_i32 s25, s25, 10240\ns_lshr_b32 s22, s17, 1\ns_mul_i32 s22, s22, 5120\ns_add_u32 s25, s25, s22")
    kinds = {s['kind'] for s in stages}
    aW = aO = None
    rr, cc = rho, pi
    a(f"""v_bfe_u32 v{rr}, v1, 2, 3               ; 4*(g&1) + r
v_and_b32 v{cc}, 3, v1
v_lshlrev_b32 v{cc}, 3, v{cc}
v_lshl_add_u32 v{cc}, v{rr}, 7, v{cc}      ; rho*128 + c*8
v_lshrrev_b32 v{rr}, 1, v{rr}              ; rho>>1
v_lshrrev_b32 v{y}, 5, v1                 ; gh""")
    def tile_addrs(n, ghmul):
        nonlocal nxt
        base = nxt; nxt += n
        for tt in range(n):
            a(f"""s_mul_i32 s22, s17, {n}
s_add_u32 s22, s22, {tt}
s_and_b32 s23, s22, 3
s_lshr_b32 s22, s22, 2
s_lshl_b32 s22, s22, 10
v_xor_b32 v{x}, s23, v{rr}
v_lshl_add_u32 v{base+tt}, v{x}, 5, v{cc}
v_add_u32 v{base+tt}, s22, v{base+tt}
v_mul_u32_u24 v{x}, {ghmul}, v{y}
v_add_u32 v{base+tt}, v{base+tt}, v{x}""")
        return base
    if 'W' in kinds: aW = tile_addrs(3, 3072)
    if 'O' in kinds: aO = tile_addrs(10, 10240)
    cur = nxt; nxt += 10
    assert nxt <= tmp + 34, nxt - tmp
    cnt = [6 if s['kind'] == 'W' else 5 for s in stages]
    def issue(n):
        s = stages[n]; slot = ((n + shift) % 6) * SLOT
        v = vW[(s['kind'], s['style'], s['stride'])]
        for i in range(cnt[n]):
            if s['kind'] == 'W':
                gh, cb = divmod(i, 3)
                rows = s['row0'] + (8 if s['style'] == 'lin' else 16) * gh
                off = rows * s['stride'] + cb * 128
                a(f"s_add_u32 m0, s24, {slot + i*1024}")
            else:
                off = s['row0'] * s['stride'] + i * 128
                a(f"s_add_u32 m0, s25, {slot + i*1024}")
            a(f"s_add_u32 s26, s{s['col']}, {off}\nbuffer_load_dwordx4 v{v}, s[{s['srd']}:{s['srd']+3}], s26 offen lds")
    N = len(stages)
    for n in range(min(5, N)): issue(n)
    for n in range(N):
        s = stages[n]
        if s['dests'] is None and all(x['dests'] is None for x in stages[n:]) and n + 5 >= N:
            break
        later = sum(cnt[n+1:min(n+5, N)])
        a(f"s_waitcnt vmcnt({later})\ns_barrier")
        if n + 5 < N: issue(n + 5)
        if s['dests'] is None: continue
        slot = ((n + shift) % 6) * SLOT
        nt = 3 if s['kind'] == 'W' else 10
        base = aW if s['kind'] == 'W' else aO
        for tt in range(nt): a(f"v_add_u32 v{cur+tt}, {slot}, v{base+tt}")
        for tt in range(nt):
            for q in range(4 if s['kind'] == 'W' else 1):
                k, r = s['dests'](tt, q)
                a(f"ds_read_b64_tr_b16 {R(k, r, 2)}, v{cur+tt} offset:{q*6144}")
        a("s_waitcnt lgkmcnt(0)")
    a("s_waitcnt vmcnt(0)\ns_barrier")
    return aW

def spin_guard(a, s):
    a(f"s_add_u32 s{s}, s{s}, 1\ns_cmp_gt_u32 s{s}, {SPIN_MAX}\ns_cbranch_scc1 L_exit")

def flag_addr(a, dst_s, role, head_s, wave_s=None):
    a(f"s_lshl_b32 s{dst_s}, s{head_s}, 8\ns_add_u32 s{dst_s}, s{dst_s}, {FLAG_OFF + role*32*256}")
    if wave_s is not None:
        a(f"s_lshl_b32 s22, s{wave_s}, 6\ns_add_u32 s{dst_s}, s{dst_s}, s22")

def proj_loop(a, pfx, src_off, seg0_s, nseg, out_base_s, sc, epilogue, flag_s=None, segstride=32*12288):
    HS = 40960
    a(f"""v_lshlrev_b32 v4, 4, v1                 ; lane*16
s_mul_i32 s22, s17, 10240
v_add_u32 v5, s22, v4
v_mov_b32 v6, 0
s_mov_b32 s28, 0
s_mov_b32 s29, {HS}                     ; next
s_mov_b32 s30, {2*HS}                   ; next-next""")
    def dma(seg_s, slot_s):
        a(f"s_min_u32 s23, s{seg_s}, 63\ns_mul_i32 s23, s23, {HS}\ns_add_u32 s23, s23, {src_off}\ns_mul_i32 s22, s17, 10240\ns_add_u32 s22, s22, s{slot_s}")
        for i in range(10):
            if i % 4 == 0:
                a(f"s_add_u32 m0, s22, {i*1024}\ns_add_u32 s26, s23, {i*1024}")
            a(f"buffer_load_dwordx4 v5, s[4:7], s26 offen offset:{(i%4)*1024} lds")
    dma(20, 28)
    a("s_add_u32 s31, s20, 1"); dma(31, 29)
    a("s_waitcnt vmcnt(10)")
    a.label(pfx + "_loop")
    a("s_barrier\ns_add_u32 s31, s20, 2")
    dma(31, 30)
    a("v_add_u32 v7, s28, v4")
    B = 16; ACC = 48
    def rd(kk):
        b = B + 8 * (kk % 3)
        a(f"ds_read_b128 v[{b}:{b+3}], v7 offset:{kk*1024}\nds_read_b128 v[{b+4}:{b+7}], v7 offset:{(20+kk)*1024}")
    rd(0); rd(1)
    for kk in range(20):
        if kk + 2 < 20: rd(kk + 2)
        b = B + 8 * (kk % 3)
        for tt in range(2):
            for t in range(3):
                acc = ACC + 8 * t + 4 * tt
                c = "0" if kk == 0 else f"v[{acc}:{acc+3}]"
                a(f"v_mfma_f32_16x16x32_bf16 v[{acc}:{acc+3}], a[{(kk*3+t)*4}:{(kk*3+t)*4+3}], v[{b+4*tt}:{b+4*tt+3}], {c}")
        if kk == 10:
            a("s_waitcnt vmcnt(10)")
            if flag_s is not None:
                a(f"v_mov_b32 v8, s20\ns_mov_b64 exec, 1\nbuffer_store_dword v8, v6, s[4:7], s{flag_s} offen sc1\ns_mov_b64 exec, -1")
    epilogue(a, ACC)
    a(f"s_mul_i32 s23, s20, {segstride}\ns_add_u32 s23, s23, s{out_base_s}")
    for t in range(3):
        o = 72 + 4 * t; acc = ACC + 8 * t
        for j in range(4): a(f"v_cvt_pk_bf16_f32 v{o+j}, v{acc+2*j}, v{acc+2*j+1}")
        a(f"buffer_store_dwordx4 v[{o}:{o+3}], v4, s[4:7], s23 offen offset:{t*1024} {sc}")
    a(f"""s_mov_b32 s22, s28
s_mov_b32 s28, s29
s_mov_b32 s29, s30
s_mov_b32 s30, s22
s_add_u32 s20, s20, 1
s_cmp_lt_u32 s20, s21
s_cbranch_scc1 {pfx}_loop
s_waitcnt vmcnt(0)""")
    if flag_s is not None:
        a(f"v_mov_b32 v8, s20\ns_mov_b64 exec, 1\nbuffer_store_dword v8, v6, s[4:7], s{flag_s} offen sc1\ns_mov_b64 exec, -1")

def w_stages(srd_, stride, col, style, dest_fn, n=10, resident=()):
    st = []
    for c in range(n):
        st.append(dict(kind='W', srd=srd_, stride=stride, col=col, style=style, row0=64 * c,
                       dests=None if c in resident else (lambda t, q, c=c: dest_fn(c, t, q))))
    return st

def role_proj(a):
    a.label("L_proj")
    a("s_mul_i32 s32, s18, 384")
    loader(a, w_stages(8, 12288, 32, 'nat', lambda c, t, q: ('a', ((2*c + (q >> 1)) * 3 + t) * 4 + 2 * (q & 1))), 0, 16)
    a(f"""s_mov_b32 s33, {KX_OFF}
s_cmp_eq_u32 s27, {ROLE_V}
s_cselect_b32 s33, {VX_OFF}, s33
s_cmp_eq_u32 s27, {ROLE_Q}
s_cselect_b32 s33, {QX_OFF}, s33
s_mul_i32 s22, s18, 12288
s_add_u32 s33, s33, s22
s_mul_i32 s22, s17, 3072
s_add_u32 s33, s33, s22
s_lshl_b32 s34, s27, 13
s_lshl_b32 s22, s18, 8
s_add_u32 s34, s34, s22
s_lshl_b32 s22, s17, 6
s_add_u32 s34, s34, s22
s_add_u32 s34, s34, {FLAG_OFF}
s_mov_b32 s20, 0
s_mov_b32 s21, 64""")
    proj_loop(a, "L_proj", HF_OFF, 20, 64, 33, "sc1", lambda a, acc: None, flag_s=34)
    a("s_endpgm")

def role_oworker(a):
    a.label("L_ow")
    a("s_mul_i32 s32, s18, 245760")
    st = [dict(kind='O', srd=8, stride=1280, col=32, style='lin', row0=16 * q,
               dests=(lambda t, qq, q=q: ('a', (t * 6 + (q >> 1)) * 4 + 2 * (q & 1)))) for q in range(12)]
    loader(a, st, 0, 16)
    flag_addr(a, 34, ROLE_O, 18, 17)
    flag_addr(a, 35, ROLE_V, 18)
    a(f"""v_lshlrev_b32 v4, 4, v1                 ; lane*16
v_and_b32 v5, 3, v1
v_lshlrev_b32 v5, 6, v5
v_mov_b32 v6, 0
s_mul_i32 s36, s18, 12288
s_mul_i32 s22, s17, 3072
s_add_u32 s36, s36, s22
s_add_u32 s36, s36, {VX_OFF}
s_lshl_b32 s37, s18, 10
s_mul_i32 s22, s17, {10*32768}
s_add_u32 s37, s37, s22
s_add_u32 s37, s37, {U_OFF}
s_mul_i32 s38, s17, 3072
s_mov_b32 s28, 0
s_mov_b32 s29, 12288
s_mov_b32 s20, 0
s_mov_b32 s39, 0""")
    def waitflag(lbl, need_s):
        a.label(lbl)
        a(f"buffer_load_dword v9, v5, s[4:7], s35 offen sc1")
        spin_guard(a, 39)
        a(f"s_waitcnt vmcnt(0)\nv_cmp_gt_u32 vcc, s{need_s}, v9\ns_cbranch_vccnz {lbl}")
    def dma(seg_s, slot_s):
        a(f"s_min_u32 s23, s{seg_s}, 63\ns_mul_i32 s23, s23, {32*12288}\ns_add_u32 s23, s23, s36\ns_add_u32 m0, s38, s{slot_s}")
        for i in range(3): a(f"buffer_load_dwordx4 v4, s[4:7], s23 offen offset:{i*1024} sc1 lds")
    a("s_mov_b32 s31, 1")
    waitflag("L_ow_w0", 31)
    dma(20, 28)
    a("s_waitcnt vmcnt(0)")
    a.label("L_ow_loop")
    a(f"""s_barrier
s_add_u32 s31, s20, 2
s_min_u32 s31, s31, 64
v_cmp_gt_u32 vcc, s31, v9
s_cbranch_vccz L_ow_go""")
    waitflag("L_ow_w1", 31)
    a.label("L_ow_go")
    a("s_add_u32 s31, s20, 1")
    dma(31, 29)
    a("buffer_load_dword v10, v5, s[4:7], s35 offen sc1\nv_add_u32 v7, s28, v4")
    A0 = 16
    for p in range(6):
        if p: a(f"v_add_u32 v8, {2048*p}, v7")
        ad = 8 if p else 7
        for tt in range(2):
            a(f"ds_read2_b64 v[{A0+8*p+4*tt}:{A0+8*p+4*tt+3}], v{ad} offset0:{tt} offset1:{128+tt}")
    a(f"s_mul_i32 s23, s20, {40*32768}\ns_add_u32 s23, s23, s37")
    ACC = 64
    def epi(t):
        acc = ACC + 8 * (t % 2); o = 80 + 4 * (t % 2)
        a(f"""v_cvt_pk_bf16_f32 v{o}, v{acc}, v{acc+1}
v_cvt_pk_bf16_f32 v{o+1}, v{acc+4}, v{acc+5}
v_cvt_pk_bf16_f32 v{o+2}, v{acc+2}, v{acc+3}
v_cvt_pk_bf16_f32 v{o+3}, v{acc+6}, v{acc+7}
s_add_u32 s26, s23, {t*32768}
buffer_store_dwordx4 v[{o}:{o+3}], v4, s[4:7], s26 offen sc1""")
    for t in range(10):
        acc = ACC + 8 * (t % 2)
        for p in range(6):
            for tt in range(2):
                c = "0" if p == 0 else f"v[{acc+4*tt}:{acc+4*tt+3}]"
                a(f"v_mfma_f32_16x16x32_bf16 v[{acc+4*tt}:{acc+4*tt+3}], v[{A0+8*p+4*tt}:{A0+8*p+4*tt+3}], a[{(t*6+p)*4}:{(t*6+p)*4+3}], {c}")
            if p == 2 and t > 0: epi(t - 1)
        if t == 5:
            a("s_waitcnt vmcnt(9)\nv_mov_b32 v8, s20\ns_mov_b64 exec, 1\nbuffer_store_dword v8, v6, s[4:7], s34 offen sc1\ns_mov_b64 exec, -1")
    epi(9)
    a(f"""s_waitcnt vmcnt(11)
v_mov_b32 v9, v10
s_mov_b32 s22, s28
s_mov_b32 s28, s29
s_mov_b32 s29, s22
s_add_u32 s20, s20, 1
s_cmp_lt_u32 s20, 64
s_cbranch_scc1 L_ow_loop
s_waitcnt vmcnt(0)
v_mov_b32 v8, s20
s_mov_b64 exec, 1
buffer_store_dword v8, v6, s[4:7], s34 offen sc1
s_endpgm""")

def remap(a, v, t):
    a(f"v_lshrrev_b32 v{t}, 13, v{v}\nv_and_b32 v{v}, 8191, v{v}\nv_lshl_add_u32 v{v}, v{t}, 14, v{v}")

def span_off(a, dst, step_s, plus, base, shift):
    a(f"s_add_u32 s{dst}, s{step_s}, {plus}\ns_lshl_b32 s{dst}, s{dst}, {shift}\ns_add_u32 s{dst}, s{dst}, {base}\ns_lshr_b32 s22, s{dst}, 8\ns_and_b32 s22, s22, 8192\ns_xor_b32 s22, s22, s19\ns_add_u32 s{dst}, s{dst}, s22")

def idx_reg(a, v):
    a(f"v_and_b32 v{v}, 8, v1\nv_cmp_eq_u32 vcc, 0, v{v}\nv_mov_b32 v{v}, 0xeeee\nv_mov_b32 v{v+1}, 0x4444\nv_cndmask_b32 v{v}, v{v}, v{v+1}, vcc")

def check(a, regs, acc):
    regs = list(regs)
    first = True
    while regs:
        if first:
            x = regs[:3]; regs = regs[3:]; a(f"v_max3_u32 v{acc}, v{x[0]}, v{x[1]}, v{x[2]}"); first = False
        elif len(regs) >= 2:
            x = regs[:2]; regs = regs[2:]; a(f"v_max3_u32 v{acc}, v{acc}, v{x[0]}, v{x[1]}")
        else:
            a(f"v_max_u32 v{acc}, v{acc}, v{regs[0]}"); regs = []

MEMLDS = 6 * SLOT
def mem_poll_setup(a, vA):
    a(f"""s_mul_i32 s22, s17, 2560
v_lshlrev_b32 v{vA}, 4, v1
v_add_u32 v{vA}, s22, v{vA}
v_add_u32 v{vA+3}, {MEMLDS}, v{vA}
v_add_u32 v{vA+1}, 1024, v{vA}
v_and_b32 v{vA+2}, 31, v1
v_lshlrev_b32 v{vA+2}, 4, v{vA+2}
v_add_u32 v{vA+2}, s22, v{vA+2}
v_add_u32 v{vA+2}, 2048, v{vA+2}
v_add_u32 v{vA+4}, {MEMLDS}, v{vA+2}""")
    for i in range(3): remap(a, vA + i, 15)

def mem_poll(a, lbl, vA, P, T):
    a.label(lbl)
    for i in range(3): a(f"buffer_load_dwordx4 v[{P+4*i}:{P+4*i+3}], v{vA+i}, s[4:7], s40 offen sc1")
    spin_guard(a, 39)
    check(a, range(P, P + 12), T)
    a(f"v_cmp_eq_u32 vcc, s41, v{T}\ns_cbranch_vccnz {lbl}")
    a(f"""ds_write_b128 v{vA+3}, v[{P}:{P+3}]
ds_write_b128 v{vA+3}, v[{P+4}:{P+7}] offset:1024
ds_write_b128 v{vA+4}, v[{P+8}:{P+11}]
s_waitcnt lgkmcnt(0)
s_barrier""")

def role_R(a):
    a.label("L_R")
    a(f"""s_lshl_b32 s22, s17, 3
s_mul_i32 s23, s22, 640
s_add_u32 s23, s23, 10240
v_lshrrev_b32 v14, 5, v1
v_mul_u32_u24 v14, 640, v14
v_and_b32 v15, 31, v1
v_lshl_add_u32 v14, v15, 4, v14
v_add_u32 v4, s23, v14
v_add_u32 v5, 1280, v4
v_add_u32 v6, 2560, v4
v_add_u32 v7, 3840, v4
v_mul_u32_u24 v14, 1280, v2
v_lshl_add_u32 v14, v3, 3, v14
v_add_u32 v14, 512, v14
v_add_u32 v8, s23, v14
v_add_u32 v9, 640, v8""")
    for v in range(4, 10): remap(a, v, 15)
    a(f"""s_lshl_b32 s23, s18, 14
s_lshl_b32 s24, s17, 11
s_add_u32 s23, s23, s24
v_lshlrev_b32 v11, 4, v1
v_add_u32 v10, s23, v11
s_lshl_b32 s36, s18, 15
s_lshl_b32 s24, s17, 13
s_add_u32 s36, s36, s24
s_add_u32 s36, s36, {U_OFF}
s_mul_i32 s24, s18, 6554
s_lshr_b32 s24, s24, 16
s_lshl_b32 s24, s24, 6
v_and_b32 v12, 7, v1
v_add_u32 v12, s22, v12
v_lshlrev_b32 v12, 8, v12
v_add_u32 v12, s24, v12
s_mov_b32 s35, {FLAG_OFF + ROLE_O*32*256}
s_mov_b32 s41, {hex(SENT)}
s_mov_b32 s39, 0
s_mov_b32 s20, 0""")
    idx_reg(a, 16)
    a(f"""v_and_b32 v14, 1, v2
v_lshlrev_b32 v14, 8, v14
v_lshrrev_b32 v15, 5, v1
v_lshl_add_u32 v14, v15, 7, v14
v_lshl_add_u32 v14, v3, 2, v14
s_lshl_b32 s22, s17, 9
v_add_u32 v18, s22, v14
v_lshlrev_b32 v19, 3, v1
v_lshrrev_b32 v14, 3, v1
v_lshlrev_b32 v14, 4, v14               ; row*16
v_bfe_u32 v15, v1, 2, 1
v_lshl_add_u32 v14, v15, 7, v14         ; + hf*128
v_and_b32 v15, 3, v1
v_lshl_add_u32 v14, v15, 2, v14
s_lshl_b32 s22, s18, 8
v_add_u32 v20, s22, v14""")
    remap(a, 20, 15)
    UB = 64; YB = 56; PB = 32; PM = 48; D = 24
    a.label("L_R_loop")
    a("s_add_u32 s31, s20, 1")
    a.label("L_R_fl")
    a("buffer_load_dword v13, v12, s[4:7], s35 offen sc1")
    spin_guard(a, 39)
    a(f"s_waitcnt vmcnt(0)\nv_cmp_gt_u32 vcc, s31, v13\ns_cbranch_vccnz L_R_fl")
    a(f"s_mul_i32 s23, s20, {40*32768}\ns_add_u32 s23, s23, s36\ns_add_u32 s24, s23, 4096")
    for i in range(8):
        a(f"buffer_load_dwordx4 v[{UB+4*i}:{UB+4*i+3}], v11, s[4:7], s{23 + i//4} offen offset:{(i%4)*1024} sc1")
    span_off(a, 40, 20, 0, MP_OFF, 16)
    span_off(a, 42, 20, 0, Y_OFF, 20)
    span_off(a, 43, 20, 1, MP_OFF, 16)
    a("s_waitcnt vmcnt(0)")
    a.label("L_R_pollY")
    for i in range(2): a(f"buffer_load_dwordx4 v[{YB+4*i}:{YB+4*i+3}], v10, s[4:7], s42 offen offset:{i*1024} sc1")
    spin_guard(a, 39)
    check(a, range(YB, YB + 8), 14)
    a("v_cmp_eq_u32 vcc, s41, v14\ns_cbranch_vccnz L_R_pollY")
    for j in range(4): a(f"v_mov_b32 v{D+j}, 0")
    a.label("L_R_pollP")
    for i in range(4): a(f"buffer_load_dwordx4 v[{PB+4*i}:{PB+4*i+3}], v{4+i}, s[4:7], s40 offen sc1")
    for i in range(2): a(f"buffer_load_dwordx2 v[{PM+2*i}:{PM+2*i+1}], v{8+i}, s[4:7], s40 offen sc1")
    spin_guard(a, 39)
    check(a, range(PB, PB + 20), 14)
    a("v_cmp_eq_u32 vcc, s41, v14\ns_cbranch_vccnz L_R_pollP")
    for m in range(4):
        a(f"v_smfmac_f32_16x16x64_bf16 v[{D}:{D+3}], v[{PB+4*m}:{PB+4*m+3}], v[{UB+8*m}:{UB+8*m+7}], v16")
    a(f"v_smfmac_f32_16x16x64_bf16 v[{D}:{D+3}], v[{PM}:{PM+3}], v[{YB}:{YB+7}], v16")
    a(f"""v_permlane32_swap_b32 v{D}, v{D+2}
v_permlane32_swap_b32 v{D+1}, v{D+3}
v_add_f32 v{D}, v{D}, v{D+2}
v_add_f32 v{D+1}, v{D+1}, v{D+3}
ds_write2_b32 v18, v{D}, v{D+1} offset0:0 offset1:16
s_waitcnt lgkmcnt(0)
s_barrier
s_cmp_lg_u32 s17, 0
s_cbranch_scc1 L_R_next
ds_read2_b64 v[32:35], v19 offset0:0 offset1:64
ds_read2_b64 v[36:39], v19 offset0:128 offset1:192
v_add_f32 v32, v32, v34
v_add_f32 v33, v33, v35
v_add_f32 v36, v36, v38
v_add_f32 v37, v37, v39
v_add_f32 v32, v32, v36
v_add_f32 v33, v33, v37
v_cvt_pk_bf16_f32 v32, v32, v33
buffer_store_dword v32, v20, s[4:7], s43 offen sc1""")
    a.label("L_R_next")
    a(f"""v_xor_b32 v18, 2048, v18
v_xor_b32 v19, 2048, v19
s_add_u32 s20, s20, 1
s_cmp_lt_u32 s20, 63
s_cbranch_scc1 L_R_loop
s_endpgm""")

def role_V(a):
    a.label("L_V")
    def wv(c, t):
        f = c * 3 + t
        return ('a', 240 + 8 * f) if f < 2 else ('v', 128 + 8 * (f - 2))
    a("s_mul_i32 s32, s18, 384\ns_mul_i32 s33, s18, 245760")
    st = [dict(kind='O', srd=12, stride=1280, col=33, style='nat', row0=64 * (q >> 2) + 32 * ((q >> 1) & 1) + 4 * (q & 1),
               dests=(lambda t, qq, q=q: ('a', (t * 3 + (q >> 2)) * 8 + 2 * (q & 3)))) for q in range(12)]
    st += w_stages(8, 12288, 32, 'sp', lambda c, t, q: (wv(c, t)[0], wv(c, t)[1] + 2 * q), resident=(6, 7, 8, 9))
    aW = loader(a, st, 0, 40)
    for t in range(3): a(f"v_mov_b32 v{4+t}, v{aW+t}\nv_add_u32 v{7+t}, 49152, v{aW+t}")
    mem_poll_setup(a, 10)
    idx_reg(a, 16)
    VIMG = 4 * SLOT
    a(f"""v_lshlrev_b32 v18, 4, v1
v_add_u32 v18, {MEMLDS}, v18
s_mul_i32 s22, s17, 768
v_lshlrev_b32 v19, 4, v3
v_and_b32 v15, 1, v2
v_lshl_add_u32 v19, v15, 3, v19
v_lshrrev_b32 v15, 5, v1
v_lshl_add_u32 v19, v15, 2, v19
v_add_u32 v19, s22, v19
v_add_u32 v19, {VIMG}, v19
v_bfe_u32 v15, v1, 3, 1                 ; r>>1
v_lshlrev_b32 v20, 2, v15
v_bfe_u32 v15, v1, 2, 1                 ; r&1
v_add_u32 v20, v20, v15
v_bfe_u32 v15, v1, 1, 1                 ; hf = c>>1
v_lshl_add_u32 v20, v15, 1, v20
v_lshl_add_u32 v20, v2, 4, v20          ; + 16*gA
v_lshlrev_b32 v20, 4, v20
v_and_b32 v15, 1, v1
v_lshl_add_u32 v20, v15, 3, v20
v_add_u32 v20, {VIMG}, v20
v_lshrrev_b32 v15, 5, v1
s_mul_i32 s22, s17, 10
v_add_u32 v15, s22, v15
v_lshlrev_b32 v21, 14, v15              ; ct*16K
s_lshl_b32 s22, s18, 8
v_add_u32 v21, s22, v21
v_lshl_add_u32 v21, v3, 4, v21
v_and_b32 v15, 1, v2
v_lshl_add_u32 v21, v15, 3, v21
s_mov_b32 s41, {hex(SENT)}
s_mov_b32 s39, 0
s_mov_b32 s20, 0""")
    M = 24; ACC = 64; WIN = 80; VA = 96; P = 64; YA = 24
    def winread(c, t, w):
        off = (c - 6) * SLOT
        base = 4 + t
        if off >= 49152: base = 7 + t; off -= 49152
        for q in range(4): a(f"ds_read_b64_tr_b16 v[{WIN+8*w+2*q}:{WIN+8*w+2*q+1}], v{base} offset:{off + q*6144}")
    ldsfr = [(c, t) for t in range(3) for c in (6, 7, 8, 9)]
    a.label("L_V_loop")
    span_off(a, 40, 20, 0, MP_OFF, 16)
    span_off(a, 42, 20, 0, Y_OFF, 20)
    winread(*ldsfr[0], 0); winread(*ldsfr[1], 1)
    a("s_waitcnt lgkmcnt(0)")
    mem_poll(a, "L_V_poll", 10, P, 15)
    order = [6, 0, 7, 1, 2, 8, 3, 9, 4, 5]
    for c in order: a(f"ds_read_b128 v[{M+4*c}:{M+4*c+3}], v18 offset:{c*1024}")
    for j in range(12): a(f"v_mov_b32 v{ACC+j}, 0")
    k = 0
    def post_v(t):
        d = ACC + 4 * t
        a(f"""v_permlane32_swap_b32 v{d}, v{d+2}
v_permlane32_swap_b32 v{d+1}, v{d+3}
v_add_f32 v{d}, v{d}, v{d+2}
v_add_f32 v{d+1}, v{d+1}, v{d+3}
v_cvt_pk_bf16_f32 v{d}, v{d}, v{d+1}
ds_write_b32 v19, v{d} offset:{t*256}""")
    for t in range(3):
        d = ACC + 4 * t
        for n, c in enumerate(order):
            if c >= 6:
                w = k % 2
                a(f"v_smfmac_f32_16x16x64_bf16 v[{d}:{d+3}], v[{M+4*c}:{M+4*c+3}], v[{WIN+8*w}:{WIN+8*w+7}], v16")
                if k + 2 < len(ldsfr): winread(*ldsfr[k + 2], w)
                k += 1
            else:
                kd, r = wv(c, t)
                a(f"v_smfmac_f32_16x16x64_bf16 v[{d}:{d+3}], v[{M+4*c}:{M+4*c+3}], {R(kd, r, 8)}, v16")
            if n == 4 and t > 0: post_v(t - 1)
    post_v(2)
    for j in range(40): a(f"v_mov_b32 v{YA+j}, 0")
    a("s_waitcnt lgkmcnt(0)\ns_barrier")
    for c in range(3):
        for hh in range(2): a(f"ds_read_b64_tr_b16 v[{VA+4*c+2*hh}:{VA+4*c+2*hh+1}], v20 offset:{c*1024 + hh*128}")
    def post_y(pp):
        da = YA + 8 * pp; db = da + 4
        for r in range(4): a(f"v_permlane32_swap_b32 v{da+r}, v{db+r}")
        for r in range(4): a(f"v_add_f32 v{da+r}, v{da+r}, v{db+r}")
        a(f"""v_cvt_pk_bf16_f32 v{da}, v{da}, v{da+1}
v_cvt_pk_bf16_f32 v{da+1}, v{da+2}, v{da+3}
s_add_u32 s26, s42, {pp*32768}
buffer_store_dwordx2 v[{da}:{da+1}], v21, s[4:7], s26 offen sc1""")
    for pp in range(5):
        for c in range(3):
            for tb in range(2):
                t = 2 * pp + tb; d = YA + 4 * t
                a(f"v_smfmac_f32_16x16x64_bf16 v[{d}:{d+3}], v[{VA+4*c}:{VA+4*c+3}], a[{(t*3+c)*8}:{(t*3+c)*8+7}], v16")
        if pp > 0: post_y(pp - 1)
    post_y(4)
    a(f"""s_add_u32 s20, s20, 1
s_cmp_lt_u32 s20, 64
s_cbranch_scc1 L_V_loop
s_endpgm""")

SCL = (192 ** -0.5) * math.log2(math.e)
def xlane(a, op, v, t, ror8):
    if ror8: a(f"{op}_dpp v{v}, v{v}, v{v} row_ror:8 row_mask:0xf bank_mask:0xf")
    a(f"v_mov_b32 v{t}, v{v}\nv_permlane16_swap_b32 v{t}, v{v}\n{op} v{v}, v{v}, v{t}")
    a(f"v_mov_b32 v{t}, v{v}\nv_permlane32_swap_b32 v{t}, v{v}\n{op} v{v}, v{v}, v{t}")

def role_A(a):
    a.label("L_A")
    def fr(m, c, t):
        f = (c * 3 + t) if m == 0 else (24 + c * 3 + t)
        return ('a', 8 * f) if f < 32 else ('v', 152 + 8 * (f - 32))
    a("s_mul_i32 s32, s18, 384")
    sq = w_stages(8, 12288, 32, 'sp', lambda c, t, q: (fr(0, c, t)[0], fr(0, c, t)[1] + 2 * q), resident=(8, 9))
    sk = w_stages(12, 12288, 32, 'sp', lambda c, t, q: (fr(1, c, t)[0], fr(1, c, t)[1] + 2 * q), resident=(7, 8, 9))
    st = sq[:8] + sk[:7] + [sq[8], sq[9], sk[7], sk[8], sk[9]]
    resid = {(0, 8): 0, (0, 9): 1, (1, 7): 2, (1, 8): 3, (1, 9): 4}
    aW = loader(a, st, 3, 40)
    for t in range(3): a(f"v_mov_b32 v{4+t}, v{aW+t}\nv_add_u32 v{7+t}, 61440, v{aW+t}")
    mem_poll_setup(a, 10)
    idx_reg(a, 16)
    SP = MEMLDS + 10240
    XP = 5 * SLOT
    a(f"""v_lshlrev_b32 v30, 4, v1                ; lane*16
v_add_u32 v18, {MEMLDS}, v30
v_lshlrev_b32 v19, 7, v2
v_lshl_add_u32 v19, v3, 4, v19          ; (g*8+n)*16
s_mul_i32 s22, s17, 1536
s_add_u32 s22, s22, {SP}
v_add_u32 v19, s22, v19
v_and_b32 v15, 7, v1
v_lshlrev_b32 v20, 4, v15
v_lshl_add_u32 v20, v2, 7, v20
v_bfe_u32 v15, v1, 3, 1                 ; hf
v_lshl_add_u32 v20, v15, 9, v20
v_add_u32 v20, {SP + 512}, v20
v_and_b32 v21, 7, v1
v_lshlrev_b32 v21, 4, v21
v_lshl_add_u32 v21, v15, 3, v21
v_and_b32 v15, 1, v2
v_lshl_add_u32 v21, v15, 7, v21
v_add_u32 v21, {SP + 256}, v21
s_mul_i32 s22, s18, 640
s_add_u32 s22, s22, 10240
v_lshrrev_b32 v15, 1, v2
v_lshlrev_b32 v22, 8, v15
v_lshl_add_u32 v22, v3, 4, v22
v_and_b32 v15, 1, v2
v_lshl_add_u32 v22, v15, 3, v22
v_add_u32 v22, s22, v22
v_lshlrev_b32 v23, 3, v3
v_lshl_add_u32 v23, v15, 2, v23
v_add_u32 v23, s22, v23
v_add_u32 v23, 512, v23""")
    remap(a, 22, 15); remap(a, 23, 15)
    a(f"""v_lshlrev_b32 v15, 2, v2
v_sub_u32 v15, v3, v15                  ; n - 4g
v_mov_b32 v24, 0
v_mov_b32 v25, 0
v_mov_b32 v26, 0x3f80
v_mov_b32 v27, 0x3f800000
v_cmp_eq_u32 vcc, 0, v15
v_cndmask_b32 v24, v24, v26, vcc
v_cmp_eq_u32 vcc, 1, v15
v_cndmask_b32 v24, v24, v27, vcc
v_cmp_eq_u32 vcc, 2, v15
v_cndmask_b32 v25, v25, v26, vcc
v_cmp_eq_u32 vcc, 3, v15
v_cndmask_b32 v25, v25, v27, vcc""")
    for r in range(4): a(f"v_cmp_le_i32 s[{44+2*r}:{45+2*r}], {r}, v15")
    a("s_nop 4\ns_and_b32 s22, s17, 1\ns_cmp_eq_u32 s22, 1")
    for r in range(4):
        a(f"s_cselect_b64 s[{52+2*r}:{53+2*r}], s[{44+2*r}:{45+2*r}], 0\ns_cselect_b64 s[{44+2*r}:{45+2*r}], -1, s[{44+2*r}:{45+2*r}]")
    a(f"""s_mov_b32 s60, 0
s_mov_b32 s61, -1
s_mul_i32 s22, s17, 5120
s_add_u32 s22, s22, {XP}
v_add_u32 v17, s22, v30
s_and_b32 s22, s17, 1
s_lshl_b32 s22, s22, 11
s_add_u32 s22, s22, {XP}
v_add_u32 v0, s22, v30
s_mul_i32 s36, s18, 12288
s_mul_i32 s22, s17, 3072
s_add_u32 s36, s36, s22
s_and_b32 s22, s17, 1
s_lshl_b32 s37, s22, 15
s_lshl_b32 s23, s18, 10
s_add_u32 s37, s37, s23
s_add_u32 s37, s37, {PX_OFF}
s_lshl_b32 s38, s22, 13
s_lshl_b32 s23, s18, 8
s_add_u32 s38, s38, s23
s_add_u32 s38, s38, {PXM_OFF}
v_and_b32 v15, 1, v2
v_lshlrev_b32 v3, 4, v3
v_lshl_add_u32 v3, v15, 3, v3
v_and_b32 v2, 1, v1
v_mul_u32_u24 v2, {(ROLE_Q - ROLE_K) * 32 * 256}, v2
v_mov_b32 v1, v30
s_mov_b32 s62, {hex(f2u(SCL))}
s_mov_b32 s63, {hex(f2u(-1e9 / (192 ** -0.5)))}
s_mov_b32 s64, 0xff800000
s_mov_b32 s66, 0x00ff00ff
s_mov_b32 s67, 0x00ff00ff
s_mov_b32 s41, {hex(SENT)}
s_mov_b32 s39, 0
s_mov_b32 s20, 0""")
    flag_addr(a, 35, ROLE_K, 18, 17)
    X = 26; M = 32; ACC = 72; WIN = 88; KX = 104; KN = 116; QX = 128; S = 140
    P = ACC
    def winread(m, c, t, w):
        off = resid[(m, c)] * SLOT
        for q in range(4):
            o = off + q * 6144; base = 4 + t
            if o > 65535: base = 7 + t; o -= 61440
            a(f"ds_read_b64_tr_b16 v[{WIN+8*w+2*q}:{WIN+8*w+2*q+1}], v{base} offset:{o}")
    regs_ = []
    for c in range(8):
        regs_.append((0, c))
        if c < 7: regs_.append((1, c))
    lds_ = [(0, 8), (1, 8), (0, 9), (1, 9), (1, 7)]
    seq = []
    for i in range(5): seq += [lds_[i]] + regs_[3*i:3*i+3]
    ldsfr = [(m, c, t) for t in range(3) for (m, c) in lds_]
    def waitflags(lbl):
        a.label(lbl)
        a("buffer_load_dword v15, v2, s[4:7], s35 offen sc1")
        spin_guard(a, 39)
        a(f"s_waitcnt vmcnt(0)\nv_cmp_gt_u32 vcc, s31, v15\ns_cbranch_vccnz {lbl}")
    a("s_mov_b32 s31, 1")
    waitflags("L_A_f0")
    a(f"s_add_u32 s23, s36, {KX_OFF}")
    for t in range(3): a(f"buffer_load_dwordx4 v[{KN+4*t}:{KN+4*t+3}], v1, s[4:7], s23 offen offset:{t*1024} sc1")
    a.label("L_A_loop")
    a("s_add_u32 s31, s20, 2\ns_min_u32 s31, s31, 64")
    waitflags("L_A_fl")
    for j in range(12): a(f"v_mov_b32 v{KX+j}, v{KN+j}")
    span_off(a, 40, 20, 0, MP_OFF, 16)
    a(f"""s_add_u32 s23, s20, 1
s_min_u32 s23, s23, 63
s_mul_i32 s23, s23, {32*12288}
s_add_u32 s23, s23, s36
s_add_u32 s42, s23, {KX_OFF}
s_mul_i32 s23, s20, {32*12288}
s_add_u32 s23, s23, s36
s_add_u32 s43, s23, {QX_OFF}""")
    winread(*ldsfr[0], 0); winread(*ldsfr[1], 1)
    a("s_waitcnt lgkmcnt(0)")
    mem_poll(a, "L_A_poll", 10, P, 15)
    corder = []
    for (m, c) in seq:
        if c not in corder: corder.append(c)
    for c in corder: a(f"ds_read_b128 v[{M+4*c}:{M+4*c+3}], v18 offset:{c*1024}")
    for j in range(8): a(f"v_mov_b32 v{ACC+j}, 0")
    for t in range(3): a(f"buffer_load_dwordx4 v[{QX+4*t}:{QX+4*t+3}], v1, s[4:7], s43 offen offset:{t*1024} sc1")
    for t in range(3): a(f"buffer_load_dwordx4 v[{KN+4*t}:{KN+4*t+3}], v1, s[4:7], s42 offen offset:{t*1024} sc1")
    def post(t):
        dq = ACC + 8 * (t % 2); dk = dq + 4; x = X + 2 * t
        g = []
        for r in range(4): g.append(f"v_permlane32_swap_b32 v{dq+r}, v{dk+r}")
        for r in range(4): g.append(f"v_add_f32 v{dq+r}, v{dq+r}, v{dk+r}")
        g.append(f"v_cvt_pk_bf16_f32 v{dq}, v{dq}, v{dq+1}")
        g.append(f"v_cvt_pk_bf16_f32 v{dq+1}, v{dq+2}, v{dq+3}")
        g.append(None)
        g.append(f"v_mfma_f32_16x16x16_bf16 v[{dk}:{dk+3}], v[{dq}:{dq+1}], v[24:25], 0")
        g.append(None); g.append(None)
        g.append(f"v_cvt_pk_bf16_f32 v{x}, v{dk}, v{dk+1}")
        g.append(f"v_cvt_pk_bf16_f32 v{x+1}, v{dk+2}, v{dk+3}")
        g.append(None)
        sc = []
        for j, src in enumerate((x, KX + 4 * t, KX + 4 * t + 2)):
            c = "0" if t == 0 else f"v[{S+4*j}:{S+4*j+3}]"
            sc.append(f"v_mfma_f32_16x16x16_bf16 v[{S+4*j}:{S+4*j+3}], v[{src}:{src+1}], v[{x}:{x+1}], {c}")
        g.append("\n".join(sc))
        return g
    k = 0
    for t in range(3):
        dq = ACC + 8 * (t % 2)
        fill = []
        if t == 0: fill = [f"v_mov_b32 v{ACC+8+j}, 0" for j in range(8)]
        if t >= 1: fill = [None, None] + post(t - 1)
        for n, (m, c) in enumerate(seq):
            d = dq + 4 * m
            if (m, c) in resid:
                w = k % 2
                a(f"v_smfmac_f32_16x16x64_bf16 v[{d}:{d+3}], v[{M+4*c}:{M+4*c+3}], v[{WIN+8*w}:{WIN+8*w+7}], v16")
                if k + 2 < len(ldsfr): winread(*ldsfr[k + 2], w)
                k += 1
            else:
                kd, r = fr(m, c, t)
                a(f"v_smfmac_f32_16x16x64_bf16 v[{d}:{d+3}], v[{M+4*c}:{M+4*c+3}], {R(kd, r, 8)}, v16")
            if n < len(fill) and fill[n]: a(fill[n])
        if t == 1:
            for j in range(8): a(f"v_mov_b32 v{ACC+j}, 0")
    for gi in post(2):
        if gi: a(gi)
    a("s_mov_b64 exec, s[66:67]")
    for j in range(3): a(f"ds_write_b128 v19, v[{S+4*j}:{S+4*j+3}] offset:{512*j}")
    a("s_mov_b64 exec, -1\ns_waitcnt lgkmcnt(0)\ns_barrier\ns_cmp_lg_u32 s17, 0\ns_cbranch_scc1 L_A_x")
    T = M
    for w in range(4): a(f"ds_read_b128 v[{T+4*w}:{T+4*w+3}], v20 offset:{1536*w}\nds_read_b64 v[{T+16+2*w}:{T+17+2*w}], v21 offset:{1536*w}")
    for j in range(4): a(f"v_add_f32 v{T+j}, v{T+j}, v{T+4+j}")
    for j in range(2): a(f"v_add_f32 v{T+16+j}, v{T+16+j}, v{T+18+j}")
    for j in range(4): a(f"v_add_f32 v{T+8+j}, v{T+8+j}, v{T+12+j}")
    for j in range(2): a(f"v_add_f32 v{T+20+j}, v{T+20+j}, v{T+22+j}")
    for j in range(4): a(f"v_add_f32 v{T+j}, v{T+j}, v{T+8+j}")
    for j in range(2): a(f"v_add_f32 v{T+4+j}, v{T+16+j}, v{T+20+j}")
    mx = T + 8; tm = T + 9
    a(f"v_max3_f32 v{mx}, v{T}, v{T+1}, v{T+2}\nv_max3_f32 v{tm}, v{T+3}, v{T+4}, v{T+5}\nv_max_f32 v{mx}, v{mx}, v{tm}")
    xlane(a, "v_max_f32", mx, tm, True)
    a(f"v_mul_f32 v{mx}, s62, v{mx}")
    for j in range(6): a(f"v_fma_f32 v{T+j}, v{T+j}, s62, -v{mx}")
    for j in range(6): a(f"v_exp_f32 v{T+j}, v{T+j}")
    a(f"""v_add_f32 v{mx}, v{T}, v{T+1}
v_add_f32 v{tm}, v{T+2}, v{T+3}
v_add_f32 v{T+10}, v{T+4}, v{T+5}
v_add_f32 v{mx}, v{mx}, v{tm}
v_fmac_f32 v{mx}, 0.5, v{T+10}""")
    xlane(a, "v_add_f32", mx, tm, True)
    a(f"v_rcp_f32 v{mx}, v{mx}")
    for j in range(6): a(f"v_mul_f32 v{T+j}, v{T+j}, v{mx}")
    a(f"""v_cvt_pk_bf16_f32 v{T}, v{T}, v{T+1}
v_cvt_pk_bf16_f32 v{T+1}, v{T+2}, v{T+3}
v_cvt_pk_bf16_f32 v{T+2}, v{T+4}, v{T+5}
buffer_store_dwordx2 v[{T}:{T+1}], v22, s[4:7], s40 offen sc1
s_mov_b32 exec_hi, 0
buffer_store_dword v{T+2}, v23, s[4:7], s40 offen sc1
s_mov_b32 exec_hi, -1
s_waitcnt vmcnt(2)
s_branch L_A_x1""")
    a.label("L_A_x")
    XS = M + 12
    a("s_waitcnt vmcnt(0)")
    a.label("L_A_x1")
    for t in range(3):
        x = X + 2 * t
        for j, (src, qt) in enumerate(((x, 0), (KX + 4 * t, 0), (x, 1), (KX + 4 * t, 1), (KX + 4 * t + 2, 1))):
            c = "0" if t == 0 else f"v[{XS+4*j}:{XS+4*j+3}]"
            a(f"v_mfma_f32_16x16x16_bf16 v[{XS+4*j}:{XS+4*j+3}], v[{src}:{src+1}], v[{QX+4*t+2*qt}:{QX+4*t+2*qt+1}], {c}")
    for j in range(5): a(f"ds_write_b128 v17, v[{XS+4*j}:{XS+4*j+3}] offset:{1024*j}")
    a("s_waitcnt lgkmcnt(0)\ns_barrier\ns_cmp_lt_u32 s17, 2\ns_cbranch_scc1 L_A_next")
    for w in range(4):
        base = T if w == 0 else T + 12 + 12 * (w % 2)
        for j in range(3): a(f"ds_read_b128 v[{base+4*j}:{base+4*j+3}], v0 offset:{5120*w + 1024*j}")
        if w:
            for j in range(12): a(f"v_add_f32 v{T+j}, v{T+j}, v{base+j}")
    a(f"v_mov_b32 v{T+12}, s63\nv_mov_b32 v{T+13}, s64")
    for r in range(4):
        a(f"v_cndmask_b32 v{T+r}, v{T+13}, v{T+r}, s[60:61]")
        a(f"v_cndmask_b32 v{T+4+r}, v{T+12}, v{T+4+r}, s[{44+2*r}:{45+2*r}]")
        a(f"v_cndmask_b32 v{T+8+r}, v{T+12}, v{T+8+r}, s[{52+2*r}:{53+2*r}]")
    mx = T + 12; tm = T + 13
    a(f"v_max3_f32 v{mx}, v{T}, v{T+1}, v{T+2}")
    for j in range(3, 11, 2): a(f"v_max3_f32 v{mx}, v{mx}, v{T+j}, v{T+j+1}")
    a(f"v_max_f32 v{mx}, v{mx}, v{T+11}")
    xlane(a, "v_max_f32", mx, tm, False)
    a(f"v_mul_f32 v{mx}, s62, v{mx}")
    for j in range(12): a(f"v_fma_f32 v{T+j}, v{T+j}, s62, -v{mx}")
    for j in range(12): a(f"v_exp_f32 v{T+j}, v{T+j}")
    a(f"v_add_f32 v{mx}, v{T}, v{T+1}")
    for j in range(2, 12): a(f"v_add_f32 v{mx}, v{mx}, v{T+j}")
    xlane(a, "v_add_f32", mx, tm, False)
    a(f"v_rcp_f32 v{mx}, v{mx}")
    for j in range(12): a(f"v_mul_f32 v{T+j}, v{T+j}, v{mx}")
    O = T + 16
    a(f"""v_cvt_pk_bf16_f32 v{O}, v{T+4}, v{T+5}
v_cvt_pk_bf16_f32 v{O+1}, v{T+8}, v{T+9}
v_cvt_pk_bf16_f32 v{O+2}, v{T+6}, v{T+7}
v_cvt_pk_bf16_f32 v{O+3}, v{T+10}, v{T+11}
v_cvt_pk_bf16_f32 v{O+4}, v{T}, v{T+1}
v_cvt_pk_bf16_f32 v{O+5}, v{T+2}, v{T+3}
s_lshl_b32 s23, s20, 16
s_add_u32 s23, s23, s37
buffer_store_dwordx4 v[{O}:{O+3}], v1, s[4:7], s23 offen
s_lshl_b32 s23, s20, 14
s_add_u32 s23, s23, s38
s_mov_b32 exec_lo, 0
buffer_store_dwordx2 v[{O+4}:{O+5}], v3, s[4:7], s23 offen
s_mov_b32 exec_lo, -1""")
    a.label("L_A_next")
    a(f"""s_add_u32 s20, s20, 1
s_cmp_lt_u32 s20, 64
s_cbranch_scc1 L_A_loop
s_endpgm""")

def gen_main():
    a = Asm()
    a(f"""s_cmp_ge_u32 s2, 256
s_cbranch_scc1 L_exit
s_load_dwordx2 s[24:25], s[0:1], {K_WS}
s_load_dwordx8 s[68:75], s[0:1], {K_WQ}
s_lshr_b32 s16, s2, 3
s_lshl_b32 s16, s16, 2
s_and_b32 s3, s2, 3
s_or_b32 s16, s16, s3
s_and_b32 s3, s2, 4
s_lshl_b32 s3, s3, 5
s_or_b32 s16, s16, s3                   ; position: dies 0..3 first (speed only)
v_lshrrev_b32 v1, 6, v0
s_nop 0
v_readfirstlane_b32 s17, v1
s_waitcnt lgkmcnt(0)
s_load_dword s19, s[24:25], {PAR_OFF}""")
    srd(a, 4, 24, WS_BYTES)
    lane_decomp(a)
    WB = 640 * 6144 * 2
    a(f"""s_and_b32 s18, s16, 31
s_lshr_b32 s27, s16, 5                  ; 0 A, 1 V, 2-3 R/idle, 4 K, 5 V, 6 O, 7 Q
s_waitcnt lgkmcnt(0)
s_and_b32 s19, s19, 8192
s_mov_b32 s10, {WB}
s_mov_b32 s11, 0x20000
s_mov_b32 s14, {WB}
s_mov_b32 s15, 0x20000
s_mov_b64 s[8:9], s[68:69]
s_mov_b64 s[12:13], s[70:71]
s_cmp_eq_u32 s27, 0
s_cbranch_scc1 L_A
s_mov_b64 s[8:9], s[72:73]
s_mov_b64 s[12:13], s[74:75]
s_cmp_eq_u32 s27, 1
s_cbranch_scc1 L_V
s_cmp_ge_u32 s27, 4
s_cbranch_scc1 L_work
s_sub_u32 s18, s16, 64
s_cmp_lt_u32 s18, 40
s_cbranch_scc1 L_R""")
    a.label("L_exit")
    a("s_endpgm")
    a.label("L_work")
    a(f"""s_sub_u32 s27, s27, 4
s_cmp_eq_u32 s27, {ROLE_V}
s_cbranch_scc1 L_proj
s_mov_b64 s[8:9], s[70:71]
s_cmp_eq_u32 s27, {ROLE_K}
s_cbranch_scc1 L_proj
s_mov_b64 s[8:9], s[68:69]
s_cmp_eq_u32 s27, {ROLE_Q}
s_cbranch_scc1 L_proj
s_mov_b64 s[8:9], s[74:75]
s_branch L_ow""")
    role_R(a); role_proj(a); role_oworker(a); role_V(a); role_A(a)
    return a.finish(), dict(vgpr=512, sgpr=96, acc=256)
```

```python
from asmgen import Asm
from layout import *
from k_prep import srd, f2u
from k_main import loader, w_stages, proj_loop, lane_decomp, R, SLOT
import math

def gen_attn_out():
    a = Asm()
    a(f"""s_cmp_ge_u32 s2, 640
s_cbranch_scc1 Lp_end
s_load_dwordx2 s[24:25], s[0:1], {K_WS}
s_load_dwordx2 s[26:27], s[0:1], {K_X}
s_mul_i32 s20, s2, 6554
s_lshr_b32 s20, s20, 16
s_mul_i32 s3, s20, 10
s_sub_u32 s18, s2, s3
v_lshrrev_b32 v1, 6, v0
s_nop 0
v_readfirstlane_b32 s17, v1
s_waitcnt lgkmcnt(0)
s_load_dword s19, s[24:25], {PAR_OFF}""")
    srd(a, 4, 24, WS_BYTES); srd(a, 8, 26, 2048 * 1280)
    lane_decomp(a)
    a(f"""v_lshlrev_b32 v4, 4, v1
s_mul_i32 s28, s20, {40*32768}
s_lshl_b32 s22, s18, 17
s_add_u32 s28, s28, s22
s_lshl_b32 s22, s17, 13
s_add_u32 s28, s28, s22
s_add_u32 s28, s28, {U_OFF}
s_lshl_b32 s29, s20, 16
s_add_u32 s29, s29, s22
s_add_u32 s29, s29, {PX_OFF}
s_lshl_b32 s30, s20, 14
s_lshl_b32 s22, s17, 11
s_add_u32 s30, s30, s22
s_add_u32 s30, s30, {PXM_OFF}
s_lshl_b32 s31, s20, 20
s_add_u32 s31, s31, {Y_OFF}
s_lshr_b32 s23, s31, 8
s_and_b32 s23, s23, 8192
s_waitcnt lgkmcnt(0)
s_and_b32 s19, s19, 8192
s_xor_b32 s23, s23, s19
s_add_u32 s31, s31, s23
s_add_u32 s31, s31, s22
s_lshl_b32 s22, s18, 16
s_add_u32 s31, s31, s22""")
    ACC = 8; BUF = 40
    NB = 8
    def load(k):
        b = BUF + 24 * (k % NB)
        for qt in range(2):
            if k < 8: a(f"s_add_u32 s22, s29, {qt*32768 + k*1024}")
            else: a(f"s_add_u32 s22, s30, {qt*8192 + (k-8)*1024}")
            a(f"buffer_load_dwordx4 v[{b+4*qt}:{b+4*qt+3}], v4, s[4:7], s22 offen")
        for ct in range(4):
            if k < 8: a(f"s_add_u32 s22, s28, {ct*32768 + k*1024}")
            else: a(f"s_add_u32 s22, s31, {ct*16384 + (k-8)*1024}")
            a(f"buffer_load_dwordx4 v[{b+8+4*ct}:{b+8+4*ct+3}], v4, s[4:7], s22 offen")
    for k in range(NB): load(k)
    for k in range(10):
        b = BUF + 24 * (k % NB)
        for ct in range(4):
            for qt in range(2):
                acc = ACC + 8 * ct + 4 * qt
                c = "0" if k == 0 else f"v[{acc}:{acc+3}]"
                a(f"v_mfma_f32_16x16x32_bf16 v[{acc}:{acc+3}], v[{b+8+4*ct}:{b+8+4*ct+3}], v[{b+4*qt}:{b+4*qt+3}], {c}")
        if k + NB < 10: load(k + NB)
    a(f"s_lshl_b32 s22, s17, 13\nv_add_u32 v5, s22, v4")
    for j in range(8): a(f"ds_write_b128 v5, v[{ACC+4*j}:{ACC+4*j+3}] offset:{1024*j}")
    a(f"""s_lshl_b32 s22, s18, 7
s_lshl_b32 s23, s17, 5
s_add_u32 s22, s22, s23
s_mul_i32 s23, s20, {32*1280}
s_add_u32 s32, s22, s23
v_mul_u32_u24 v6, 1280, v3
v_lshl_add_u32 v6, v2, 3, v6
s_add_u32 s33, s32, {16*1280}
buffer_load_dwordx2 v[40:41], v6, s[8:11], s32 offen
buffer_load_dwordx2 v[42:43], v6, s[8:11], s33 offen
v_lshlrev_b32 v7, 4, v2
s_lshl_b32 s22, s22, 1
s_add_u32 s22, s22, {MOD_OFF + 2*2560}
buffer_load_dwordx4 v[44:47], v7, s[4:7], s22 offen
s_waitcnt lgkmcnt(0)
s_barrier
s_lshl_b32 s22, s17, 11
v_add_u32 v5, s22, v4""")
    for w in range(4):
        for qt in range(2): a(f"ds_read_b128 v[{48+8*w+4*qt}:{51+8*w+4*qt}], v5 offset:{8192*w + 1024*qt}")
    for j in range(8): a(f"v_add_f32 v{48+j}, v{48+j}, v{56+j}\nv_add_f32 v{64+j}, v{64+j}, v{72+j}")
    for j in range(8): a(f"v_add_f32 v{48+j}, v{48+j}, v{64+j}")
    for qt in range(2):
        o = 48 + 4 * qt; x = 40 + 2 * qt
        a(f"""v_lshlrev_b32 v56, 16, v{x}
v_and_b32 v57, 0xffff0000, v{x}
v_lshlrev_b32 v58, 16, v{x+1}
v_and_b32 v59, 0xffff0000, v{x+1}""")
        for j in range(4): a(f"v_fmac_f32 v{56+j}, v{o+j}, v{44+j}")
        a(f"""v_cvt_pk_bf16_f32 v{60+2*qt}, v56, v57
v_cvt_pk_bf16_f32 v{61+2*qt}, v58, v59
s_add_u32 s22, s{32+qt}, {X1_OFF}
buffer_store_dwordx2 v[{60+2*qt}:{61+2*qt}], v6, s[4:7], s22 offen""")
    a.label("Lp_end")
    a("s_endpgm")
    return a.finish(), dict(vgpr=232, sgpr=40)

def gen_ffn1():
    a = Asm()
    a(f"""s_cmp_ge_u32 s2, 256
s_cbranch_scc1 Lf1_end
s_load_dwordx2 s[24:25], s[0:1], {K_WS}
s_load_dwordx4 s[28:31], s[0:1], {K_W1}      ; w1, b1
s_and_b32 s18, s2, 7
s_lshr_b32 s20, s2, 3
s_lshl_b32 s20, s20, 1
s_add_u32 s21, s20, 2
v_lshrrev_b32 v1, 6, v0
s_nop 0
v_readfirstlane_b32 s17, v1
s_waitcnt lgkmcnt(0)""")
    srd(a, 4, 24, WS_BYTES); srd(a, 8, 28, 640 * 3072); srd(a, 12, 30, 3072)
    lane_decomp(a)
    a(f"""s_mul_i32 s32, s18, 384
s_mul_i32 s22, s17, 96
s_add_u32 s22, s22, s32
v_lshlrev_b32 v4, 3, v2""")
    for t in range(3): a(f"buffer_load_dwordx2 v[{96+2*t}:{97+2*t}], v4, s[12:15], s22 offen offset:{32*t}")
    for t in range(3):
        a(f"""v_lshlrev_b32 v{104+4*t}, 16, v{96+2*t}
v_and_b32 v{105+4*t}, 0xffff0000, v{96+2*t}
v_lshlrev_b32 v{106+4*t}, 16, v{97+2*t}
v_and_b32 v{107+4*t}, 0xffff0000, v{97+2*t}""")
    loader(a, w_stages(8, 3072, 32, 'nat', lambda c, t, q: ('a', ((2*c + (q >> 1)) * 3 + t) * 4 + 2 * (q & 1))), 0, 16)
    a(f"""s_mul_i32 s33, s18, 12288
s_mul_i32 s22, s17, 3072
s_add_u32 s33, s33, s22
s_add_u32 s33, s33, {G_OFF}
s_mov_b32 s34, {hex(f2u(-2.0 * math.sqrt(2.0 / math.pi) * math.log2(math.e)))}
s_mov_b32 s35, {hex(f2u(-2.0 * math.sqrt(2.0 / math.pi) * math.log2(math.e) * 0.044715))}""")
    def gelu(a, ACC):
        a("v_mov_b32 v92, s34")
        for t in range(3):
            for tt in range(2):
                for r in range(4):
                    x = ACC + 8 * t + 4 * tt + r
                    a(f"v_add_f32 v{x}, v{x}, v{104+4*t+r}")
                b = ACC + 8 * t + 4 * tt
                for r in range(4): a(f"v_mul_f32 v{88+r}, v{b+r}, v{b+r}")
                for r in range(4): a(f"v_fma_f32 v{88+r}, v{88+r}, s35, v92")
                for r in range(4): a(f"v_mul_f32 v{88+r}, v{88+r}, v{b+r}")
                for r in range(4): a(f"v_exp_f32 v{88+r}, v{88+r}")
                for r in range(4): a(f"v_add_f32 v{88+r}, 1.0, v{88+r}")
                for r in range(4): a(f"v_rcp_f32 v{88+r}, v{88+r}")
                for r in range(4): a(f"v_mul_f32 v{b+r}, v{b+r}, v{88+r}")
    proj_loop(a, "Lf1", H2_OFF, 20, 2, 33, "", gelu, flag_s=None, segstride=8 * 12288)
    a.label("Lf1_end")
    a("s_endpgm")
    return a.finish(), dict(vgpr=368, sgpr=40, acc=128)

def gen_ffn2():
    a = Asm()
    a(f"""s_cmp_ge_u32 s2, 220
s_cbranch_scc1 Lf2_end
s_load_dwordx2 s[24:25], s[0:1], {K_WS}
s_load_dwordx4 s[28:31], s[0:1], {K_W2}      ; w2, b2
s_load_dwordx2 s[34:35], s[0:1], {K_OUT}
s_mul_i32 s20, s2, 6554
s_lshr_b32 s20, s20, 16
s_mul_i32 s3, s20, 10
s_sub_u32 s18, s2, s3
s_mul_i32 s20, s20, 3
s_add_u32 s21, s20, 3
s_min_u32 s21, s21, 64
v_lshrrev_b32 v1, 6, v0
s_nop 0
v_readfirstlane_b32 s17, v1
s_waitcnt lgkmcnt(0)""")
    srd(a, 4, 24, WS_BYTES); srd(a, 8, 28, 1536 * 1280); srd(a, 12, 30, 1280); srd(a, 36, 34, 2048 * 1280)
    lane_decomp(a)
    a(f"""v_lshrrev_b32 v8, 3, v1                 ; rho
v_and_b32 v9, 7, v1
v_lshrrev_b32 v10, 1, v9
v_lshrrev_b32 v11, 1, v8
v_xor_b32 v10, v10, v11
v_lshlrev_b32 v10, 5, v10
v_and_b32 v9, 1, v9
v_lshl_add_u32 v10, v9, 4, v10
v_mul_u32_u24 v8, 1280, v8
v_add_u32 v8, v8, v10
s_mul_i32 s32, s17, {384*1280}
s_lshl_b32 s22, s18, 7
s_add_u32 s32, s32, s22
s_mul_i32 s33, s17, 32768
v_bfe_u32 v9, v1, 2, 3
v_and_b32 v10, 3, v1
v_lshlrev_b32 v10, 3, v10
v_lshl_add_u32 v10, v9, 7, v10
v_lshrrev_b32 v9, 1, v9
v_lshrrev_b32 v11, 5, v1
v_lshl_add_u32 v10, v11, 10, v10
v_add_u32 v10, s33, v10""")
    for t in range(4): a(f"v_xor_b32 v11, {t}, v9\nv_lshl_add_u32 v{12+t}, v11, 5, v10")
    def piece(u):
        a(f"s_add_u32 m0, s33, {(u % 32)*1024}\ns_add_u32 s26, s32, {u*8*1280}\nbuffer_load_dwordx4 v8, s[8:11], s26 offen lds")
    for u in range(32): piece(u)
    issued = 32
    for q in range(24):
        a(f"s_waitcnt vmcnt({issued - 2*q - 2})")
        for t in range(4):
            r = ((q >> 1) * 4 + t) * 4 + 2 * (q & 1)
            a(f"ds_read_b64_tr_b16 a[{r}:{r+1}], v{12+t} offset:{((2*q) % 32)*1024}")
        if issued < 48:
            a("s_waitcnt lgkmcnt(0)")
            piece(issued); piece(issued + 1); issued += 2
    a("s_waitcnt lgkmcnt(0)\ns_barrier")
    a(f"""v_lshlrev_b32 v4, 4, v1
s_lshl_b32 s22, s18, 7
s_lshl_b32 s23, s17, 5
s_add_u32 s40, s22, s23
v_lshlrev_b32 v7, 3, v2
buffer_load_dwordx2 v[8:9], v7, s[12:15], s40 offen
v_lshlrev_b32 v7, 4, v2
s_lshl_b32 s22, s40, 1
s_add_u32 s22, s22, {MOD_OFF + 5*2560}
buffer_load_dwordx4 v[12:15], v7, s[4:7], s22 offen
v_mul_u32_u24 v6, 1280, v3
v_lshl_add_u32 v6, v2, 3, v6
v_lshlrev_b32 v16, 16, v8
v_and_b32 v17, 0xffff0000, v8
v_lshlrev_b32 v18, 16, v9
v_and_b32 v19, 0xffff0000, v9
s_lshl_b32 s22, s17, 13
v_add_u32 v5, s22, v4
s_lshl_b32 s22, s17, 11
v_add_u32 v10, s22, v4
s_mul_i32 s41, s17, 24576
s_add_u32 s41, s41, {G_OFF}
s_waitcnt vmcnt(0)""")
    GB = 64; ACC = 24
    a.label("Lf2_loop")
    a(f"s_mul_i32 s23, s20, {8*12288}\ns_add_u32 s23, s23, s41")
    for T in range(24):
        if T % 4 == 0: a(f"s_add_u32 s22, s23, {T*1024}")
        a(f"buffer_load_dwordx4 v[{GB+4*T}:{GB+4*T+3}], v4, s[4:7], s22 offen offset:{(T%4)*1024}")
    a(f"""s_mul_i32 s23, s20, {32*1280}
s_add_u32 s42, s23, s40
s_add_u32 s43, s42, {16*1280}
s_add_u32 s22, s42, {X1_OFF}
buffer_load_dwordx2 v[20:21], v6, s[4:7], s22 offen
s_add_u32 s22, s43, {X1_OFF}
buffer_load_dwordx2 v[22:23], v6, s[4:7], s22 offen""")
    for p in range(12):
        b = GB + 8 * p
        a(f"v_swap_b32 v{b+2}, v{b+4}\nv_swap_b32 v{b+3}, v{b+5}")
        for t in range(4):
            for tt in range(2):
                acc = ACC + 8 * t + 4 * tt
                c = "0" if p == 0 else f"v[{acc}:{acc+3}]"
                a(f"v_mfma_f32_16x16x32_bf16 v[{acc}:{acc+3}], a[{(p*4+t)*4}:{(p*4+t)*4+3}], v[{b+4*tt}:{b+4*tt+3}], {c}")
    for j in range(8): a(f"ds_write_b128 v5, v[{ACC+4*j}:{ACC+4*j+3}] offset:{1024*j}")
    a("s_waitcnt lgkmcnt(0)\ns_barrier")
    for w in range(4):
        for tt in range(2): a(f"ds_read_b128 v[{64+8*w+4*tt}:{67+8*w+4*tt}], v10 offset:{8192*w + 1024*tt}")
    for j in range(8): a(f"v_add_f32 v{64+j}, v{64+j}, v{72+j}\nv_add_f32 v{80+j}, v{80+j}, v{88+j}")
    for j in range(8): a(f"v_add_f32 v{64+j}, v{64+j}, v{80+j}")
    a("s_barrier")
    for tt in range(2):
        o = 64 + 4 * tt; x = 20 + 2 * tt
        for j in range(4): a(f"v_add_f32 v{o+j}, v{o+j}, v{16+j}")
        a(f"""v_lshlrev_b32 v72, 16, v{x}
v_and_b32 v73, 0xffff0000, v{x}
v_lshlrev_b32 v74, 16, v{x+1}
v_and_b32 v75, 0xffff0000, v{x+1}""")
        for j in range(4): a(f"v_fmac_f32 v{72+j}, v{o+j}, v{12+j}")
        a(f"""v_cvt_pk_bf16_f32 v{56+2*tt}, v72, v73
v_cvt_pk_bf16_f32 v{57+2*tt}, v74, v75
buffer_store_dwordx2 v[{56+2*tt}:{57+2*tt}], v6, s[36:39], s{42+tt} offen""")
    a(f"""s_add_u32 s20, s20, 1
s_cmp_lt_u32 s20, s21
s_cbranch_scc1 Lf2_loop""")
    a.label("Lf2_end")
    a("s_endpgm")
    return a.finish(), dict(vgpr=352, sgpr=48, acc=160)
```

```python
from asmgen import Asm
from layout import *

def srd(a, d, lo, nbytes):
    a(f"""s_mov_b32 s{d}, s{lo}
s_mov_b32 s{d+1}, s{lo+1}
s_mov_b32 s{d+2}, {nbytes}
s_mov_b32 s{d+3}, 0x20000""")

def round_bf16(a, v, t):
    a(f"v_cvt_pk_bf16_f32 v{t}, v{v}, v{v}\nv_lshlrev_b32 v{v}, 16, v{t}")

def gen_mod():
    a = Asm()
    a(f"""s_cmp_ge_u32 s2, 62
s_cbranch_scc1 Lm_end
s_load_dwordx4 s[4:7], s[0:1], {K_C}
s_load_dwordx2 s[8:9], s[0:1], {K_WS}
s_waitcnt lgkmcnt(0)""")
    srd(a, 12, 4, 1280); srd(a, 16, 6, 640 * 7680); srd(a, 20, 8, WS_BYTES)
    a(f"""s_cmp_eq_u32 s2, 60
s_cbranch_scc1 Lm_cal
s_cmp_eq_u32 s2, 61
s_cbranch_scc1 Lm_zero
v_lshrrev_b32 v1, 3, v0
v_and_b32 v2, 7, v0                     ; 16B piece
v_mul_u32_u24 v3, 7680, v1
v_lshl_add_u32 v3, v2, 4, v3
s_lshl_b32 s3, s2, 7
v_lshlrev_b32 v4, 1, v1""")
    for i in range(20):
        a(f"buffer_load_ushort v{8+i}, v4, s[12:15], 0 offen offset:{64*i}")
    for i in range(20):
        a(f"s_add_u32 s24, s3, {i*32*7680}\nbuffer_load_dwordx4 v[{32+4*i}:{35+4*i}], v3, s[16:19], s24 offen")
    for i in range(20):
        r = 8 + i
        a(f"""v_lshlrev_b32 v{r}, 16, v{r}
v_mul_f32 v5, 0xbfb8aa3b, v{r}
v_exp_f32 v5, v5
v_add_f32 v5, 1.0, v5
v_rcp_f32 v5, v5
v_mul_f32 v{r}, v{r}, v5""")
        round_bf16(a, r, 5)
    for j in range(8): a(f"v_mov_b32 v{112+j}, 0")
    for i in range(20):
        for j in range(4):
            w = 32 + 4 * i + j
            a(f"""v_lshlrev_b32 v5, 16, v{w}
v_and_b32 v6, 0xffff0000, v{w}
v_fmac_f32 v{112+2*j}, v5, v{8+i}
v_fmac_f32 v{113+2*j}, v6, v{8+i}""")
    a(f"""v_lshlrev_b32 v5, 5, v0
ds_write_b128 v5, v[112:115]
ds_write_b128 v5, v[116:119] offset:16
s_waitcnt lgkmcnt(0)
s_barrier
v_cmp_gt_u32 vcc, 64, v0
s_and_saveexec_b64 s[26:27], vcc
s_cbranch_execz Lm_end
v_lshlrev_b32 v5, 2, v0""")
    for i in range(32): a(f"ds_read_b32 v{32+i}, v5 offset:{256*i}")
    for st in (16, 8, 4, 2, 1):
        for i in range(st): a(f"v_add_f32 v{32+i}, v{32+i}, v{32+st+i}")
    round_bf16(a, 32, 6)
    a(f"""s_mov_b32 s24, 0
s_sub_u32 s25, s2, 10
s_cmp_lt_u32 s25, 10
s_cselect_b32 s24, 1.0, s24
s_sub_u32 s25, s2, 40
s_cmp_lt_u32 s25, 10
s_cselect_b32 s24, 1.0, s24
v_add_f32 v32, s24, v32""")
    round_bf16(a, 32, 6)
    a(f"""s_lshl_b32 s3, s2, 8
buffer_store_dword v32, v5, s[20:23], s3 offen offset:{MOD_OFF}
s_endpgm""")
    a.label("Lm_cal")
    a(f"""v_cmp_eq_u32 vcc, 0, v0
s_and_saveexec_b64 s[26:27], vcc
s_cbranch_execz Lm_end
v_mov_b32 v1, {MP_OFF}
v_mov_b32 v2, 0""")
    for i in range(6):
        for hf in range(2):
            a(f"s_mov_b32 s24, {hf*8192 + i*256}\nbuffer_store_dword v2, v1, s[20:23], s24 offen sc1")
    a("s_waitcnt vmcnt(0)\ns_mov_b32 s30, -1\ns_mov_b32 s31, -1")
    for i in range(6):
        for hf in range(2):
            a(f"""s_mov_b32 s24, {hf*8192 + i*256}
s_memtime s[32:33]
s_waitcnt lgkmcnt(0)
buffer_load_dword v3, v1, s[20:23], s24 offen sc1
s_waitcnt vmcnt(0)
s_memtime s[34:35]
s_waitcnt lgkmcnt(0)
s_sub_u32 s34, s34, s32
s_min_u32 s{30+hf}, s{30+hf}, s34""")
    a(f"""s_cmp_lt_u32 s30, s31
s_cselect_b32 s24, 0, 8192
s_getreg_b32 s25, hwreg(HW_REG_XCC_ID, 0, 4)
s_and_b32 s25, s25, 4
s_lshl_b32 s25, s25, 11
s_xor_b32 s24, s24, s25
v_mov_b32 v2, s24
v_mov_b32 v1, {PAR_OFF}
buffer_store_dword v2, v1, s[20:23], 0 offen
s_endpgm""")
    a.label("Lm_zero")
    a(f"""v_lshlrev_b32 v1, 4, v0
v_mov_b32 v4, 0
v_mov_b32 v5, 0
v_mov_b32 v6, 0
v_mov_b32 v7, 0""")
    for i in range(FLAG_BYTES // 4096):
        a(f"s_mov_b32 s24, {FLAG_OFF + 4096*i}\nbuffer_store_dwordx4 v[4:7], v1, s[20:23], s24 offen")
    a.label("Lm_end")
    a("s_endpgm")
    return a.finish(), dict(vgpr=128, sgpr=40)

def ln_body(a, pfx, src_srd, src_off, mod_shift, dst_off):
    a(f"""v_lshrrev_b32 v1, 4, v0
v_and_b32 v2, 15, v0                    ; j
v_mul_u32_u24 v3, 1280, v1
v_lshl_add_u32 v3, v2, 4, v3
s_mul_i32 s3, s2, {16*1280}
s_add_u32 s3, s3, {src_off}
v_lshlrev_b32 v4, 5, v2""")
    for i in range(5):
        a(f"buffer_load_dwordx4 v[{8+4*i}:{11+4*i}], v3, s[{src_srd}:{src_srd+3}], s3 offen offset:{256*i}")
    a(f"s_mov_b32 s24, {MOD_OFF + mod_shift*2560}\ns_mov_b32 s25, {MOD_OFF + (mod_shift+1)*2560}")
    for i in range(5):
        for hf in range(2):
            a(f"buffer_load_dwordx4 v[{72+8*i+4*hf}:{75+8*i+4*hf}], v4, s[20:23], s24 offen offset:{512*i+16*hf}")
            a(f"buffer_load_dwordx4 v[{112+8*i+4*hf}:{115+8*i+4*hf}], v4, s[20:23], s25 offen offset:{512*i+16*hf}")
    for i in range(20):
        a(f"v_lshlrev_b32 v{32+2*i}, 16, v{8+i}\nv_and_b32 v{33+2*i}, 0xffff0000, v{8+i}")
    def rowsum(v):
        for sh in (8, 4, 2, 1):
            a(f"v_add_f32_dpp v{v}, v{v}, v{v} row_ror:{sh} row_mask:0xf bank_mask:0xf")
    a("v_add_f32 v5, v32, v33")
    for i in range(34, 72, 2): a(f"v_add_f32 v6, v{i}, v{i+1}\nv_add_f32 v5, v5, v6")
    rowsum(5)
    a(f"v_mul_f32 v5, {hex(f2u(1.0/640))}, v5")
    for i in range(32, 72): a(f"v_sub_f32 v{i}, v{i}, v5")
    a("v_mul_f32 v6, v32, v32")
    for i in range(33, 72): a(f"v_fmac_f32 v6, v{i}, v{i}")
    rowsum(6)
    a(f"""v_mov_b32 v7, {hex(f2u(1e-5))}
v_fmac_f32 v7, {hex(f2u(1.0/640))}, v6
v_rsq_f32 v7, v7""")
    for i in range(40): a(f"v_mul_f32 v{32+i}, v{32+i}, v7")
    for i in range(40): a(f"v_fma_f32 v{32+i}, v{32+i}, v{112+i}, v{72+i}")
    for i in range(20): a(f"v_cvt_pk_bf16_f32 v{8+i}, v{32+2*i}, v{33+2*i}")
    a(f"""v_lshrrev_b32 v5, 2, v2
v_lshlrev_b32 v5, 10, v5                ; (j>>2)*1024
v_and_b32 v6, 3, v2
v_lshl_add_u32 v5, v6, 8, v5            ; + g*256
v_lshl_add_u32 v5, v1, 4, v5            ; + n*16
s_mul_i32 s3, s2, 20480
s_add_u32 s3, s3, {dst_off}""")
    for i in range(5):
        a(f"s_add_u32 s24, s3, {4096*i}\nbuffer_store_dwordx4 v[{8+4*i}:{11+4*i}], v5, s[20:23], s24 offen")
    a("s_endpgm")

import struct
def f2u(x): return struct.unpack('<I', struct.pack('<f', x))[0]

N_INIT = 64 * 11
def gen_ln1():
    a = Asm()
    a(f"""s_cmp_ge_u32 s2, {128 + N_INIT}
s_cbranch_scc1 L1_end
s_load_dwordx4 s[4:7], s[0:1], {K_X}
s_load_dwordx2 s[8:9], s[0:1], {K_WS}
s_waitcnt lgkmcnt(0)""")
    srd(a, 12, 4, 2048 * 1280); srd(a, 16, 6, 8 * 1280); srd(a, 20, 8, WS_BYTES)
    a("s_cmp_ge_u32 s2, 128\ns_cbranch_scc1 L1_init")
    ln_body(a, "L1", 12, 0, 0, HF_OFF)
    a.label("L1_init")
    a(f"""s_load_dword s28, s[8:9], {PAR_OFF}
s_sub_u32 s3, s2, 128
s_and_b32 s24, s3, 63                   ; step
s_lshr_b32 s25, s3, 6                   ; part
v_lshlrev_b32 v1, 4, v0
v_mov_b32 v4, {hex(SENT)}
v_mov_b32 v5, v4
v_mov_b32 v6, v4
v_mov_b32 v7, v4
s_lshl_b32 s26, s24, 20
s_lshl_b32 s27, s25, 16
s_add_u32 s26, s26, s27
s_add_u32 s26, s26, {Y_OFF}
s_lshl_b32 s27, s24, 16
s_add_u32 s27, s27, {MP_OFF}
s_cmp_eq_u32 s25, 10
s_cselect_b32 s26, s27, s26
s_waitcnt lgkmcnt(0)
s_and_b32 s28, s28, 8192
s_lshr_b32 s27, s26, 8
s_and_b32 s27, s27, 8192
s_xor_b32 s27, s27, s28
s_add_u32 s26, s26, s27
s_cmp_eq_u32 s3, {64*10}
s_cbranch_scc1 L1_mem0""")
    for i in range(8):
        a(f"s_add_u32 s27, s26, {(i>>1)*16384 + (i&1)*4096}\nbuffer_store_dwordx4 v[4:7], v1, s[20:23], s27 offen")
    a("s_endpgm")
    a.label("L1_mem0")
    for i in range(3):
        a(f"""v_add_u32 v8, {256*i}, v0
v_and_b32 v9, 7, v8
v_mul_u32_u24 v9, 1280, v9
v_lshrrev_b32 v10, 3, v8
v_lshl_add_u32 v9, v10, 4, v9
v_cmp_gt_u32 vcc, 640, v8
v_cndmask_b32 v9, -1, v9, vcc
buffer_load_dwordx4 v[{12+4*i}:{15+4*i}], v9, s[16:19], 0 offen""")
    a(f"v_mov_b32 v11, 0xffc0ffc0")
    for r in range(12, 24):
        a(f"v_cmp_eq_u32 vcc, v{r}, v4\nv_cndmask_b32 v{r}, v{r}, v11, vcc")
    a("v_cmp_gt_u32 vcc, 128, v0")
    for r in range(20, 24): a(f"v_cndmask_b32 v{r}, v4, v{r}, vcc")
    for i in range(8):
        src = f"v[{12+4*i}:{15+4*i}]" if i < 3 else "v[4:7]"
        a(f"s_add_u32 s27, s26, {(i>>1)*16384 + (i&1)*4096}\nbuffer_store_dwordx4 {src}, v1, s[20:23], s27 offen")
    a.label("L1_end")
    a("s_endpgm")
    return a.finish(), dict(vgpr=160, sgpr=40)

def gen_ln2():
    a = Asm()
    a(f"""s_cmp_ge_u32 s2, 128
s_cbranch_scc1 L2_end
s_load_dwordx2 s[8:9], s[0:1], {K_WS}
s_waitcnt lgkmcnt(0)""")
    srd(a, 20, 8, WS_BYTES)
    ln_body(a, "L2", 20, X1_OFF, 3, H2_OFF)
    a.label("L2_end")
    a("s_endpgm")
    return a.finish(), dict(vgpr=160, sgpr=40)
```

```python
MB = 1 << 20
WS_BYTES = 256 * MB
MOD_OFF   = 0
PAR_OFF   = 0x8000
FLAG_OFF  = 0x10000
FLAG_BYTES = 8 * 32 * 4 * 64
STAT_OFF  = 0x40000
HF_OFF    = 1 * MB
MP_OFF    = 4 * MB
MP_STR    = 65536
PX_OFF    = 8 * MB
PXM_OFF   = 12 * MB
X1_OFF    = 13 * MB
G_OFF     = 16 * MB
KX_OFF    = 24 * MB
QX_OFF    = 48 * MB
VX_OFF    = 72 * MB
U_OFF     = 96 * MB
Y_OFF     = 176 * MB
Y_STR     = 1 * MB
H2_OFF    = 240 * MB
SENT      = 0xFF81FF81
K_X, K_MEM0, K_WQ, K_WK, K_WV, K_WO, K_SEG, K_BX, K_W1, K_B1, K_W2, K_B2, K_C, K_WMOD, K_OUT, K_DBG, K_WS = [8 * i for i in range(17)]
ROLE_K, ROLE_V, ROLE_O, ROLE_Q, ROLE_PX, ROLE_X1, ROLE_G = 0, 1, 2, 3, 4, 5, 6
```

```python
import sys
sys.path.insert(0, 'gen')
import k_prep, k_main, k_post
NAME = "adaLN_cond__memory_aug_recurrent_mem_tr__dense_activation_gelu__prompt"
ref = open(f"cdna_kernels/{NAME}.s.ref").read()
head = [l for l in ref.split('\n') if l.startswith(';') and '@launch' not in l and 'Override launch' not in l and 'grid=ceil' not in l]
KD = """.amdhsa_kernel {name}
  .amdhsa_next_free_vgpr {vgpr}
  .amdhsa_next_free_sgpr {sgpr}
  .amdhsa_accum_offset {acc}
  .amdhsa_group_segment_fixed_size 0
  .amdhsa_kernarg_size 136
  .amdhsa_user_sgpr_count 2
  .amdhsa_user_sgpr_kernarg_segment_ptr 1
  .amdhsa_system_sgpr_workgroup_id_x 1
  .amdhsa_float_denorm_mode_32 3
.end_amdhsa_kernel
"""
def build(kernels, path):
    out = list(head)
    for (name, fn, grid, lds) in kernels:
        out.append(f"; @launch kernel={name} grid=({grid},1,1) block=(256,1,1) lds={lds}")
    out.append('.amdgcn_target "amdgcn-amd-amdhsa--gfx950"\n.text')
    kds = []; seen = set()
    for (name, fn, grid, lds) in kernels:
        if name in seen: continue
        seen.add(name)
        body, info = fn()
        out.append(f".globl {name}\n.p2align 8\n.type {name},@function\n{name}:")
        out.append(body)
        acc = info.get('acc', (info['vgpr'] + 3) // 4 * 4)
        kds.append(".p2align 6\n" + KD.format(name=name, vgpr=info['vgpr'], sgpr=info['sgpr'], acc=acc))
    out.append('.section .rodata,"a"')
    out += kds
    open(path, 'w').write('\n'.join(out))
KERNELS = [
    ("mod_kernel", k_prep.gen_mod, 62, 8192),
    ("ln1_kernel", k_prep.gen_ln1, 128 + k_prep.N_INIT, 0),
    ("main_kernel", k_main.gen_main, 256, 163840),
    ("attn_kernel", k_post.gen_attn_out, 640, 32768),
    ("ln2_kernel", k_prep.gen_ln2, 128, 0),
    ("ffn1_kernel", k_post.gen_ffn1, 256, 147456),
    ("ffn2_kernel", k_post.gen_ffn2, 220, 131072),
]
if __name__ == "__main__":
    build(KERNELS, sys.argv[1] if len(sys.argv) > 1 else f"cdna_kernels/{NAME}.s")
```

```python
import re

REG_RE = re.compile(r'^(-|abs\()?\s*([vas])(\d+)\)?$')
RANGE_RE = re.compile(r'^(-)?([vas])\[(\d+):(\d+)\]$')

def regs_of(op):
    op = op.strip()
    m = RANGE_RE.match(op)
    if m:
        return {(m.group(2), i) for i in range(int(m.group(3)), int(m.group(4)) + 1)}
    m = REG_RE.match(op)
    if m:
        return {(m.group(2), int(m.group(3)))}
    if op == 'vcc': return {('s', 'vcc')}
    if op in ('vcc_lo', 'vcc_hi'): return {('s', 'vcc')}
    if op in ('exec', 'exec_lo', 'exec_hi'): return {('s', 'exec')}
    if op == 'm0': return {('s', 'm0')}
    return set()

TRANS = ('v_exp_f32', 'v_log_f32', 'v_rcp_f32', 'v_rsq_f32', 'v_sqrt_f32', 'v_sin_f32', 'v_cos_f32', 'v_rcp_iflag_f32')

class Ins:
    def __init__(self, text):
        self.text = text
        t = text.split(';')[0].strip()
        self.label = None; self.mn = None; self.ops = []; self.mods = ''
        self.kind = 'other'; self.w = set(); self.r = set()
        if not t: self.kind = 'blank'; return
        if t.endswith(':'): self.kind = 'label'; self.label = t[:-1]; return
        if t.startswith('.'): self.kind = 'directive'; return
        if t.startswith('@touch'):
            self.kind = 'touch'
            for o in t.split(None, 1)[1].split(','): self.r |= regs_of(o)
            return
        parts = t.split(None, 1)
        self.mn = parts[0]
        rest = parts[1] if len(parts) > 1 else ''
        ops = []; depth = 0; cur = ''
        for ch in rest:
            if ch in '([': depth += 1
            if ch in ')]': depth -= 1
            if ch == ',' and depth == 0: ops.append(cur.strip()); cur = ''
            else: cur += ch
        if cur.strip(): ops.append(cur.strip())
        if ops:
            last = ops[-1].split(None, 1)
            if len(last) > 1 and not ops[-1].startswith('abs(') :
                ops[-1] = last[0]; self.mods = last[1]
        self.ops = ops
        self.classify()

    def classify(self):
        mn = self.mn; ops = self.ops; R = [regs_of(o) for o in ops]
        U = lambda l: set().union(*l) if l else set()
        self.srcC = set(); self.passes = 0; self.ab = set()
        if mn.startswith('v_mfma'):
            self.kind = 'mfma'; self.w = R[0]; self.ab = R[1] | R[2]; self.srcC = R[3]; self.r = self.ab | self.srcC
            self.passes = 8 if '32x32' in mn else 4
        elif mn.startswith('v_smfmac'):
            self.kind = 'mfma'; self.w = R[0]; self.ab = R[1] | R[2] | R[3]; self.srcC = R[0]; self.r = self.ab | self.srcC
            self.passes = 8 if '32x32' in mn else 4
        elif mn.startswith('v_'):
            self.kind = 'valu'
            base = mn.replace('_e32', '').replace('_e64', '').replace('_dpp', '').replace('_sdwa', '')
            self.base = base
            if base.startswith('v_permlane') and 'swap' in base:
                self.w = R[0] | R[1]; self.r = R[0] | R[1]
            elif base.startswith('v_cmp'):
                self.w = R[0]; self.r = U(R[1:])
            elif base in ('v_add_co_u32', 'v_sub_co_u32', 'v_addc_co_u32', 'v_subb_co_u32', 'v_subrev_co_u32', 'v_div_scale_f32', 'v_mad_u64_u32'):
                self.w = R[0] | R[1]; self.r = U(R[2:])
            else:
                self.w = R[0]; self.r = U(R[1:])
                if base == 'v_swap_b32':
                    self.w = R[0] | R[1]; self.r = R[0] | R[1]
                if base in ('v_fmac_f32', 'v_writelane_b32', 'v_dot2c_f32_bf16', 'v_pk_fmac_f16') or mn.endswith('_dpp') or mn.endswith('_sdwa'):
                    self.r |= R[0]
                if base == 'v_cndmask_b32' and len(ops) == 3: self.r |= {('s', 'vcc')}
            self.dpp = mn.endswith('_dpp')
            self.trans = base in TRANS
        elif mn.startswith('ds_'):
            self.kind = 'ds'
            if mn.startswith('ds_read') or mn.startswith('ds_bpermute') or mn.startswith('ds_permute') or mn.startswith('ds_swizzle') or '_rtn' in mn:
                self.w = R[0]; self.r = U(R[1:])
            else:
                self.r = U(R)
        elif mn.startswith('buffer_') or mn.startswith('global_'):
            self.kind = 'vmem'
            lds = ('lds' in self.mods.split()) or ('load_lds' in mn)
            self.lds = lds
            if mn in ('buffer_inv', 'buffer_wbl2'):
                pass
            elif '_load' in mn and not lds:
                self.w = R[0]; self.r = U(R[1:])
            elif '_load' in mn:
                self.r = U(R) | {('s', 'm0')}
            elif 'atomic' in mn and 'sc0' in self.mods.split():
                if mn.startswith('buffer_'): self.w = R[0]; self.r = U(R)
                else: self.w = R[0]; self.r = U(R[1:])
            else:
                self.r = U(R)
            self.widestore = set()
            if '_store_dwordx4' in mn or '_store_dwordx3' in mn:
                self.widestore = R[0] if mn.startswith('buffer_') else R[1]
        elif mn.startswith('s_load') or mn.startswith('s_buffer_load') or mn in ('s_memtime', 's_memrealtime') or mn.startswith('s_atomic'):
            self.kind = 'smem'; self.w = R[0]; self.r = U(R[1:])
        elif mn == 's_waitcnt': self.kind = 'wait'
        elif mn == 's_nop': self.kind = 'nop'
        elif mn.startswith('s_cbranch') or mn == 's_branch': self.kind = 'branch'
        elif mn in ('s_barrier', 's_endpgm', 's_sleep', 's_setprio'): self.kind = 'salu0'
        elif mn.startswith('s_cmp') or mn.startswith('s_bitcmp'): self.kind = 'salu'; self.r = U(R)
        elif mn.startswith('s_'):
            self.kind = 'salu'; self.w = R[0] if R else set(); self.r = U(R[1:])
            if 'saveexec' in mn: self.w |= {('s', 'exec')}
        else:
            raise ValueError("unknown instruction: " + self.text)

    def states(self):
        if self.kind in ('label', 'blank', 'directive'): return 0
        if self.kind == 'nop': return int(self.ops[0], 0) + 1
        return 1

def vreg(s): return {x for x in s if x[0] in 'va'}
def sreg(s): return {x for x in s if x[0] == 's'}

def need(p, c):
    n = 0
    if p.kind == 'valu':
        pw = vreg(p.w); ps = sreg(p.w)
        if c.kind == 'mfma' and pw & c.r: n = max(n, 2)
        if c.kind == 'valu':
            if c.base.startswith('v_permlane') and pw & c.r: n = max(n, 2)
            if c.dpp and pw & c.r: n = max(n, 2)
            if c.base in ('v_readlane_b32', 'v_readfirstlane_b32') and pw & c.r: n = max(n, 1)
            if p.trans and not c.trans and pw & c.r: n = max(n, 1)
            if p.mn.endswith('_sdwa') and pw & (c.r | c.w): n = max(n, 1)
            if ps & c.r:
                n = max(n, 4 if c.base in ('v_readlane_b32', 'v_writelane_b32') else 2)
        if c.kind == 'vmem' and ps & c.r: n = max(n, 5)
        if p.trans and c.kind in ('ds', 'vmem', 'mfma') and pw & c.r: n = max(n, 2 if c.kind == 'mfma' else 1)
    if p.kind == 'mfma':
        P = p.passes
        if c.kind == 'mfma':
            if p.w & c.ab: n = max(n, P + 4)
            if p.w & c.srcC:
                if not (c.srcC == p.w and c.passes == P): n = max(n, P + 2)
            elif p.w & c.w: n = max(n, P + 4)
        elif c.kind in ('valu', 'ds', 'vmem'):
            if p.w & (c.r | c.w): n = max(n, P + 4)
        if c.kind == 'valu' and p.srcC & c.w: n = max(n, P - 1)
        if c.kind in ('ds', 'vmem') and p.srcC & c.w: n = max(n, P - 1)
    if p.kind == 'salu' and ('s', 'm0') in p.w:
        if (c.kind == 'vmem' and getattr(c, 'lds', False)) or (c.kind == 'valu' and ('s', 'm0') in c.r): n = max(n, 1)
    if p.kind == 'vmem' and p.widestore:
        if c.kind == 'valu' and p.widestore & c.w: n = max(n, 2)
        elif c.kind in ('ds', 'vmem', 'mfma') and p.widestore & c.w: n = max(n, 1)
    return n

def pad_needed(prev, c):
    real = [p for p in prev if p.kind not in ('label', 'blank', 'directive')][-24:]
    worst = 0
    for i, p in enumerate(real):
        n = need(p, c)
        if n <= 0: continue
        t = 0; lastm = (0, p.passes) if p.kind == 'mfma' else None
        cur = p
        for x in real[i+1:] + [c]:
            t += cur.states()
            tplain = t
            if x.kind == 'mfma':
                if lastm is not None: t = max(t, lastm[0] + lastm[1])
                lastm = (t, x.passes)
            cur = x
        if t < n + 1: worst = max(worst, n + 1 - tplain)
    return worst

def nops(n):
    out = []
    while n > 0:
        k = min(n, 16); out.append(Ins(f"  s_nop {k-1}")); n -= k
    return out

class Asm:
    def __init__(self):
        self.lines = []
    def __call__(self, text):
        for l in text.split('\n'):
            if l.strip(): self.lines.append(l if l.startswith(' ') or l.rstrip().endswith(':') or l.startswith('.') or l.startswith(';') else '  ' + l)
    def label(self, name): self.lines.append(name + ':')

    def finish(self):
        ins = [Ins(l) for l in self.lines]
        ins = self.autowait(ins)
        ins = self.hazards(ins)
        return '\n'.join(i.text for i in ins) + '\n'

    @staticmethod
    def autowait(ins):
        out = []; vm = []; lg = []
        smem = False
        for c in ins:
            if c.kind == 'label':
                vm = [(d, True) for d, f in vm]; lg = [(d, True) for d, f in lg]
                out.append(c); continue
            if c.kind == 'wait':
                m = re.search(r'vmcnt\((\d+)\)', c.text)
                if m:
                    n = int(m.group(1)); vm = vm[len(vm) - n:] if n < len(vm) else vm
                    if n == 0: vm = []
                m = re.search(r'lgkmcnt\((\d+)\)', c.text)
                if m:
                    n = int(m.group(1)); lg = lg[len(lg) - n:] if n < len(lg) else lg
                    if n == 0: lg = []; smem = False
                out.append(c); continue
            touch = c.r | c.w
            wv = wl = None
            for q, name in ((vm, 'vm'), (lg, 'lg')):
                idx = -1
                for i, (d, f) in enumerate(q):
                    if d & touch: idx = i
                if idx >= 0:
                    if q[idx][1]:
                        raise ValueError("dependence on a load issued before a label needs a manual wait: " + c.text)
                    n = len(q) - 1 - idx
                    if name == 'vm': wv = min(n, 63)
                    else: wl = 0 if smem else min(n, 15)
            if wv is not None or wl is not None:
                t = "  s_waitcnt" + (f" vmcnt({wv})" if wv is not None else "") + (f" lgkmcnt({wl})" if wl is not None else "")
                out.append(Ins(t))
                if wv is not None: vm = vm[len(vm) - wv:] if wv else []
                if wl is not None:
                    lg = lg[len(lg) - wl:] if wl else []
                    if wl == 0: smem = False
            if c.kind == 'touch': continue
            if c.kind == 'vmem': vm.append((set(c.w), False))
            elif c.kind == 'ds': lg.append((set(c.w), False))
            elif c.kind == 'smem': lg.append((set(c.w), False)); smem = True
            if c.kind == 'branch' and c.mn == 's_branch' or c.mn == 's_endpgm':
                vm = []; lg = []; smem = False
            out.append(c)
        return out

    @staticmethod
    def hazards(ins):
        out = []
        for c in ins:
            if c.kind not in ('label', 'blank', 'directive'):
                hist = []
                for p in reversed(out[-60:]):
                    if p.mn in ('s_branch', 's_endpgm'): break
                    hist.append(p)
                hist.reverse()
                k = pad_needed(hist, c)
                if k > 0: out += nops(k)
            out.append(c)
        changed = True
        while changed:
            changed = False
            pos = {c.label: i for i, c in enumerate(out) if c.kind == 'label'}
            for i, c in enumerate(out):
                if c.kind == 'branch' and c.ops[0] in pos:
                    hist = []
                    for p in reversed(out[max(0, i - 60):i]):
                        if p.mn in ('s_branch', 's_endpgm'): break
                        hist.append(p)
                    hist.reverse(); hist.append(c)
                    j = pos[c.ops[0]]; worst = 0; d = 0
                    seq = list(hist)
                    while j < len(out) and d < 20:
                        x = out[j]
                        if x.kind not in ('label', 'blank', 'directive'):
                            worst = max(worst, pad_needed(seq, x)); d += x.states()
                        seq.append(x)
                        if x.mn in ('s_branch', 's_endpgm'): break
                        j += 1
                    if worst > 0:
                        out[i:i] = nops(worst); changed = True; break
        return out
```

```python
from asmgen import Asm
from layout import *
from k_prep import srd, f2u
import math

import os
STAMP = bool(os.environ.get('STAMP'))
ST_OFF = 244 * MB
def stamp(a, i):
    if STAMP: a(f"s_memrealtime s[{76+2*i}:{77+2*i}]")
def stamp_flush(a, n, row_s=None, row=None, tmp=15):
    if not STAMP: return
    a("s_waitcnt lgkmcnt(0)\ns_lshl_b32 s92, s16, 2\ns_add_u32 s92, s92, s17\ns_mul_i32 s92, s92, 66")
    a(f"s_add_u32 s92, s92, s{row_s}" if row_s is not None else f"s_add_u32 s92, s92, {row}")
    a(f"s_lshl_b32 s92, s92, 5\ns_add_u32 s92, s92, {ST_OFF}\ns_mov_b64 exec, 1")
    for i in range(n): a(f"v_mov_b32 v{tmp}, s{76+2*i}\nbuffer_store_dword v{tmp}, off, s[4:7], s92 offset:{4*i}")
    a("s_mov_b64 exec, -1")
SLOT = 24576
SPIN_MAX = 200000

def R(kind, i, n=1):
    return f"{kind}{i}" if n == 1 else f"{kind}[{i}:{i+n-1}]"

def lane_decomp(a):
    a("""v_and_b32 v1, 63, v0
v_lshrrev_b32 v2, 4, v1
v_and_b32 v3, 15, v1""")

def loader(a, stages, shift, tmp, stampload=False):
    vW = {}; need = {(s['kind'], s['style'], s['stride']) for s in stages}
    t = tmp
    rho, pi, swz, x, y = t, t + 1, t + 2, t + 3, t + 4
    a(f"""v_lshrrev_b32 v{rho}, 3, v1
v_and_b32 v{pi}, 7, v1
v_lshrrev_b32 v{x}, 1, v{pi}
v_lshrrev_b32 v{y}, 1, v{rho}
v_xor_b32 v{x}, v{x}, v{y}
v_lshlrev_b32 v{swz}, 5, v{x}
v_and_b32 v{x}, 1, v{pi}
v_lshl_add_u32 v{swz}, v{x}, 4, v{swz}""")
    nxt = t + 5
    for key in sorted(need):
        kind, style, stride = key
        v = nxt; nxt += 1; vW[key] = v
        if style == 'nat':
            a(f"v_lshrrev_b32 v{x}, 2, v{rho}\nv_and_b32 v{y}, 3, v{rho}\nv_lshl_add_u32 v{v}, v{x}, 3, v{y}")
        elif style == 'sp':
            a(f"v_bfe_u32 v{x}, v{rho}, 1, 1\nv_lshlrev_b32 v{v}, 3, v{x}\nv_lshrrev_b32 v{x}, 2, v{rho}\nv_lshl_add_u32 v{v}, v{x}, 2, v{v}\nv_and_b32 v{x}, 1, v{rho}\nv_add_u32 v{v}, v{v}, v{x}")
        else:
            a(f"v_mov_b32 v{v}, v{rho}")
        if kind == 'W':
            if style == 'lin':
                a(f"s_lshl_b32 s22, s17, 4")
            else:
                a(f"s_lshr_b32 s22, s17, 1\ns_lshl_b32 s22, s22, 5\ns_and_b32 s23, s17, 1\ns_lshl_b32 s23, s23, {2 if style == 'nat' else 1}\ns_add_u32 s22, s22, s23")
            a(f"v_add_u32 v{v}, s22, v{v}\ns_mov_b32 s22, {stride}\nv_mul_lo_u32 v{v}, v{v}, s22\nv_add_u32 v{v}, v{v}, v{swz}")
        else:
            a(f"s_and_b32 s22, s17, 1\ns_lshl_b32 s22, s22, {3 if style == 'lin' else 4}\nv_add_u32 v{v}, s22, v{v}\ns_mov_b32 s22, {stride}\nv_mul_lo_u32 v{v}, v{v}, s22\nv_add_u32 v{v}, v{v}, v{swz}")
            a(f"s_lshr_b32 s22, s17, 1\ns_mul_i32 s22, s22, 640\nv_add_u32 v{v}, s22, v{v}")
    a("s_mul_i32 s24, s17, 6144\ns_and_b32 s25, s17, 1\ns_mul_i32 s25, s25, 10240\ns_lshr_b32 s22, s17, 1\ns_mul_i32 s22, s22, 5120\ns_add_u32 s25, s25, s22")
    kinds = {s['kind'] for s in stages}
    aW = aO = None
    rr, cc = rho, pi
    a(f"""v_bfe_u32 v{rr}, v1, 2, 3               ; 4*(g&1) + r
v_and_b32 v{cc}, 3, v1
v_lshlrev_b32 v{cc}, 3, v{cc}
v_lshl_add_u32 v{cc}, v{rr}, 7, v{cc}      ; rho*128 + c*8
v_lshrrev_b32 v{rr}, 1, v{rr}              ; rho>>1
v_lshrrev_b32 v{y}, 5, v1                 ; gh""")
    def tile_addrs(n, ghmul):
        nonlocal nxt
        base = nxt; nxt += n
        for tt in range(n):
            a(f"""s_mul_i32 s22, s17, {n}
s_add_u32 s22, s22, {tt}
s_and_b32 s23, s22, 3
s_lshr_b32 s22, s22, 2
s_lshl_b32 s22, s22, 10
v_xor_b32 v{x}, s23, v{rr}
v_lshl_add_u32 v{base+tt}, v{x}, 5, v{cc}
v_add_u32 v{base+tt}, s22, v{base+tt}
v_mul_u32_u24 v{x}, {ghmul}, v{y}
v_add_u32 v{base+tt}, v{base+tt}, v{x}""")
        return base
    if 'W' in kinds: aW = tile_addrs(3, 3072)
    if 'O' in kinds: aO = tile_addrs(10, 10240)
    cur = nxt; nxt += 10
    assert nxt <= tmp + 34, nxt - tmp
    cnt = [6 if s['kind'] == 'W' else 5 for s in stages]
    def issue(n):
        s = stages[n]; slot = ((n + shift) % 6) * SLOT
        v = vW[(s['kind'], s['style'], s['stride'])]
        for i in range(cnt[n]):
            if s['kind'] == 'W':
                gh, cb = divmod(i, 3)
                rows = s['row0'] + (8 if s['style'] == 'lin' else 16) * gh
                off = rows * s['stride'] + cb * 128
                a(f"s_add_u32 m0, s24, {slot + i*1024}")
            else:
                off = s['row0'] * s['stride'] + i * 128
                a(f"s_add_u32 m0, s25, {slot + i*1024}")
            a(f"s_add_u32 s26, s{s['col']}, {off}\nbuffer_load_dwordx4 v{v}, s[{s['srd']}:{s['srd']+3}], s26 offen lds")
    N = len(stages)
    for n in range(min(5, N)): issue(n)
    for n in range(N):
        s = stages[n]
        if s['dests'] is None and all(x['dests'] is None for x in stages[n:]) and n + 5 >= N:
            break
        later = sum(cnt[n+1:min(n+5, N)])
        a(f"s_waitcnt vmcnt({later})\ns_barrier")
        if n + 5 < N: issue(n + 5)
        if s['dests'] is None: continue
        slot = ((n + shift) % 6) * SLOT
        nt = 3 if s['kind'] == 'W' else 10
        base = aW if s['kind'] == 'W' else aO
        for tt in range(nt): a(f"v_add_u32 v{cur+tt}, {slot}, v{base+tt}")
        for tt in range(nt):
            for q in range(4 if s['kind'] == 'W' else 1):
                k, r = s['dests'](tt, q)
                a(f"ds_read_b64_tr_b16 {R(k, r, 2)}, v{cur+tt} offset:{q*6144}")
        a("s_waitcnt lgkmcnt(0)")
    a("s_waitcnt vmcnt(0)\ns_barrier")
    res = [n for n in range(N) if stages[n]['dests'] is None]
    if res:
        fb = tmp + 36
        a(f"s_mul_i32 s22, s17, 6144\nv_lshlrev_b32 v{x}, 4, v1\nv_add_u32 v{x}, s22, v{x}")
        for n in res:
            slot = ((n + shift) % 6) * SLOT
            for tt in range(3): a(f"v_add_u32 v{cur+tt}, {slot}, v{aW+tt}")
            a(f"v_add_u32 v{cur+3}, {slot}, v{x}")
            for tt in range(3):
                for q in range(4): a(f"ds_read_b64_tr_b16 v[{fb+8*tt+2*q}:{fb+8*tt+2*q+1}], v{cur+tt} offset:{q*6144}")
            a("s_waitcnt lgkmcnt(0)\ns_barrier")
            for j in range(6): a(f"ds_write_b128 v{cur+3}, v[{fb+4*j}:{fb+4*j+3}] offset:{j*1024}")
            a("s_waitcnt lgkmcnt(0)")
    if STAMP and stampload:
        stamp(a, 1); a("s_memtime s[80:81]"); stamp_flush(a, 3, row=64, tmp=tmp); a("s_waitcnt vmcnt(0)")
    return aW

def spin_guard(a, s):
    a(f"s_add_u32 s{s}, s{s}, 1\ns_cmp_gt_u32 s{s}, {SPIN_MAX}\ns_cbranch_scc1 L_exit")

def flag_addr(a, dst_s, role, head_s, wave_s=None):
    a(f"s_lshl_b32 s{dst_s}, s{head_s}, 8\ns_add_u32 s{dst_s}, s{dst_s}, {FLAG_OFF + role*32*256}")
    if wave_s is not None:
        a(f"s_lshl_b32 s22, s{wave_s}, 6\ns_add_u32 s{dst_s}, s{dst_s}, s22")

def proj_loop(a, pfx, src_off, seg0_s, nseg, out_base_s, sc, epilogue, flag_s=None, segstride=32*12288):
    HS = 40960
    a(f"""v_lshlrev_b32 v4, 4, v1                 ; lane*16
s_mul_i32 s22, s17, 10240
v_add_u32 v5, s22, v4
v_mov_b32 v6, 0
s_mov_b32 s28, 0
s_mov_b32 s29, {HS}                     ; next
s_mov_b32 s30, {2*HS}                   ; next-next""")
    def dma(seg_s, slot_s):
        a(f"s_min_u32 s23, s{seg_s}, 63\ns_mul_i32 s23, s23, {HS}\ns_add_u32 s23, s23, {src_off}\ns_mul_i32 s22, s17, 10240\ns_add_u32 s22, s22, s{slot_s}")
        for i in range(10):
            if i % 4 == 0:
                a(f"s_add_u32 m0, s22, {i*1024}\ns_add_u32 s26, s23, {i*1024}")
            a(f"buffer_load_dwordx4 v5, s[4:7], s26 offen offset:{(i%4)*1024} lds")
    dma(20, 28)
    a("s_add_u32 s31, s20, 1"); dma(31, 29)
    a("s_waitcnt vmcnt(10)")
    a.label(pfx + "_loop")
    a("s_barrier\ns_add_u32 s31, s20, 2")
    dma(31, 30)
    a("v_add_u32 v7, s28, v4")
    B = 16; ACC = 48
    def rd(kk):
        b = B + 8 * (kk % 3)
        a(f"ds_read_b128 v[{b}:{b+3}], v7 offset:{kk*1024}\nds_read_b128 v[{b+4}:{b+7}], v7 offset:{(20+kk)*1024}")
    rd(0); rd(1)
    for kk in range(20):
        if kk + 2 < 20: rd(kk + 2)
        b = B + 8 * (kk % 3)
        for tt in range(2):
            for t in range(3):
                acc = ACC + 8 * t + 4 * tt
                c = "0" if kk == 0 else f"v[{acc}:{acc+3}]"
                a(f"v_mfma_f32_16x16x32_bf16 v[{acc}:{acc+3}], a[{(kk*3+t)*4}:{(kk*3+t)*4+3}], v[{b+4*tt}:{b+4*tt+3}], {c}")
        if kk == 10:
            a("s_waitcnt vmcnt(10)")
            if flag_s is not None:
                a(f"v_mov_b32 v8, s20\ns_mov_b64 exec, 1\nbuffer_store_dword v8, v6, s[4:7], s{flag_s} offen sc1\ns_mov_b64 exec, -1")
    epilogue(a, ACC)
    a(f"s_mul_i32 s23, s20, {segstride}\ns_add_u32 s23, s23, s{out_base_s}")
    for t in range(3):
        o = 72 + 4 * t; acc = ACC + 8 * t
        for j in range(4): a(f"v_cvt_pk_bf16_f32 v{o+j}, v{acc+2*j}, v{acc+2*j+1}")
        a(f"buffer_store_dwordx4 v[{o}:{o+3}], v4, s[4:7], s23 offen offset:{t*1024} {sc}")
    a(f"""s_mov_b32 s22, s28
s_mov_b32 s28, s29
s_mov_b32 s29, s30
s_mov_b32 s30, s22
s_add_u32 s20, s20, 1
s_cmp_lt_u32 s20, s21
s_cbranch_scc1 {pfx}_loop
s_waitcnt vmcnt(0)""")
    if flag_s is not None:
        a(f"v_mov_b32 v8, s20\ns_mov_b64 exec, 1\nbuffer_store_dword v8, v6, s[4:7], s{flag_s} offen sc1\ns_mov_b64 exec, -1")

def proj_stream(a, pfx, src_off, out_base_s, flag_s):
    HS = 40960
    a(f"""v_lshlrev_b32 v4, 4, v1                 ; lane*16
s_mul_i32 s42, s17, 10240
v_add_u32 v5, s42, v4
v_mov_b32 v6, 0""")
    def dma_ops(seg_s, slot_s):
        ops = [[f"s_min_u32 s23, s{seg_s}, 63", f"s_mul_i32 s23, s23, {HS}", f"s_add_u32 s23, s23, {src_off}", f"s_add_u32 s22, s42, s{slot_s}"]]
        for i in range(10):
            o = []
            if i % 4 == 0: o += [f"s_add_u32 m0, s22, {i*1024}", f"s_add_u32 s26, s23, {i*1024}"]
            o.append(f"buffer_load_dwordx4 v5, s[4:7], s26 offen offset:{(i%4)*1024} lds")
            ops.append(o)
        return ops
    for j in range(3):
        a(f"s_mov_b32 s31, {j}\ns_mov_b32 s30, {j*HS}")
        for o in dma_ops(31, 30):
            for x in o: a(x)
    B = 16; ACCS = (48, 72); O = 96
    def rd(kk, ad):
        b = B + 8 * (kk % 4)
        return [f"ds_read_b128 v[{b}:{b+3}], v{ad} offset:{(kk%20)*1024}", f"ds_read_b128 v[{b+4}:{b+7}], v{ad} offset:{(20+kk%20)*1024}"]
    a(f"""s_mov_b32 s28, 0
s_mov_b32 s43, s{out_base_s}
v_mov_b32 v7, v4
s_waitcnt vmcnt(20)
s_barrier""")
    for x in rd(0, 7) + rd(1, 7): a(x)
    a("s_waitcnt lgkmcnt(0)")
    def epi_ops(acc):
        ops = []
        for t in range(3):
            o = O + 4 * t
            for j in range(4): ops.append(f"v_cvt_pk_bf16_f32 v{o+j}, v{acc+8*t+2*j}, v{acc+8*t+2*j+1}")
            ops.append(f"buffer_store_dwordx4 v[{o}:{o+3}], v4, s[4:7], s43 offen offset:{t*1024} sc1")
        return ops
    def body(par, first):
        acc = ACCS[par]; cur = 7 + par; nxt = 8 - par
        slots = []
        for kk in range(20):
            b = B + 8 * (kk % 4)
            for tt in range(2):
                for t in range(3):
                    d = acc + 8 * t + 4 * tt
                    c = "0" if kk == 0 else f"v[{d}:{d+3}]"
                    slots.append([f"v_mfma_f32_16x16x32_bf16 v[{d}:{d+3}], a[{(kk*3+t)*4}:{(kk*3+t)*4+3}], v[{b+4*tt}:{b+4*tt+3}], {c}", []])
        for kk in range(20):
            r = rd(kk + 2, cur if kk + 2 < 20 else nxt)
            slots[6*kk][1].append(r[0]); slots[6*kk + 1][1].append(r[1])
        if not first:
            for j, x in enumerate(epi_ops(ACCS[1 - par])): slots[3 + 2*j][1].append(x)
            slots[32][1].append(f"s_add_u32 s43, s43, {32*12288}")
        nst = 0 if first else 3
        slots[33][1] += [f"s_add_u32 s29, s28, {HS}", f"s_cmp_eq_u32 s29, {4*HS}", "s_cselect_b32 s29, 0, s29"]
        slots[34][1] += [f"v_add_u32 v{nxt}, s29, v4", "v_mov_b32 v9, s20"]
        slots[35][1] += [f"s_waitcnt vmcnt({10 + nst})", "s_barrier"]
        slots[38][1] += [f"s_add_u32 s30, s28, {3*HS}", f"s_sub_u32 s31, s30, {4*HS}", f"s_cmp_ge_u32 s30, {4*HS}"]
        slots[39][1] += ["s_cselect_b32 s30, s31, s30", "s_add_u32 s31, s20, 3"]
        ops = dma_ops(31, 30)
        slots[40][1] += ops[0][:2]; slots[41][1] += ops[0][2:]
        for i in range(10): slots[(44, 47, 51, 56, 59, 63, 68, 71, 75, 80)[i]][1] += ops[1 + i]
        return slots
    def flag(n):
        return [f"s_waitcnt vmcnt({n})", "s_mov_b64 exec, 1", f"buffer_store_dword v9, v6, s[4:7], s{flag_s} offen sc1", "s_mov_b64 exec, -1"]
    def emit(par, first):
        sl = body(par, first)
        if not first: sl[93][1] += flag(10)
        for mf, fl in sl:
            a(mf)
            fl = sorted(fl, key=lambda x: 1 if x.startswith('v_') else 0)
            for f in fl: a(f)
        a("s_mov_b32 s28, s29\ns_add_u32 s20, s20, 1")
    emit(0, True)
    a("s_waitcnt lgkmcnt(0)")
    a.label(pfx + "_loop")
    emit(1, False)
    a(f"s_cmp_eq_u32 s20, 64\ns_cbranch_scc1 {pfx}_fin")
    emit(0, False)
    a(f"s_waitcnt lgkmcnt(0)\ns_branch {pfx}_loop")
    a.label(pfx + "_fin")
    for x in epi_ops(ACCS[1]): a(x)
    a("v_mov_b32 v9, s20")
    for x in flag(0): a(x)
    a("s_waitcnt vmcnt(0) lgkmcnt(0)\ns_barrier")

def w_stages(srd_, stride, col, style, dest_fn, n=10, resident=()):
    st = []
    for c in range(n):
        st.append(dict(kind='W', srd=srd_, stride=stride, col=col, style=style, row0=64 * c,
                       dests=None if c in resident else (lambda t, q, c=c: dest_fn(c, t, q))))
    return st

def role_proj(a):
    a.label("L_proj")
    a("s_mul_i32 s32, s18, 384")
    loader(a, w_stages(8, 12288, 32, 'nat', lambda c, t, q: ('a', ((2*c + (q >> 1)) * 3 + t) * 4 + 2 * (q & 1))), 0, 16, True)
    a(f"""s_mov_b32 s33, {KX_OFF}
s_cmp_eq_u32 s27, {ROLE_V}
s_cselect_b32 s33, {VX_OFF}, s33
s_cmp_eq_u32 s27, {ROLE_Q}
s_cselect_b32 s33, {QX_OFF}, s33
s_mul_i32 s22, s18, 12288
s_add_u32 s33, s33, s22
s_mul_i32 s22, s17, 3072
s_add_u32 s33, s33, s22
s_lshl_b32 s34, s27, 13
s_lshl_b32 s22, s18, 8
s_add_u32 s34, s34, s22
s_lshl_b32 s22, s17, 6
s_add_u32 s34, s34, s22
s_add_u32 s34, s34, {FLAG_OFF}
s_mov_b32 s20, 0
s_mov_b32 s21, 64""")
    proj_stream(a, "L_proj", HF_OFF, 33, 34)
    stamp(a, 0)
    if STAMP: a("s_memtime s[78:79]")
    stamp_flush(a, 2, row=65)
    if STAMP: a("s_waitcnt vmcnt(0)")
    a(f"""s_cmp_eq_u32 s27, {ROLE_K}
s_cbranch_scc1 L_F1
s_add_u32 s18, s18, 32
s_cmp_eq_u32 s27, {ROLE_V}
s_cbranch_scc1 L_F1
s_sub_u32 s18, s18, 32
s_cmp_lt_u32 s18, 30
s_cbranch_scc1 L_F2
s_endpgm""")

def role_oworker(a):
    a.label("L_ow")
    a("s_mul_i32 s32, s18, 245760")
    st = [dict(kind='O', srd=8, stride=1280, col=32, style='lin', row0=16 * q,
               dests=(lambda t, qq, q=q: ('a', (t * 6 + (q >> 1)) * 4 + 2 * (q & 1)))) for q in range(12)]
    loader(a, st, 0, 16, True)
    flag_addr(a, 34, ROLE_O, 18, 17)
    flag_addr(a, 35, ROLE_V, 18)
    a(f"""v_lshlrev_b32 v4, 4, v1                 ; lane*16
v_and_b32 v5, 3, v1
v_lshlrev_b32 v5, 6, v5
v_mov_b32 v6, 0
s_mul_i32 s36, s18, 12288
s_mul_i32 s22, s17, 3072
s_add_u32 s36, s36, s22
s_add_u32 s36, s36, {VX_OFF}
s_lshl_b32 s37, s18, 10
s_mul_i32 s22, s17, {10*32768}
s_add_u32 s37, s37, s22
s_add_u32 s37, s37, {U_OFF}
s_mul_i32 s38, s17, 3072
s_mov_b32 s28, 0
s_mov_b32 s29, 12288
s_mov_b32 s20, 0
s_mov_b32 s39, 0""")
    def waitflag(lbl, need_s):
        a.label(lbl)
        a(f"buffer_load_dword v9, v5, s[4:7], s35 offen sc1")
        spin_guard(a, 39)
        a(f"s_waitcnt vmcnt(0)\nv_cmp_gt_u32 vcc, s{need_s}, v9\ns_cbranch_vccnz {lbl}")
    def dma(seg_s, slot_s):
        a(f"s_min_u32 s23, s{seg_s}, 63\ns_mul_i32 s23, s23, {32*12288}\ns_add_u32 s23, s23, s36\ns_add_u32 m0, s38, s{slot_s}")
        for i in range(3): a(f"buffer_load_dwordx4 v4, s[4:7], s23 offen offset:{i*1024} sc1 lds")
    a("s_mov_b32 s31, 1")
    waitflag("L_ow_w0", 31)
    a("s_mov_b32 s31, 0\ns_mov_b32 s30, 0"); dma(31, 30)
    a("s_waitcnt vmcnt(0)\ns_barrier")
    AS = (16, 64)
    ACC = 112; OB = 128
    def aread(A0, ad):
        return [f"ds_read2_b64 v[{A0+8*p+4*tt}:{A0+8*p+4*tt+3}], v{ad+p} offset0:{tt} offset1:{128+tt}" for p in range(6) for tt in range(2)]
    AD = 140
    for p in range(6): a(f"v_add_u32 v{AD+p}, {2048*p}, v4")
    for x in aread(AS[0], AD): a(x)
    a("s_mov_b32 s31, 2")
    waitflag("L_ow_w1", 31)
    a("s_mov_b32 s31, 1\ns_mov_b32 s30, 12288"); dma(31, 30)
    a(f"s_mov_b32 s28, 12288\ns_mov_b32 s43, s37\ns_waitcnt lgkmcnt(0)")
    def epi(t):
        acc = ACC + 8 * (t % 2); o = OB + 4 * (t % 2)
        return [f"v_cvt_pk_bf16_f32 v{o}, v{acc}, v{acc+1}", f"v_cvt_pk_bf16_f32 v{o+1}, v{acc+4}, v{acc+5}",
                f"v_cvt_pk_bf16_f32 v{o+2}, v{acc+2}, v{acc+3}", f"v_cvt_pk_bf16_f32 v{o+3}, v{acc+6}, v{acc+7}",
                f"buffer_store_dwordx4 v[{o}:{o+3}], v4, s[4:7], s43 offen sc1", "s_add_u32 s43, s43, 32768"]
    def emit(par, first):
        A0 = AS[par]
        slots = []
        for t in range(10):
            acc = ACC + 8 * (t % 2)
            for p in range(6):
                for tt in range(2):
                    c = "0" if p == 0 else f"v[{acc+4*tt}:{acc+4*tt+3}]"
                    slots.append([f"v_mfma_f32_16x16x32_bf16 v[{acc+4*tt}:{acc+4*tt+3}], v[{A0+8*p+4*tt}:{A0+8*p+4*tt+3}], a[{(t*6+p)*4}:{(t*6+p)*4+3}], {c}", []])
        for t in range(10):
            if t == 0 and first: continue
            e = epi((t - 1) % 10)
            for jj in range(4): slots[12*t + 2 + jj][1].append(e[jj])
            slots[12*t + 7][1].append(e[4]); slots[12*t + 8][1].append(e[5])
        if not first: slots[9][1].append(f"s_add_u32 s43, s43, {30*32768}")
        slots[10][1] += ["buffer_load_dword v9, v5, s[4:7], s35 offen sc1", "s_add_u32 s31, s20, 3", "s_min_u32 s31, s31, 64"]
        slots[58][1] += ["v_mov_b32 v8, s20"]
        for p in range(6): slots[48 + p][1].append(f"v_add_u32 v{AD+p}, s{46+p}, v4")
        for p in range(6): slots[36 + p][1].append(f"s_add_u32 s{46+p}, s28, {2048*p}")
        lbl = f"L_ow_x{par}{int(first)}"
        def out(lo, hi):
            for mf, fl in slots[lo:hi]:
                a(mf)
                for f in sorted(fl, key=lambda x: 1 if x.startswith('v_') else 0): a(f)
        out(0, 60)
        a("s_waitcnt vmcnt(4)\ns_barrier")
        if not first: a("s_mov_b64 exec, 1\nbuffer_store_dword v8, v6, s[4:7], s34 offen sc1\ns_mov_b64 exec, -1")
        a(f"v_cmp_gt_u32 vcc, s31, v9\ns_cbranch_vccz {lbl}_go")
        waitflag(lbl, 31)
        a.label(lbl + "_go")
        a("s_add_u32 s30, s28, 12288\ns_cmp_eq_u32 s30, 36864\ns_cselect_b32 s30, 0, s30\ns_add_u32 s31, s20, 2")
        for k, x in enumerate(aread(AS[1 - par], AD)): slots[72 + 3*k][1].insert(0, x)
        d = [f"s_min_u32 s23, s31, 63", f"s_mul_i32 s23, s23, {32*12288}", "s_add_u32 s23, s23, s36", "s_add_u32 m0, s38, s30"]
        slots[60][1] += d[:2]; slots[61][1] += d[2:]
        for i in range(3): slots[(66, 69, 70)[i]][1].append(f"buffer_load_dwordx4 v4, s[4:7], s23 offen offset:{i*1024} sc1 lds")
        out(60, 120)
        a("s_mov_b32 s28, s30\ns_add_u32 s20, s20, 1\ns_waitcnt lgkmcnt(0)")
    emit(0, True)
    a.label("L_ow_loop")
    emit(1, False)
    a("s_cmp_eq_u32 s20, 64\ns_cbranch_scc1 L_ow_fin")
    emit(0, False)
    a("s_branch L_ow_loop")
    a.label("L_ow_fin")
    for x in epi(9): a(x)
    a("""s_waitcnt vmcnt(0)
v_mov_b32 v8, s20
s_mov_b64 exec, 1
buffer_store_dword v8, v6, s[4:7], s34 offen sc1
s_mov_b64 exec, -1
s_barrier""")
    stamp(a, 0)
    if STAMP: a("s_memtime s[78:79]")
    stamp_flush(a, 2, row=65)
    a("""s_add_u32 s18, s18, 30
s_cmp_lt_u32 s18, 60
s_cbranch_scc1 L_F2
s_endpgm""")

def remap(a, v, t):
    a(f"v_lshrrev_b32 v{t}, 13, v{v}\nv_and_b32 v{v}, 8191, v{v}\nv_lshl_add_u32 v{v}, v{t}, 14, v{v}")

def span_off(a, dst, step_s, plus, base, shift):
    a(f"s_add_u32 s{dst}, s{step_s}, {plus}\ns_lshl_b32 s{dst}, s{dst}, {shift}\ns_add_u32 s{dst}, s{dst}, {base}\ns_lshr_b32 s22, s{dst}, 8\ns_and_b32 s22, s22, 8192\ns_xor_b32 s22, s22, s19\ns_add_u32 s{dst}, s{dst}, s22")

def idx_reg(a, v):
    a(f"v_and_b32 v{v}, 8, v1\nv_cmp_eq_u32 vcc, 0, v{v}\nv_mov_b32 v{v}, 0xeeee\nv_mov_b32 v{v+1}, 0x4444\nv_cndmask_b32 v{v}, v{v}, v{v+1}, vcc")

def check(a, regs, acc):
    regs = list(regs)
    first = True
    while regs:
        if first:
            x = regs[:3]; regs = regs[3:]; a(f"v_max3_u32 v{acc}, v{x[0]}, v{x[1]}, v{x[2]}"); first = False
        elif len(regs) >= 2:
            x = regs[:2]; regs = regs[2:]; a(f"v_max3_u32 v{acc}, v{acc}, v{x[0]}, v{x[1]}")
        else:
            a(f"v_max_u32 v{acc}, v{acc}, v{regs[0]}"); regs = []

MEMLDS = 6 * SLOT
def mem_poll_setup(a, vA):
    a(f"""s_mul_i32 s22, s17, 2560
v_lshlrev_b32 v{vA}, 4, v1
v_add_u32 v{vA}, s22, v{vA}
v_add_u32 v{vA+3}, {MEMLDS}, v{vA}
v_add_u32 v{vA+1}, 1024, v{vA}
v_and_b32 v{vA+2}, 31, v1
v_lshlrev_b32 v{vA+2}, 4, v{vA+2}
v_add_u32 v{vA+2}, s22, v{vA+2}
v_add_u32 v{vA+2}, 2048, v{vA+2}
v_add_u32 v{vA+4}, {MEMLDS}, v{vA+2}""")
    for i in range(3): remap(a, vA + i, 15)

def mem_poll(a, lbl, vA, P, T):
    stamp(a, 0)
    if STAMP: a("s_waitcnt lgkmcnt(0)")
    a.label(lbl)
    for i in range(3): a(f"buffer_load_dwordx4 v[{P+4*i}:{P+4*i+3}], v{vA+i}, s[4:7], s40 offen sc1")
    spin_guard(a, 39)
    a(f"""ds_write_b128 v{vA+3}, v[{P}:{P+3}]
v_max3_u32 v{T}, v{P}, v{P+1}, v{P+2}
ds_write_b128 v{vA+3}, v[{P+4}:{P+7}] offset:1024
v_max3_u32 v{T}, v{T}, v{P+3}, v{P+4}
v_max3_u32 v{T}, v{T}, v{P+5}, v{P+6}
ds_write_b128 v{vA+4}, v[{P+8}:{P+11}]
v_max3_u32 v{T}, v{T}, v{P+7}, v{P+8}
v_max3_u32 v{T}, v{T}, v{P+9}, v{P+10}
v_max_u32 v{T}, v{T}, v{P+11}
v_cmp_eq_u32 vcc, s41, v{T}""")
    a(f"s_cbranch_vccnz {lbl}")
    stamp(a, 1)
    a("s_waitcnt lgkmcnt(0)\ns_barrier")

def emit_stream(a, slots):
    for mf, fl in slots:
        a(mf)
        fl = sorted(fl, key=lambda x: 1 if x.startswith('v_') else 0)
        for f in fl: a(f)

def role_R(a):
    a.label("L_R")
    a(f"""s_lshl_b32 s22, s17, 3
s_mul_i32 s23, s22, 640
s_add_u32 s23, s23, 10240
v_lshrrev_b32 v14, 5, v1
v_mul_u32_u24 v14, 640, v14
v_and_b32 v15, 31, v1
v_lshl_add_u32 v14, v15, 4, v14
v_add_u32 v4, s23, v14
v_add_u32 v5, 1280, v4
v_add_u32 v6, 2560, v4
v_add_u32 v7, 3840, v4
v_mul_u32_u24 v14, 1280, v2
v_lshl_add_u32 v14, v3, 3, v14
v_add_u32 v14, 512, v14
v_add_u32 v8, s23, v14
v_add_u32 v9, 640, v8""")
    for v in range(4, 10): remap(a, v, 15)
    a(f"""s_lshl_b32 s23, s18, 14
s_lshl_b32 s24, s17, 11
s_add_u32 s23, s23, s24
v_lshlrev_b32 v11, 4, v1
v_add_u32 v10, s23, v11
s_lshl_b32 s36, s18, 15
s_lshl_b32 s24, s17, 13
s_add_u32 s36, s36, s24
s_add_u32 s36, s36, {U_OFF}
s_mul_i32 s24, s18, 6554
s_lshr_b32 s24, s24, 16
s_lshl_b32 s24, s24, 6
v_and_b32 v12, 7, v1
v_add_u32 v12, s22, v12
v_lshlrev_b32 v12, 8, v12
v_add_u32 v12, s24, v12
s_mov_b32 s35, {FLAG_OFF + ROLE_O*32*256}
s_mov_b32 s41, {hex(SENT)}
s_mov_b32 s39, 0
s_mov_b32 s20, 0""")
    idx_reg(a, 16)
    a(f"""v_and_b32 v14, 1, v2
v_lshlrev_b32 v14, 8, v14
v_lshrrev_b32 v15, 5, v1
v_lshl_add_u32 v14, v15, 7, v14
v_lshl_add_u32 v14, v3, 2, v14
s_lshl_b32 s22, s17, 9
v_add_u32 v18, s22, v14
v_lshlrev_b32 v19, 3, v1
v_lshrrev_b32 v14, 3, v1
v_lshlrev_b32 v14, 4, v14               ; row*16
v_bfe_u32 v15, v1, 2, 1
v_lshl_add_u32 v14, v15, 7, v14         ; + hf*128
v_and_b32 v15, 3, v1
v_lshl_add_u32 v14, v15, 2, v14
s_lshl_b32 s22, s18, 8
v_add_u32 v20, s22, v14""")
    remap(a, 20, 15)
    UB = 64; YB = 56; PB = 32; PM = 48; D = 24
    a.label("L_R_loop")
    a("s_add_u32 s31, s20, 1")
    a.label("L_R_fl")
    a("buffer_load_dword v13, v12, s[4:7], s35 offen sc1")
    spin_guard(a, 39)
    a(f"s_waitcnt vmcnt(0)\nv_cmp_gt_u32 vcc, s31, v13\ns_cbranch_vccnz L_R_fl")
    a(f"s_mul_i32 s23, s20, {40*32768}\ns_add_u32 s23, s23, s36\ns_add_u32 s24, s23, 4096")
    for i in range(8):
        a(f"buffer_load_dwordx4 v[{UB+4*i}:{UB+4*i+3}], v11, s[4:7], s{23 + i//4} offen offset:{(i%4)*1024} sc1")
    span_off(a, 40, 20, 0, MP_OFF, 16)
    span_off(a, 42, 20, 0, Y_OFF, 20)
    span_off(a, 43, 20, 1, MP_OFF, 16)
    a("s_waitcnt vmcnt(0)")
    stamp(a, 0)
    if STAMP: a("s_waitcnt lgkmcnt(0)")
    a.label("L_R_pollY")
    for i in range(2): a(f"buffer_load_dwordx4 v[{YB+4*i}:{YB+4*i+3}], v10, s[4:7], s42 offen offset:{i*1024} sc1")
    spin_guard(a, 39)
    check(a, range(YB, YB + 8), 14)
    a("v_cmp_eq_u32 vcc, s41, v14\ns_cbranch_vccnz L_R_pollY")
    stamp(a, 1)
    if STAMP: a("s_waitcnt lgkmcnt(0)")
    a.label("L_R_pollP")
    for i in range(2): a(f"buffer_load_dwordx2 v[{PM+2*i}:{PM+2*i+1}], v{8+i}, s[4:7], s40 offen sc1")
    for i in range(4): a(f"buffer_load_dwordx4 v[{PB+4*i}:{PB+4*i+3}], v{4+i}, s[4:7], s40 offen sc1")
    spin_guard(a, 39)
    a(f"v_mov_b64 v[{D}:{D+1}], 0\nv_mov_b64 v[{D+2}:{D+3}], 0")
    a(f"v_smfmac_f32_16x16x64_bf16 v[{D}:{D+3}], v[{PM}:{PM+3}], v[{YB}:{YB+7}], v16")
    a(f"v_max3_u32 v14, v{PM}, v{PM+1}, v{PM+2}\nv_max_u32 v14, v14, v{PM+3}")
    for m in range(4):
        a(f"v_smfmac_f32_16x16x64_bf16 v[{D}:{D+3}], v[{PB+4*m}:{PB+4*m+3}], v[{UB+8*m}:{UB+8*m+7}], v16")
        a(f"v_max3_u32 v14, v14, v{PB+4*m}, v{PB+4*m+1}\nv_max3_u32 v14, v14, v{PB+4*m+2}, v{PB+4*m+3}")
    a("v_cmp_eq_u32 vcc, s41, v14\ns_cbranch_vccnz L_R_pollP")
    stamp(a, 2)
    a(f"""v_permlane32_swap_b32 v{D}, v{D+2}
v_permlane32_swap_b32 v{D+1}, v{D+3}
v_add_f32 v{D}, v{D}, v{D+2}
v_add_f32 v{D+1}, v{D+1}, v{D+3}
ds_write2_b32 v18, v{D}, v{D+1} offset0:0 offset1:16
s_waitcnt lgkmcnt(0)
s_barrier
s_cmp_lg_u32 s17, 0
s_cbranch_scc1 L_R_next
ds_read2_b64 v[32:35], v19 offset0:0 offset1:64
ds_read2_b64 v[36:39], v19 offset0:128 offset1:192
v_pk_add_f32 v[32:33], v[32:33], v[34:35]
v_pk_add_f32 v[36:37], v[36:37], v[38:39]
v_pk_add_f32 v[32:33], v[32:33], v[36:37]
v_cvt_pk_bf16_f32 v32, v32, v33
buffer_store_dword v32, v20, s[4:7], s43 offen sc1""")
    a.label("L_R_next")
    stamp(a, 3); stamp_flush(a, 4, row_s=20)
    a(f"""v_xor_b32 v18, 2048, v18
v_xor_b32 v19, 2048, v19
s_add_u32 s20, s20, 1
s_cmp_lt_u32 s20, 63
s_cbranch_scc1 L_R_loop
s_endpgm""")

def role_V(a):
    a.label("L_V")
    def wv(c, t):
        f = c * 3 + t
        return ('a', 240 + 8 * f) if f < 2 else ('v', 128 + 8 * (f - 2))
    a("s_mul_i32 s32, s18, 384\ns_mul_i32 s33, s18, 245760")
    st = [dict(kind='O', srd=12, stride=1280, col=33, style='nat', row0=64 * (q >> 2) + 32 * ((q >> 1) & 1) + 4 * (q & 1),
               dests=(lambda t, qq, q=q: ('a', (t * 3 + (q >> 2)) * 8 + 2 * (q & 3)))) for q in range(12)]
    st += w_stages(8, 12288, 32, 'sp', lambda c, t, q: (wv(c, t)[0], wv(c, t)[1] + 2 * q), resident=(6, 7, 8, 9))
    aW = loader(a, st, 0, 40, True)
    a("s_mul_i32 s22, s17, 6144\nv_lshlrev_b32 v4, 4, v1\nv_add_u32 v4, s22, v4\nv_add_u32 v5, 49152, v4")
    mem_poll_setup(a, 10)
    idx_reg(a, 16)
    VIMG = 4 * SLOT
    a(f"""v_lshlrev_b32 v18, 4, v1
v_add_u32 v18, {MEMLDS}, v18
s_mul_i32 s22, s17, 768
v_lshlrev_b32 v19, 4, v3
v_and_b32 v15, 1, v2
v_lshl_add_u32 v19, v15, 3, v19
v_lshrrev_b32 v15, 5, v1
v_lshl_add_u32 v19, v15, 2, v19
v_add_u32 v19, s22, v19
v_add_u32 v19, {VIMG}, v19
v_bfe_u32 v15, v1, 3, 1                 ; r>>1
v_lshlrev_b32 v20, 2, v15
v_bfe_u32 v15, v1, 2, 1                 ; r&1
v_add_u32 v20, v20, v15
v_bfe_u32 v15, v1, 1, 1                 ; hf = c>>1
v_lshl_add_u32 v20, v15, 1, v20
v_lshl_add_u32 v20, v2, 4, v20          ; + 16*gA
v_lshlrev_b32 v20, 4, v20
v_and_b32 v15, 1, v1
v_lshl_add_u32 v20, v15, 3, v20
v_add_u32 v20, {VIMG}, v20
v_lshrrev_b32 v15, 5, v1
s_mul_i32 s22, s17, 10
v_add_u32 v15, s22, v15
v_lshlrev_b32 v21, 14, v15              ; ct*16K
s_lshl_b32 s22, s18, 8
v_add_u32 v21, s22, v21
v_lshl_add_u32 v21, v3, 4, v21
v_and_b32 v15, 1, v2
v_lshl_add_u32 v21, v15, 3, v21
s_mov_b32 s41, {hex(SENT)}
s_mov_b32 s39, 0
s_mov_b32 s20, 0""")
    M = 24; ACC = 64; WIN = 80; VA = 80; P = 24; YA = 24
    def winread(c, t, w):
        off = (c - 6) * SLOT + t * 2048
        base = 4
        if off >= 49152: base = 5; off -= 49152
        return [f"ds_read_b128 v[{WIN+8*w+4*hh}:{WIN+8*w+4*hh+3}], v{base} offset:{off + hh*1024}" for hh in range(2)]
    a.label("L_V_loop")
    span_off(a, 40, 20, 0, MP_OFF, 16)
    span_off(a, 42, 20, 0, Y_OFF, 20)
    for j in range(4):
        for x in winread(6 + j, 0, j): a(x)
    for j in range(0, 12, 2): a(f"v_mov_b64 v[{ACC+j}:{ACC+j+1}], 0")
    a("s_waitcnt lgkmcnt(0)")
    mem_poll(a, "L_V_poll", 10, P, 15)
    order = [6, 0, 7, 1, 2, 8, 3, 9, 4, 5]
    for c in order: a(f"ds_read_b128 v[{M+4*c}:{M+4*c+3}], v18 offset:{c*1024}")
    def post_v(t):
        d = ACC + 4 * t
        return [f"v_permlane32_swap_b32 v{d}, v{d+2}", f"v_permlane32_swap_b32 v{d+1}, v{d+3}", f"v_add_f32 v{d}, v{d}, v{d+2}",
                f"v_add_f32 v{d+1}, v{d+1}, v{d+3}", f"v_cvt_pk_bf16_f32 v{d}, v{d}, v{d+1}", f"ds_write_b32 v19, v{d} offset:{t*256}"]
    slots = []
    for t in range(3):
        d = ACC + 4 * t
        for n, c in enumerate(order):
            if c >= 6: src = f"v[{WIN+8*(c-6)}:{WIN+8*(c-6)+7}]"
            else: src = R(*wv(c, t), 8)
            slots.append((f"v_smfmac_f32_16x16x64_bf16 v[{d}:{d+3}], v[{M+4*c}:{M+4*c+3}], {src}, v16", []))
    for t in range(2):
        for n, c in enumerate(order):
            if c >= 6:
                r = winread(c, t + 1, c - 6)
                slots[10*t + n][1].append(r[0]); slots[10*t + n + 1][1].append(r[1])
    for t in (1, 2):
        for j, x in enumerate(post_v(t - 1)): slots[10*t + (2, 3, 5, 6, 8, 9)[j]][1].append(x)
    emit_stream(a, slots)
    for j in range(0, 8, 2): a(f"v_mov_b64 v[{YA+j}:{YA+j+1}], 0")
    for x in post_v(2): a(x)
    for j in range(8, 40, 2): a(f"v_mov_b64 v[{YA+j}:{YA+j+1}], 0")
    stamp(a, 2)
    a("s_waitcnt lgkmcnt(0)\ns_barrier")
    for c in range(3):
        for hh in range(2): a(f"ds_read_b64_tr_b16 v[{VA+4*c+2*hh}:{VA+4*c+2*hh+1}], v20 offset:{c*1024 + hh*128}")
    def post_y(pp):
        da = YA + 8 * pp; db = da + 4
        g = []
        for r in range(4): g.append(f"v_permlane32_swap_b32 v{da+r}, v{db+r}")
        for r in range(4): g.append(f"v_add_f32 v{da+r}, v{da+r}, v{db+r}")
        g.append(f"v_cvt_pk_bf16_f32 v{da}, v{da}, v{da+1}"); g.append(f"v_cvt_pk_bf16_f32 v{da+1}, v{da+2}, v{da+3}")
        return g
    def store_y(pp):
        da = YA + 8 * pp
        return [f"s_add_u32 s26, s42, {pp*32768}", f"buffer_store_dwordx2 v[{da}:{da+1}], v21, s[4:7], s26 offen sc1"]
    slots = []
    for pp in range(5):
        for c in range(3):
            for tb in range(2):
                t = 2 * pp + tb; d = YA + 4 * t
                slots.append((f"v_smfmac_f32_16x16x64_bf16 v[{d}:{d+3}], v[{VA+4*c}:{VA+4*c+3}], a[{(t*3+c)*8}:{(t*3+c)*8+7}], v16", []))
    for pp in range(4):
        g = post_y(pp); b = 6 * (pp + 1)
        for j, x in enumerate(g): slots[b + (1, 2, 2, 3, 3, 4, 4, 5, 5, 5)[j]][1].append(x)
        if pp < 3: slots[b + 6][1].extend(store_y(pp))
    emit_stream(a, slots)
    for x in store_y(3) + post_y(4) + store_y(4): a(x)
    stamp(a, 3); stamp_flush(a, 4, row_s=20)
    a(f"""s_add_u32 s20, s20, 1
s_cmp_lt_u32 s20, 64
s_cbranch_scc1 L_V_loop
s_endpgm""")

SCL = (192 ** -0.5) * math.log2(math.e)
def xlane(a, op, v, t, ror8):
    if ror8: a(f"{op}_dpp v{v}, v{v}, v{v} row_ror:8 row_mask:0xf bank_mask:0xf")
    a(f"v_mov_b32 v{t}, v{v}\nv_permlane16_swap_b32 v{t}, v{v}\n{op} v{v}, v{v}, v{t}")
    a(f"v_mov_b32 v{t}, v{v}\nv_permlane32_swap_b32 v{t}, v{v}\n{op} v{v}, v{v}, v{t}")

def dpp8(a, op, v):
    for m in ("quad_perm:[1,0,3,2]", "quad_perm:[2,3,0,1]", "row_half_mirror"):
        a(f"{op}_dpp v{v}, v{v}, v{v} {m} row_mask:0xf bank_mask:0xf")

def role_A(a):
    a.label("L_A")
    def fr(m, c, t):
        f = (c * 3 + t) if m == 0 else (24 + c * 3 + t)
        return ('a', 8 * f) if f < 32 else ('v', 152 + 8 * (f - 32))
    a("s_mul_i32 s32, s18, 384")
    sq = w_stages(8, 12288, 32, 'sp', lambda c, t, q: (fr(0, c, t)[0], fr(0, c, t)[1] + 2 * q), resident=(8, 9))
    sk = w_stages(12, 12288, 32, 'sp', lambda c, t, q: (fr(1, c, t)[0], fr(1, c, t)[1] + 2 * q), resident=(7, 8, 9))
    st = sq[:8] + sk[:7] + [sq[8], sq[9], sk[7], sk[8], sk[9]]
    resid = {(0, 8): 0, (0, 9): 1, (1, 7): 2, (1, 8): 3, (1, 9): 4}
    aW = loader(a, st, 3, 40, True)
    a("s_mul_i32 s22, s17, 6144\nv_lshlrev_b32 v4, 4, v1\nv_add_u32 v4, s22, v4\nv_add_u32 v5, 61440, v4")
    mem_poll_setup(a, 10)
    idx_reg(a, 16)
    SP = MEMLDS + 10240
    SROW = 176; SWV = 8 * SROW
    XP = 5 * SLOT
    a(f"""v_lshlrev_b32 v30, 4, v1                ; lane*16
v_add_u32 v18, {MEMLDS}, v30
v_mul_u32_u24 v19, {SROW}, v3
v_lshl_add_u32 v19, v2, 4, v19
s_mul_i32 s22, s17, {SWV}
s_add_u32 s22, s22, {SP}
v_add_u32 v19, s22, v19
v_lshrrev_b32 v31, 3, v1                ; i
v_mul_u32_u24 v21, {SROW}, v31
v_add_u32 v21, {SP}, v21
v_and_b32 v15, 7, v1
v_lshl_add_u32 v20, v15, 4, v21
v_and_b32 v15, 1, v1
v_lshl_add_u32 v21, v15, 4, v21
v_bfe_u32 v15, v1, 2, 1                 ; hf
v_lshl_add_u32 v21, v15, 3, v21
v_add_u32 v21, 128, v21
v_lshl_add_u32 v31, v15, 3, v31         ; n = i + 8hf
s_mul_i32 s22, s18, 640
s_add_u32 s22, s22, 10240
v_bfe_u32 v15, v1, 1, 1
v_lshlrev_b32 v22, 8, v15
v_lshl_add_u32 v22, v31, 4, v22
v_and_b32 v15, 1, v1
v_lshl_add_u32 v22, v15, 3, v22
v_add_u32 v22, s22, v22
v_lshlrev_b32 v23, 3, v31
v_lshl_add_u32 v23, v15, 2, v23
v_add_u32 v23, s22, v23
v_add_u32 v23, 512, v23""")
    remap(a, 22, 15); remap(a, 23, 15)
    SEL = 6
    a(f"""v_lshlrev_b32 v15, 2, v2
v_and_b32 v15, 7, v15
v_sub_u32 v15, v3, v15                  ; n - (4g mod 8)
v_mov_b32 v26, 0x3f80
v_mov_b32 v27, 0x3f800000""")
    for j in range(4):
        base = (0, 2, 8, 10)[j]
        a(f"""v_mov_b32 v{SEL+j}, 0
v_cmp_eq_u32 vcc, {base}, v15
v_cndmask_b32 v{SEL+j}, v{SEL+j}, v26, vcc
v_cmp_eq_u32 vcc, {base+1}, v15
v_cndmask_b32 v{SEL+j}, v{SEL+j}, v27, vcc""")
    a("v_lshlrev_b32 v15, 2, v2\nv_sub_u32 v15, v3, v15")
    for r in range(4): a(f"v_cmp_le_i32 s[{44+2*r}:{45+2*r}], {r}, v15")
    a("s_nop 4\ns_and_b32 s22, s17, 1\ns_cmp_eq_u32 s22, 1")
    for r in range(4):
        a(f"s_cselect_b64 s[{52+2*r}:{53+2*r}], s[{44+2*r}:{45+2*r}], 0\ns_cselect_b64 s[{44+2*r}:{45+2*r}], -1, s[{44+2*r}:{45+2*r}]")
    a(f"""s_mov_b32 s60, 0
s_mov_b32 s61, -1
s_mul_i32 s22, s17, 5120
s_add_u32 s22, s22, {XP}
v_add_u32 v17, s22, v30
s_and_b32 s22, s17, 1
s_lshl_b32 s22, s22, 11
s_add_u32 s22, s22, {XP}
v_add_u32 v0, s22, v30
s_mul_i32 s36, s18, 12288
s_mul_i32 s22, s17, 3072
s_add_u32 s36, s36, s22
s_and_b32 s22, s17, 1
s_lshl_b32 s37, s22, 15
s_lshl_b32 s23, s18, 10
s_add_u32 s37, s37, s23
s_add_u32 s37, s37, {PX_OFF}
s_lshl_b32 s38, s22, 13
s_lshl_b32 s23, s18, 8
s_add_u32 s38, s38, s23
s_add_u32 s38, s38, {PXM_OFF}
v_and_b32 v15, 1, v2
v_lshlrev_b32 v3, 4, v3
v_lshl_add_u32 v3, v15, 3, v3
v_and_b32 v2, 1, v1
v_mul_u32_u24 v2, {(ROLE_Q - ROLE_K) * 32 * 256}, v2
v_mov_b32 v1, v30
s_mov_b32 s62, {hex(f2u(SCL))}
s_mov_b32 s63, {hex(f2u(SCL))}
s_mov_b32 s64, 0xff800000
s_mov_b32 s65, {hex(f2u(-1e9 / (192 ** -0.5)))}
s_mov_b32 s66, 0x00ff00ff
s_mov_b32 s67, 0x00ff00ff
s_mov_b32 s68, 0x33333333
s_mov_b32 s69, 0x33333333
s_mov_b32 s70, 0
s_mov_b32 s41, {hex(SENT)}
s_mov_b32 s39, 0
s_mov_b32 s20, 0""")
    flag_addr(a, 35, ROLE_K, 18, 17)
    a(f"s_add_u32 s72, s35, {(ROLE_PX - ROLE_K) * 8192}")
    X = 24; M = 32; ACC = 72; WIN = 88; KX = 104; KN = 116; QX = 128; S = 140
    P = M
    kxsrc = [0, 1, 4, 5, 2, 3, 6, 7, 8, 9, 10, 11]
    def winread(m, c, t, w):
        off = resid[(m, c)] * SLOT + t * 2048; base = 4
        if off + 1024 > 65535: base = 5; off -= 61440
        return [f"ds_read_b128 v[{WIN+8*w+4*hh}:{WIN+8*w+4*hh+3}], v{base} offset:{off + hh*1024}" for hh in range(2)]
    regs_ = []
    for c in range(6): regs_ += [(0, c), (1, c)]
    regs_ += [(1, 6), (0, 6), (0, 7)]
    lds_ = [(0, 8), (1, 8), (0, 9), (1, 9), (1, 7)]
    seq = []
    for i in range(5): seq += [lds_[i]] + regs_[3*i:3*i+3]
    ldsfr = [(m, c, t) for t in range(3) for (m, c) in lds_]
    def waitflags(lbl):
        a(f"s_cmp_ge_u32 s70, s31\ns_cbranch_scc1 {lbl}_ok")
        a.label(lbl)
        a("buffer_load_dword v15, v2, s[4:7], s35 offen sc1")
        spin_guard(a, 39)
        a(f"s_waitcnt vmcnt(0)\nv_readlane_b32 s70, v15, 0\nv_readlane_b32 s71, v15, 1\ns_nop 0\ns_min_u32 s70, s70, s71\ns_cmp_lt_u32 s70, s31\ns_cbranch_scc1 {lbl}")
        a.label(lbl + "_ok")
    a("s_mov_b32 s31, 1")
    waitflags("L_A_f0")
    a(f"s_add_u32 s23, s36, {KX_OFF}")
    for t in range(3): a(f"buffer_load_dwordx4 v[{KN+4*t}:{KN+4*t+3}], v1, s[4:7], s23 offen offset:{t*1024} sc1")
    a("s_waitcnt vmcnt(0)")
    a.label("L_A_loop")
    a("s_add_u32 s31, s20, 2\ns_min_u32 s31, s31, 64")
    waitflags("L_A_fl")
    for j in range(0, 12, 2): a(f"v_mov_b64 v[{KX+j}:{KX+j+1}], v[{KN+kxsrc[j]}:{KN+kxsrc[j]+1}]")
    span_off(a, 40, 20, 0, MP_OFF, 16)
    a(f"""s_add_u32 s23, s20, 1
s_min_u32 s23, s23, 63
s_mul_i32 s23, s23, {32*12288}
s_add_u32 s23, s23, s36
s_add_u32 s42, s23, {KX_OFF}
s_mul_i32 s23, s20, {32*12288}
s_add_u32 s23, s23, s36
s_add_u32 s43, s23, {QX_OFF}""")
    for x in winread(*ldsfr[0], 0) + winread(*ldsfr[1], 1): a(x)
    for j in range(0, 16, 2): a(f"v_mov_b64 v[{ACC+j}:{ACC+j+1}], 0")
    a("s_waitcnt lgkmcnt(0)")
    mem_poll(a, "L_A_poll", 10, P, 15)
    corder = []
    for (m, c) in seq:
        if c not in corder: corder.append(c)
    mread = lambda c: f"ds_read_b128 v[{M+4*c}:{M+4*c+3}], v18 offset:{c*1024}"
    for c in corder[:6]: a(mread(c))
    slots = []
    for t in range(3):
        dq = ACC + 8 * (t % 2)
        for n, (m, c) in enumerate(seq):
            d = dq + 4 * m
            if (m, c) in resid:
                k = 5 * t + n // 4; w = k % 2
                src = f"v[{WIN+8*w}:{WIN+8*w+7}]"
            else: src = R(*fr(m, c, t), 8)
            slots.append([f"v_smfmac_f32_16x16x64_bf16 v[{d}:{d+3}], v[{M+4*c}:{M+4*c+3}], {src}, v16", []])
    for k in range(13):
        r = winread(*ldsfr[k + 2], k % 2)
        slots[4*k][1].append(r[0]); slots[4*k + 1][1].append(r[1])
        slots[4*k + 7][1].append(f"@touch v[{WIN+8*(k%2)}:{WIN+8*(k%2)+7}]")
    for j, c in enumerate(corder[6:]): slots[(2, 3, 6, 10)[j]][1].insert(0, mread(c))
    for t in range(3):
        slots[(14, 18, 22)[t]][1].append(f"buffer_load_dwordx4 v[{QX+4*t}:{QX+4*t+3}], v1, s[4:7], s43 offen offset:{t*1024} sc1")
        slots[(26, 30, 34)[t]][1].append(f"buffer_load_dwordx4 v[{KN+4*t}:{KN+4*t+3}], v1, s[4:7], s42 offen offset:{t*1024} sc1")
    slots[36][1].append("v_mov_b32 v15, s20")
    slots[38][1] += ["s_mov_b64 exec, 1", "buffer_store_dword v15, v1, s[4:7], s72 offen sc1", "s_mov_b64 exec, -1"]
    def cvts(t):
        dq = ACC + 8 * (t % 2); dk = dq + 4
        return [f"v_cvt_pk_bf16_f32 v{dk+3}, v{dk+2}, v{dk+3}", f"v_cvt_pk_bf16_f32 v{dk+2}, v{dk}, v{dk+1}",
                f"v_cvt_pk_bf16_f32 v{dk}, v{dq}, v{dq+1}", f"v_cvt_pk_bf16_f32 v{dk+1}, v{dq+2}, v{dq+3}"]
    def tmf(t):
        dq = ACC + 8 * (t % 2); dk = dq + 4
        return f"v_mfma_f32_16x16x32_bf16 v[{dq}:{dq+3}], v[{dk}:{dk+3}], v[{SEL}:{SEL+3}], 0"
    def xcv(t):
        dq = ACC + 8 * (t % 2); x = X + 2 * t
        return [f"v_cvt_pk_bf16_f32 v{x}, v{dq}, v{dq+1}", f"v_cvt_pk_bf16_f32 v{x+1}, v{dq+2}, v{dq+3}"]
    extra = {}
    for t in (0, 1):
        b = 20 * (t + 1)
        for j, x in enumerate(cvts(t)): slots[b + j][1].append(x)
        extra[b + 4] = [tmf(t)]
        for j, x in enumerate(xcv(t)): slots[b + 7 + j][1].append(x)
    for j in range(4): slots[29 + j][1].append(f"v_mov_b64 v[{ACC+2*j}:{ACC+2*j+1}], 0")
    sc32 = [f"v_mfma_f32_16x16x32_bf16 v[{S+4*j}:{S+4*j+3}], v[{src}:{src+3}], v[{X}:{X+3}], 0" for j, src in enumerate((X, KX, KX + 4))]
    full = []
    for i, (mf, fl) in enumerate(slots):
        full.append((mf, fl))
        for e in extra.get(i, []): full.append((e, []))
    emit_stream(a, full)
    cv = cvts(2)
    for x in (cv[0], sc32[0], cv[1], sc32[1], cv[2], cv[3], tmf(2), sc32[2]): a(x)
    for x in xcv(2): a(x)
    for j, src in enumerate((X + 4, KX + 8, KX + 10)):
        a(f"v_mfma_f32_16x16x16_bf16 v[{S+4*j}:{S+4*j+3}], v[{src}:{src+1}], v[{X+4}:{X+5}], v[{S+4*j}:{S+4*j+3}]")
    a("s_mov_b64 exec, s[66:67]")
    for j in range(3): a(f"ds_write_b128 v19, v[{S+4*j}:{S+4*j+3}] offset:{(96, 0, 64)[j]}")
    stamp(a, 2)
    a("s_mov_b64 exec, -1\ns_cmp_lg_u32 s17, 0\ns_waitcnt lgkmcnt(0)\ns_barrier\ns_cbranch_scc1 L_A_x")
    T = M
    a(f"""ds_read_b128 v[{T}:{T+3}], v20
ds_read_b128 v[{T+8}:{T+11}], v20 offset:{SWV}
ds_read2_b64 v[{T+4}:{T+7}], v21 offset0:0 offset1:{SWV//8}
v_add_u32 v15, {2*SWV}, v21
ds_read_b128 v[{T+12}:{T+15}], v20 offset:{2*SWV}
ds_read_b128 v[{T+16}:{T+19}], v20 offset:{3*SWV}
ds_read2_b64 v[{T+20}:{T+23}], v15 offset0:0 offset1:{SWV//8}
v_pk_add_f32 v[{T}:{T+1}], v[{T}:{T+1}], v[{T+8}:{T+9}]
v_pk_add_f32 v[{T+2}:{T+3}], v[{T+2}:{T+3}], v[{T+10}:{T+11}]
v_pk_add_f32 v[{T+4}:{T+5}], v[{T+4}:{T+5}], v[{T+6}:{T+7}]
v_pk_add_f32 v[{T}:{T+1}], v[{T}:{T+1}], v[{T+12}:{T+13}]
v_pk_add_f32 v[{T+2}:{T+3}], v[{T+2}:{T+3}], v[{T+14}:{T+15}]
v_pk_add_f32 v[{T}:{T+1}], v[{T}:{T+1}], v[{T+16}:{T+17}]
v_pk_add_f32 v[{T+2}:{T+3}], v[{T+2}:{T+3}], v[{T+18}:{T+19}]
v_pk_add_f32 v[{T+4}:{T+5}], v[{T+4}:{T+5}], v[{T+20}:{T+21}]
v_max3_f32 v{T+8}, v{T}, v{T+1}, v{T+2}
v_pk_add_f32 v[{T+4}:{T+5}], v[{T+4}:{T+5}], v[{T+22}:{T+23}]
v_max_f32 v{T+8}, v{T+8}, v{T+3}
v_max3_f32 v{T+8}, v{T+8}, v{T+4}, v{T+5}""")
    mx = T + 8
    dpp8(a, "v_max_f32", mx)
    a(f"v_mul_f32 v{mx}, s62, v{mx}")
    for j in (0, 2, 4): a(f"v_pk_fma_f32 v[{T+j}:{T+j+1}], v[{T+j}:{T+j+1}], s[62:63], v[{mx}:{mx+1}] op_sel_hi:[1,1,0] neg_lo:[0,0,1] neg_hi:[0,0,1]")
    for j in range(6): a(f"v_exp_f32 v{T+j}, v{T+j}")
    a(f"""v_pk_add_f32 v[{mx}:{mx+1}], v[{T}:{T+1}], v[{T+2}:{T+3}]
v_pk_fma_f32 v[{mx}:{mx+1}], v[{T+4}:{T+5}], 0.5, v[{mx}:{mx+1}] op_sel_hi:[1,0,1]
v_add_f32 v{mx}, v{mx}, v{mx+1}""")
    dpp8(a, "v_add_f32", mx)
    a(f"v_rcp_f32 v{mx}, v{mx}")
    a(f"""v_pk_mul_f32 v[{T}:{T+1}], v[{T}:{T+1}], v[{mx}:{mx+1}] op_sel_hi:[1,0]
v_pk_mul_f32 v[{T+2}:{T+3}], v[{T+2}:{T+3}], v[{mx}:{mx+1}] op_sel_hi:[1,0]
v_pk_mul_f32 v[{T+4}:{T+5}], v[{T+4}:{T+5}], v[{mx}:{mx+1}] op_sel_hi:[1,0]
v_cvt_pk_bf16_f32 v{T}, v{T}, v{T+1}
v_cvt_pk_bf16_f32 v{T+1}, v{T+2}, v{T+3}
buffer_store_dwordx2 v[{T}:{T+1}], v22, s[4:7], s40 offen sc1
v_cvt_pk_bf16_f32 v{T+2}, v{T+4}, v{T+5}
s_mov_b64 exec, s[68:69]
buffer_store_dword v{T+2}, v23, s[4:7], s40 offen sc1
s_mov_b64 exec, -1""")
    stamp(a, 3)
    if STAMP: a("s_waitcnt lgkmcnt(0)")
    a("s_waitcnt vmcnt(2)\ns_branch L_A_x1")
    a.label("L_A_x")
    XS = M + 12
    a("s_waitcnt vmcnt(0)")
    a.label("L_A_x1")
    a(f"v_swap_b32 v{QX+2}, v{QX+4}\nv_swap_b32 v{QX+3}, v{QX+5}")
    tl = ((0, 0), (1, 0), (0, 1), (1, 1), (2, 1))
    for j, (kt, qt) in enumerate(tl):
        src = (X, KX, KX + 4)[kt]
        a(f"v_mfma_f32_16x16x32_bf16 v[{XS+4*j}:{XS+4*j+3}], v[{src}:{src+3}], v[{QX+4*qt}:{QX+4*qt+3}], 0")
    for j, (kt, qt) in enumerate(tl):
        src = (X + 4, KX + 8, KX + 10)[kt]
        a(f"v_mfma_f32_16x16x16_bf16 v[{XS+4*j}:{XS+4*j+3}], v[{src}:{src+1}], v[{QX+8+2*qt}:{QX+9+2*qt}], v[{XS+4*j}:{XS+4*j+3}]")
    for j in range(5): a(f"ds_write_b128 v17, v[{XS+4*j}:{XS+4*j+3}] offset:{1024*j}")
    a("s_waitcnt lgkmcnt(0)\ns_barrier\ns_cmp_lt_u32 s17, 2\ns_cbranch_scc1 L_A_next")
    for w in range(3):
        for j in range(3): a(f"ds_read_b128 v[{T+12*w+4*j}:{T+12*w+4*j+3}], v0 offset:{5120*w + 1024*j}")
    for j in range(0, 12, 2): a(f"v_pk_add_f32 v[{T+j}:{T+j+1}], v[{T+j}:{T+j+1}], v[{T+12+j}:{T+13+j}]")
    for j in range(3): a(f"ds_read_b128 v[{T+12+4*j}:{T+12+4*j+3}], v0 offset:{5120*3 + 1024*j}")
    for j in range(0, 12, 2): a(f"v_pk_add_f32 v[{T+j}:{T+j+1}], v[{T+j}:{T+j+1}], v[{T+24+j}:{T+25+j}]")
    for j in range(0, 12, 2): a(f"v_pk_add_f32 v[{T+j}:{T+j+1}], v[{T+j}:{T+j+1}], v[{T+12+j}:{T+13+j}]")
    a(f"v_mov_b32 v{T+12}, s65\nv_mov_b32 v{T+13}, s64")
    for r in range(4):
        a(f"v_cndmask_b32 v{T+r}, v{T+13}, v{T+r}, s[60:61]")
        a(f"v_cndmask_b32 v{T+4+r}, v{T+12}, v{T+4+r}, s[{44+2*r}:{45+2*r}]")
        a(f"v_cndmask_b32 v{T+8+r}, v{T+12}, v{T+8+r}, s[{52+2*r}:{53+2*r}]")
    mx = T + 12; tm = T + 13
    a(f"v_max3_f32 v{mx}, v{T}, v{T+1}, v{T+2}")
    for j in range(3, 11, 2): a(f"v_max3_f32 v{mx}, v{mx}, v{T+j}, v{T+j+1}")
    a(f"v_max_f32 v{mx}, v{mx}, v{T+11}")
    xlane(a, "v_max_f32", mx, tm, False)
    a(f"v_mul_f32 v{mx}, s62, v{mx}")
    for j in range(0, 12, 2): a(f"v_pk_fma_f32 v[{T+j}:{T+j+1}], v[{T+j}:{T+j+1}], s[62:63], v[{mx}:{mx+1}] op_sel_hi:[1,1,0] neg_lo:[0,0,1] neg_hi:[0,0,1]")
    for j in range(12): a(f"v_exp_f32 v{T+j}, v{T+j}")
    a(f"v_pk_add_f32 v[{mx}:{mx+1}], v[{T}:{T+1}], v[{T+2}:{T+3}]")
    for j in range(4, 12, 2): a(f"v_pk_add_f32 v[{mx}:{mx+1}], v[{mx}:{mx+1}], v[{T+j}:{T+j+1}]")
    a(f"v_add_f32 v{mx}, v{mx}, v{mx+1}")
    xlane(a, "v_add_f32", mx, tm, False)
    a(f"v_rcp_f32 v{mx}, v{mx}")
    for j in range(0, 12, 2): a(f"v_pk_mul_f32 v[{T+j}:{T+j+1}], v[{T+j}:{T+j+1}], v[{mx}:{mx+1}] op_sel_hi:[1,0]")
    O = T + 16
    a(f"""v_cvt_pk_bf16_f32 v{O}, v{T+4}, v{T+5}
v_cvt_pk_bf16_f32 v{O+1}, v{T+8}, v{T+9}
v_cvt_pk_bf16_f32 v{O+2}, v{T+6}, v{T+7}
v_cvt_pk_bf16_f32 v{O+3}, v{T+10}, v{T+11}
v_cvt_pk_bf16_f32 v{O+4}, v{T}, v{T+1}
v_cvt_pk_bf16_f32 v{O+5}, v{T+2}, v{T+3}
s_lshl_b32 s23, s20, 16
s_add_u32 s23, s23, s37
buffer_store_dwordx4 v[{O}:{O+3}], v1, s[4:7], s23 offen sc1
s_lshl_b32 s23, s20, 14
s_add_u32 s23, s23, s38
s_mov_b32 exec_lo, 0
buffer_store_dwordx2 v[{O+4}:{O+5}], v3, s[4:7], s23 offen sc1
s_mov_b32 exec_lo, -1""")
    a.label("L_A_next")
    stamp(a, 4); stamp_flush(a, 5, row_s=20)
    a(f"""s_add_u32 s20, s20, 1
s_cmp_lt_u32 s20, 64
s_cbranch_scc1 L_A_loop
v_mov_b32 v15, s20
s_waitcnt vmcnt(0)
s_mov_b64 exec, 1
buffer_store_dword v15, v1, s[4:7], s72 offen sc1
s_mov_b64 exec, -1""")
    stamp(a, 0)
    if STAMP: a("s_memtime s[78:79]")
    stamp_flush(a, 2, row=65)
    a("s_endpgm")

def gen_main():
    a = Asm()
    a(f"""s_cmp_ge_u32 s2, 256
s_cbranch_scc1 L_exit
s_load_dwordx2 s[24:25], s[0:1], {K_WS}
s_load_dwordx8 s[68:75], s[0:1], {K_WQ}
s_lshr_b32 s16, s2, 3
s_lshl_b32 s16, s16, 2
s_and_b32 s3, s2, 3
s_or_b32 s16, s16, s3
s_and_b32 s3, s2, 4
s_lshl_b32 s3, s3, 5
s_or_b32 s16, s16, s3                   ; position: dies 0..3 first (speed only)
v_lshrrev_b32 v1, 6, v0
s_nop 0
v_readfirstlane_b32 s17, v1
s_waitcnt lgkmcnt(0)
s_load_dword s19, s[24:25], {PAR_OFF}""")
    stamp(a, 0)
    srd(a, 4, 24, WS_BYTES)
    lane_decomp(a)
    WB = 640 * 6144 * 2
    a(f"""s_and_b32 s18, s16, 31
s_lshr_b32 s27, s16, 5                  ; 0 A, 1 V, 2-3 R/idle, 4 K, 5 V, 6 O, 7 Q
s_waitcnt lgkmcnt(0)
s_and_b32 s19, s19, 8192
s_mov_b32 s10, {WB}
s_mov_b32 s11, 0x20000
s_mov_b32 s14, {WB}
s_mov_b32 s15, 0x20000
s_mov_b64 s[8:9], s[68:69]
s_mov_b64 s[12:13], s[70:71]
s_cmp_eq_u32 s27, 0
s_cbranch_scc1 L_A
s_mov_b64 s[8:9], s[72:73]
s_mov_b64 s[12:13], s[74:75]
s_cmp_eq_u32 s27, 1
s_cbranch_scc1 L_V
s_cmp_ge_u32 s27, 4
s_cbranch_scc1 L_work
s_sub_u32 s22, s16, 64
s_cmp_ge_u32 s22, 40
s_cbranch_scc1 L_T
s_and_b32 s18, s22, 3
s_mul_i32 s18, s18, 10
s_lshr_b32 s22, s22, 2
s_add_u32 s18, s18, s22
s_branch L_R""")
    a.label("L_exit")
    a("s_endpgm")
    a.label("L_work")
    a(f"""s_sub_u32 s27, s27, 4
s_cmp_eq_u32 s27, {ROLE_V}
s_cbranch_scc1 L_proj
s_mov_b64 s[8:9], s[70:71]
s_cmp_eq_u32 s27, {ROLE_K}
s_cbranch_scc1 L_proj
s_mov_b64 s[8:9], s[68:69]
s_cmp_eq_u32 s27, {ROLE_Q}
s_cbranch_scc1 L_proj
s_mov_b64 s[8:9], s[74:75]
s_branch L_ow""")
    import k_tail
    role_R(a); k_tail.role_attn(a); role_proj(a); k_tail.role_f1(a); k_tail.role_f2(a); role_oworker(a); role_V(a); role_A(a)
    return a.finish(), dict(vgpr=512, sgpr=96, acc=256)
```

```python
from asmgen import Asm
from layout import *
from k_prep import srd, f2u
import k_main as km
from k_main import loader, w_stages, R, SLOT, spin_guard, span_off, xlane, check, stamp, stamp_flush
import math

BACKOFF = 4
def wait_flags(a, lbl, voff, base_s, need_s, cache_s=None, tmp=15):
    if cache_s is not None: a(f"s_cmp_eq_u32 s{cache_s}, 64\ns_cbranch_scc1 {lbl}_ok")
    a(f"s_branch {lbl}_in")
    a.label(lbl)
    a(f"s_sleep {BACKOFF}")
    a.label(lbl + "_in")
    a(f"buffer_load_dword v{tmp}, v{voff}, s[4:7], s{base_s} offen sc1")
    spin_guard(a, 39)
    a(f"s_waitcnt vmcnt(0)\nv_cmp_gt_u32 vcc, s{need_s}, v{tmp}\ns_cbranch_vccnz {lbl}")
    if cache_s is not None:
        a(f"v_cmp_gt_u32 vcc, 64, v{tmp}\ns_cbranch_vccnz {lbl}_ok\ns_mov_b32 s{cache_s}, 64")
        a.label(lbl + "_ok")

def put_flag(a, val_s, addr_s, vz, vt):
    a(f"v_mov_b32 v{vt}, s{val_s}\ns_waitcnt vmcnt(0)\ns_mov_b64 exec, 1\nbuffer_store_dword v{vt}, v{vz}, s[4:7], s{addr_s} offen sc1\ns_mov_b64 exec, -1")

def role_attn(a):
    a.label("L_T")
    a(f"""s_load_dwordx2 s[24:25], s[0:1], {K_X}
s_sub_u32 s18, s16, 104
s_and_b32 s22, s18, 3
s_mul_i32 s32, s22, 10
s_lshr_b32 s22, s18, 3                  ; part
s_lshl_b32 s23, s22, 2
s_min_u32 s23, s23, 6
s_add_u32 s32, s32, s23
s_bfe_u32 s20, s18, 0x10002
s_waitcnt lgkmcnt(0)""")
    srd(a, 8, 24, 2048 * 1280)
    a(f"""v_lshlrev_b32 v4, 4, v1
v_mov_b32 v5, 0
s_lshl_b32 s22, s17, 13
s_lshl_b32 s28, s32, 15
s_add_u32 s28, s28, s22
s_add_u32 s28, s28, {U_OFF}
s_add_u32 s29, s22, {PX_OFF}
s_lshl_b32 s22, s17, 11
s_add_u32 s30, s22, {PXM_OFF}            ; PXM
s_lshl_b32 s33, s32, 14
s_add_u32 s33, s33, s22
v_and_b32 v6, 31, v1
v_lshlrev_b32 v6, 6, v6
v_add_u32 v6, s22, v6
v_and_b32 v7, 7, v1
v_lshlrev_b32 v7, 8, v7
v_bfe_u32 v15, v1, 3, 1
v_lshl_add_u32 v7, v15, 6, v7
v_add_u32 v7, s22, v7
s_mov_b32 s34, {FLAG_OFF + ROLE_O*8192}
s_mov_b32 s35, {FLAG_OFF + ROLE_PX*8192 + 128}
s_lshl_b32 s36, s18, 8
s_lshl_b32 s22, s17, 6
s_add_u32 s36, s36, s22
s_add_u32 s36, s36, {FLAG_OFF + ROLE_X1*8192}
s_lshl_b32 s22, s17, 13
v_add_u32 v8, s22, v4
s_lshr_b32 s22, s17, 1
s_and_b32 s23, s17, 1
s_lshl_b32 s24, s22, 12
s_lshl_b32 s25, s23, 10
s_add_u32 s24, s24, s25
v_add_u32 v9, s24, v4
s_lshr_b32 s24, s32, 1
s_add_u32 s24, s24, s22                 ; kk
s_lshl_b32 s37, s24, 6
s_mul_i32 s25, s23, {16*1280}
s_add_u32 s38, s37, s25
v_mul_u32_u24 v10, 1280, v3
v_lshl_add_u32 v10, v2, 3, v10
s_mul_i32 s25, s23, 20
s_add_u32 s25, s25, s24
s_lshl_b32 s44, s25, 10
s_add_u32 s44, s44, {H2_OFF}
v_lshrrev_b32 v15, 1, v2
v_lshlrev_b32 v11, 8, v15
v_lshl_add_u32 v11, v3, 4, v11
v_and_b32 v15, 1, v2
v_lshl_add_u32 v11, v15, 3, v11
s_mul_i32 s45, s23, 2560
s_lshl_b32 s25, s24, 3
s_add_u32 s45, s45, s25
s_add_u32 s45, s45, {STAT_OFF}
v_mul_u32_u24 v12, 160, v3
v_lshlrev_b32 v15, 4, v2
s_lshl_b32 s22, s37, 1
s_add_u32 s23, s22, {MOD_OFF + 2*2560}
buffer_load_dwordx4 v[16:19], v15, s[4:7], s23 offen
buffer_load_dwordx4 v[20:23], v15, s[4:7], s23 offen offset:64
s_add_u32 s23, s22, {MOD_OFF + 4*2560}
buffer_load_dwordx4 v[24:27], v15, s[4:7], s23 offen
buffer_load_dwordx4 v[28:31], v15, s[4:7], s23 offen offset:64
s_mov_b32 s41, {hex(SENT)}
s_mov_b32 s39, 0
s_mov_b32 s46, 0
s_waitcnt vmcnt(0)""")
    ACC = 40; PB = 72; PM = 136; YB = 152; XR = 32
    a.label("L_T_loop")
    a("s_add_u32 s31, s20, 1")
    wait_flags(a, "L_T_wu", 6, 34, 31, cache_s=46)
    a(f"s_mul_i32 s23, s20, {40*32768}\ns_add_u32 s23, s23, s28")
    for ct in range(4):
        for k in range(8):
            if k % 4 == 0: a(f"s_add_u32 s22, s23, {ct*32768 + k*1024}")
            r = (k * 4 + ct) * 4
            a(f"buffer_load_dwordx4 a[{r}:{r+3}], v4, s[4:7], s22 offen offset:{(k%4)*1024} sc1")
    a(f"""s_mul_i32 s47, s20, {32*1280}
s_add_u32 s47, s47, s38
buffer_load_dwordx2 v[{XR}:{XR+1}], v10, s[8:11], s47 offen
buffer_load_dwordx2 v[{XR+2}:{XR+3}], v10, s[8:11], s47 offen offset:32""")
    span_off(a, 42, 20, 0, Y_OFF, 20)
    a(f"""s_add_u32 s42, s42, s33
s_lshl_b32 s40, s20, 16
s_add_u32 s40, s40, s29
s_lshl_b32 s43, s20, 14
s_add_u32 s43, s43, s30""")
    wait_flags(a, "L_T_wp", 7, 35, 31)
    stamp(a, 0)
    for k in range(8):
        for qt in range(2):
            if k % 4 == 0: a(f"s_add_u32 s{22+qt}, s40, {qt*32768 + k*1024}")
            a(f"buffer_load_dwordx4 v[{PB+8*k+4*qt}:{PB+8*k+4*qt+3}], v4, s[4:7], s{22+qt} offen offset:{(k%4)*1024} sc1")
    for qt in range(2):
        a(f"s_add_u32 s22, s43, {qt*8192}")
        for k in range(2): a(f"buffer_load_dwordx4 v[{PM+8*k+4*qt}:{PM+8*k+4*qt+3}], v4, s[4:7], s22 offen offset:{k*1024} sc1")
    def yloads():
        for ct in range(4):
            a(f"s_add_u32 s22, s42, {ct*16384}")
            for k in range(2): a(f"buffer_load_dwordx4 v[{YB+16*k+4*ct}:{YB+16*k+4*ct+3}], v4, s[4:7], s22 offen offset:{k*1024} sc1")
    yloads()
    for k in range(8):
        for ct in range(4):
            for qt in range(2):
                acc = ACC + 8 * ct + 4 * qt; r = (k * 4 + ct) * 4
                c = "0" if k == 0 else f"v[{acc}:{acc+3}]"
                a(f"v_mfma_f32_16x16x32_bf16 v[{acc}:{acc+3}], a[{r}:{r+3}], v[{PB+8*k+4*qt}:{PB+8*k+4*qt+3}], {c}")
    a("s_waitcnt vmcnt(0)")
    a.label("L_T_y")
    check(a, range(YB, YB + 32), 15)
    a("v_cmp_eq_u32 vcc, s41, v15\ns_cbranch_vccz L_T_yok")
    yloads()
    spin_guard(a, 39)
    a("s_waitcnt vmcnt(0)\ns_branch L_T_y")
    a.label("L_T_yok")
    for k in range(2):
        for ct in range(4):
            for qt in range(2):
                acc = ACC + 8 * ct + 4 * qt
                a(f"v_mfma_f32_16x16x32_bf16 v[{acc}:{acc+3}], v[{YB+16*k+4*ct}:{YB+16*k+4*ct+3}], v[{PM+8*k+4*qt}:{PM+8*k+4*qt+3}], v[{acc}:{acc+3}]")
    for j in range(8): a(f"ds_write_b128 v8, v[{ACC+4*j}:{ACC+4*j+3}] offset:{1024*j}")
    a("s_waitcnt lgkmcnt(0)\ns_barrier")
    T = 72
    for w in range(4):
        for u in range(2): a(f"ds_read_b128 v[{T+8*w+4*u}:{T+8*w+4*u+3}], v9 offset:{8192*w + 2048*u}")
    for j in range(0, 8, 2): a(f"v_pk_add_f32 v[{T+j}:{T+j+1}], v[{T+j}:{T+j+1}], v[{T+8+j}:{T+9+j}]")
    for j in range(0, 8, 2): a(f"v_pk_add_f32 v[{T+16+j}:{T+17+j}], v[{T+16+j}:{T+17+j}], v[{T+24+j}:{T+25+j}]")
    for j in range(0, 8, 2): a(f"v_pk_add_f32 v[{T+j}:{T+j+1}], v[{T+j}:{T+j+1}], v[{T+16+j}:{T+17+j}]")
    X = T + 8
    for j in range(4): a(f"v_lshlrev_b32 v{X+2*j}, 16, v{XR+j}\nv_and_b32 v{X+2*j+1}, 0xffff0000, v{XR+j}")
    for j in range(0, 8, 2): a(f"v_pk_fma_f32 v[{X+j}:{X+j+1}], v[{T+j}:{T+j+1}], v[{16+j}:{17+j}], v[{X+j}:{X+j+1}]")
    O = T + 16
    for j in range(4): a(f"v_cvt_pk_bf16_f32 v{O+j}, v{X+2*j}, v{X+2*j+1}")
    a(f"""s_add_u32 s22, s47, {X1_OFF}
buffer_store_dwordx2 v[{O}:{O+1}], v10, s[4:7], s22 offen sc1
buffer_store_dwordx2 v[{O+2}:{O+3}], v10, s[4:7], s22 offen offset:32 sc1""")
    for j in range(4): a(f"v_lshlrev_b32 v{X+2*j}, 16, v{O+j}\nv_and_b32 v{X+2*j+1}, 0xffff0000, v{O+j}")
    for j in range(0, 8, 2): a(f"v_pk_mul_f32 v[{T+j}:{T+j+1}], v[{X+j}:{X+j+1}], v[{24+j}:{25+j}]")
    for j in range(4): a(f"v_cvt_pk_bf16_f32 v{O+4+j}, v{T+2*j}, v{T+2*j+1}")
    a(f"""s_mul_i32 s22, s20, 40960
s_add_u32 s22, s22, s44
buffer_store_dwordx2 v[{O+4}:{O+5}], v11, s[4:7], s22 offen sc1
buffer_store_dwordx2 v[{O+6}:{O+7}], v11, s[4:7], s22 offen offset:512 sc1""")
    S = O + 8
    a(f"v_add_f32 v{S}, v{X}, v{X+1}\nv_mul_f32 v{S+1}, v{X}, v{X}")
    for j in range(2, 8): a(f"v_add_f32 v{S}, v{S}, v{X+j}")
    for j in range(1, 8): a(f"v_fmac_f32 v{S+1}, v{X+j}, v{X+j}")
    xlane(a, "v_add_f32", S, S + 2, False); xlane(a, "v_add_f32", S + 1, S + 3, False)
    a(f"""s_mul_i32 s22, s20, 5120
s_add_u32 s22, s22, s45
s_mov_b64 exec, 0xffff
buffer_store_dwordx2 v[{S}:{S+1}], v12, s[4:7], s22 offen sc1
s_mov_b64 exec, -1
v_xor_b32 v8, 32768, v8
v_xor_b32 v9, 32768, v9""")
    put_flag(a, 31, 36, 5, 15)
    stamp(a, 1); stamp_flush(a, 2, row_s=20)
    a(f"""s_add_u32 s20, s20, 2
s_cmp_lt_u32 s20, 64
s_cbranch_scc1 L_T_loop
s_endpgm""")

def role_f1(a):
    a.label("L_F1")
    a(f"""s_load_dwordx4 s[28:31], s[0:1], {K_W1}      ; w1, b1
s_lshr_b32 s20, s18, 3
s_and_b32 s33, s18, 7
s_mul_i32 s32, s33, 384
s_waitcnt lgkmcnt(0)""")
    srd(a, 8, 28, 640 * 3072); srd(a, 12, 30, 3072)
    loader(a, w_stages(8, 3072, 32, 'nat', lambda c, t, q: ('a', ((2*c + (q >> 1)) * 3 + t) * 4 + 2 * (q & 1))), 0, 16)
    C = 104
    a(f"""s_mul_i32 s22, s17, 96
s_add_u32 s22, s22, s32
v_lshlrev_b32 v4, 3, v2""")
    for t in range(3): a(f"buffer_load_dwordx2 v[{96+2*t}:{97+2*t}], v4, s[12:15], s22 offen offset:{32*t}")
    a(f"v_lshlrev_b32 v4, 5, v2\ns_mov_b32 s22, {MOD_OFF + 4*2560}\ns_mov_b32 s23, {MOD_OFF + 3*2560}")
    for half in range(4):
        for k5 in range(5):
            kk = 5 * half + k5
            for tt in range(2):
                for hh in range(2):
                    r = 128 + 16 * k5 + 8 * tt + 4 * hh
                    a(f"buffer_load_dwordx4 v[{r}:{r+3}], v4, s[4:7], s{22+tt} offen offset:{kk*128 + 16*hh}")
        for k5 in range(5):
            kk = 5 * half + k5
            for tt in range(2):
                r = 128 + 16 * k5 + 8 * tt; o = 16 + 8 * k5 + 4 * tt
                for j in range(4): a(f"v_cvt_pk_bf16_f32 v{o+j}, v{r+2*j}, v{r+2*j+1}")
                for t in range(3):
                    acc = C + 8 * t + 4 * tt
                    c = "0" if kk == 0 else f"v[{acc}:{acc+3}]"
                    a(f"v_mfma_f32_16x16x32_bf16 v[{acc}:{acc+3}], a[{(kk*3+t)*4}:{(kk*3+t)*4+3}], v[{o}:{o+3}], {c}")
    for t in range(3):
        a(f"""v_lshlrev_b32 v8, 16, v{96+2*t}
v_and_b32 v9, 0xffff0000, v{96+2*t}
v_lshlrev_b32 v10, 16, v{97+2*t}
v_and_b32 v11, 0xffff0000, v{97+2*t}""")
        for r in range(4): a(f"v_add_f32 v{C+8*t+4+r}, v{C+8*t+4+r}, v{8+r}")
    a(f"""v_lshlrev_b32 v4, 4, v1
s_mul_i32 s42, s17, 10240
v_add_u32 v5, s42, v4
v_mov_b32 v6, 0
v_mov_b32 v7, v4
v_and_b32 v8, 3, v1
v_min_u32 v15, 2, v2
v_lshl_add_u32 v8, v15, 3, v8
v_lshlrev_b32 v8, 8, v8
v_bfe_u32 v15, v1, 2, 2
v_lshl_add_u32 v8, v15, 6, v8
s_and_b32 s22, s20, 1
s_lshl_b32 s35, s22, 10
s_add_u32 s35, s35, {FLAG_OFF + ROLE_X1*8192}
v_mul_u32_u24 v9, 160, v3
v_mul_u32_u24 v15, 40, v2
v_add_u32 v9, v9, v15
s_mul_i32 s36, s33, 12288
s_mul_i32 s22, s17, 3072
s_add_u32 s36, s36, s22
s_add_u32 s36, s36, {G_OFF}
s_lshl_b32 s34, s18, 8
s_lshl_b32 s22, s17, 6
s_add_u32 s34, s34, s22
s_add_u32 s34, s34, {FLAG_OFF + ROLE_G*8192}
s_mov_b32 s28, 0
s_mov_b32 s44, {hex(f2u(-2.0 * math.sqrt(2.0 / math.pi) * math.log2(math.e)))}
s_mov_b32 s45, {hex(f2u(-2.0 * math.sqrt(2.0 / math.pi) * math.log2(math.e) * 0.044715))}
s_mov_b32 s46, {hex(f2u(1.0 / 640))}
s_mov_b32 s39, 0""")
    B = 16; ACC = 48; ST = 128
    a.label("L_F1_loop")
    a("s_add_u32 s31, s20, 1")
    wait_flags(a, "L_F1_w", 8, 35, 31)
    stamp(a, 0)
    a(f"s_mul_i32 s23, s20, 40960\ns_add_u32 s23, s23, {H2_OFF}\ns_add_u32 s22, s42, s28")
    for i in range(10):
        if i % 4 == 0: a(f"s_add_u32 m0, s22, {i*1024}\ns_add_u32 s26, s23, {i*1024}")
        a(f"buffer_load_dwordx4 v5, s[4:7], s26 offen offset:{(i%4)*1024} sc1 lds")
    a(f"s_mul_i32 s23, s20, 5120\ns_add_u32 s23, s23, {STAT_OFF}")
    for tt in range(2):
        r = ST + 12 * tt
        a(f"""buffer_load_dwordx4 v[{r}:{r+3}], v9, s[4:7], s23 offen offset:{2560*tt} sc1
buffer_load_dwordx4 v[{r+4}:{r+7}], v9, s[4:7], s23 offen offset:{2560*tt+16} sc1
buffer_load_dwordx2 v[{r+8}:{r+9}], v9, s[4:7], s23 offen offset:{2560*tt+32} sc1""")
    a("s_waitcnt vmcnt(6)\ns_barrier")
    def rd(kk):
        b = B + 8 * (kk % 4)
        return [f"ds_read_b128 v[{b}:{b+3}], v7 offset:{kk*1024}", f"ds_read_b128 v[{b+4}:{b+7}], v7 offset:{(20+kk)*1024}"]
    for x in rd(0) + rd(1): a(x)
    slots = []
    for kk in range(20):
        b = B + 8 * (kk % 4)
        for tt in range(2):
            for t in range(3):
                d = ACC + 8 * t + 4 * tt
                c = "0" if kk == 0 else f"v[{d}:{d+3}]"
                slots.append([f"v_mfma_f32_16x16x32_bf16 v[{d}:{d+3}], a[{(kk*3+t)*4}:{(kk*3+t)*4+3}], v[{b+4*tt}:{b+4*tt+3}], {c}", []])
    for kk in range(18):
        r = rd(kk + 2); slots[6*kk][1].append(r[0]); slots[6*kk + 1][1].append(r[1])
    sops = []
    for tt in range(2):
        r = ST + 12 * tt
        for j in (2, 4, 6, 8): sops += [f"v_add_f32 v{r}, v{r}, v{r+j}", f"v_add_f32 v{r+1}, v{r+1}, v{r+j+1}"]
        for sw in ("v_permlane16_swap_b32", "v_permlane32_swap_b32"):
            sops += [f"v_mov_b32 v{r+2}, v{r}", f"v_mov_b32 v{r+3}, v{r+1}", f"{sw} v{r+2}, v{r}", f"{sw} v{r+3}, v{r+1}",
                     f"v_add_f32 v{r}, v{r}, v{r+2}", f"v_add_f32 v{r+1}, v{r+1}, v{r+3}"]
        sops += [f"v_mul_f32 v{r}, s46, v{r}", f"v_mul_f32 v{r+2}, v{r}, v{r}", f"v_fma_f32 v{r+1}, v{r+1}, s46, -v{r+2}",
                 f"v_max_f32 v{r+1}, 0, v{r+1}", f"v_add_f32 v{r+1}, {hex(f2u(1e-5))}, v{r+1}", f"v_rsq_f32 v{r+1}, v{r+1}"]
    for j, x in enumerate(sops): slots[20 + (j * 3) // 2][1].append(x)
    km.emit_stream(a, slots)
    a("v_mov_b32 v92, s44")
    a(f"s_mul_i32 s23, s20, {8*12288}\ns_add_u32 s23, s23, s36")
    for t in range(3):
        for tt in range(2):
            b = ACC + 8 * t + 4 * tt; mu = ST + 12 * tt
            for r in range(4): a(f"v_fma_f32 v{b+r}, -v{mu}, v{C+8*t+r}, v{b+r}")
            for r in range(4): a(f"v_fma_f32 v{b+r}, v{b+r}, v{mu+1}, v{C+8*t+4+r}")
            for r in (0, 2): a(f"v_pk_mul_f32 v[{88+r}:{89+r}], v[{b+r}:{b+r+1}], v[{b+r}:{b+r+1}]")
            for r in range(4): a(f"v_fma_f32 v{88+r}, v{88+r}, s45, v92")
            for r in (0, 2): a(f"v_pk_mul_f32 v[{88+r}:{89+r}], v[{88+r}:{89+r}], v[{b+r}:{b+r+1}]")
            for r in range(4): a(f"v_exp_f32 v{88+r}, v{88+r}")
            for r in (0, 2): a(f"v_pk_add_f32 v[{88+r}:{89+r}], v[{88+r}:{89+r}], 1.0 op_sel_hi:[1,0]")
            for r in range(4): a(f"v_rcp_f32 v{88+r}, v{88+r}")
            for r in (0, 2): a(f"v_pk_mul_f32 v[{b+r}:{b+r+1}], v[{b+r}:{b+r+1}], v[{88+r}:{89+r}]")
        o = 72 + 4 * t; acc = ACC + 8 * t
        for j in range(4): a(f"v_cvt_pk_bf16_f32 v{o+j}, v{acc+2*j}, v{acc+2*j+1}")
        a(f"buffer_store_dwordx4 v[{o}:{o+3}], v4, s[4:7], s23 offen offset:{t*1024} sc1")
    a("s_xor_b32 s28, s28, 65536\nv_xor_b32 v7, 0x10000, v7")
    put_flag(a, 31, 34, 6, 15)
    stamp(a, 1); stamp_flush(a, 2, row_s=20)
    a(f"""s_add_u32 s20, s20, 8
s_cmp_lt_u32 s20, 64
s_cbranch_scc1 L_F1_loop
s_endpgm""")

def role_f2(a):
    a.label("L_F2")
    a(f"""s_load_dwordx4 s[28:31], s[0:1], {K_W2}      ; w2, b2
s_load_dwordx2 s[34:35], s[0:1], {K_OUT}
s_mul_i32 s20, s18, 6554
s_lshr_b32 s20, s20, 16
s_mul_i32 s3, s20, 10
s_sub_u32 s18, s18, s3
s_waitcnt lgkmcnt(0)""")
    srd(a, 8, 28, 1536 * 1280); srd(a, 12, 30, 1280); srd(a, 48, 34, 2048 * 1280)
    a(f"""v_lshrrev_b32 v8, 3, v1                 ; rho
v_and_b32 v9, 7, v1
v_lshrrev_b32 v10, 1, v9
v_lshrrev_b32 v11, 1, v8
v_xor_b32 v10, v10, v11
v_lshlrev_b32 v10, 5, v10
v_and_b32 v9, 1, v9
v_lshl_add_u32 v10, v9, 4, v10
v_mul_u32_u24 v8, 1280, v8
v_add_u32 v8, v8, v10
s_mul_i32 s32, s17, {384*1280}
s_lshl_b32 s22, s18, 7
s_add_u32 s32, s32, s22
s_mul_i32 s33, s17, 32768
v_bfe_u32 v9, v1, 2, 3
v_and_b32 v10, 3, v1
v_lshlrev_b32 v10, 3, v10
v_lshl_add_u32 v10, v9, 7, v10
v_lshrrev_b32 v9, 1, v9
v_lshrrev_b32 v11, 5, v1
v_lshl_add_u32 v10, v11, 10, v10
v_add_u32 v10, s33, v10
s_waitcnt vmcnt(0)""")
    for t in range(4): a(f"v_xor_b32 v11, {t}, v9\nv_lshl_add_u32 v{12+t}, v11, 5, v10")
    def piece(u):
        a(f"s_add_u32 m0, s33, {(u % 32)*1024}\ns_add_u32 s26, s32, {u*8*1280}\nbuffer_load_dwordx4 v8, s[8:11], s26 offen lds")
    for u in range(32): piece(u)
    issued = 32
    for q in range(24):
        a(f"s_waitcnt vmcnt({issued - 2*q - 2})")
        for t in range(4):
            r = ((q >> 1) * 4 + t) * 4 + 2 * (q & 1)
            a(f"ds_read_b64_tr_b16 a[{r}:{r+1}], v{12+t} offset:{((2*q) % 32)*1024}")
        if issued < 48:
            a("s_waitcnt lgkmcnt(0)")
            piece(issued); piece(issued + 1); issued += 2
    a("s_waitcnt lgkmcnt(0)\ns_barrier")
    a(f"""v_lshlrev_b32 v4, 4, v1
s_lshl_b32 s22, s18, 7
s_lshl_b32 s23, s17, 5
s_add_u32 s40, s22, s23
v_lshlrev_b32 v7, 3, v2
buffer_load_dwordx2 v[8:9], v7, s[12:15], s40 offen
v_lshlrev_b32 v7, 4, v2
s_lshl_b32 s22, s40, 1
s_add_u32 s22, s22, {MOD_OFF + 5*2560}
buffer_load_dwordx4 v[160:163], v7, s[4:7], s22 offen
v_mul_u32_u24 v6, 1280, v3
v_lshl_add_u32 v6, v2, 3, v6
v_lshlrev_b32 v16, 16, v8
v_and_b32 v17, 0xffff0000, v8
v_lshlrev_b32 v18, 16, v9
v_and_b32 v19, 0xffff0000, v9
s_lshl_b32 s22, s17, 13
v_add_u32 v5, s22, v4
s_lshl_b32 s22, s17, 11
v_add_u32 v10, s22, v4
s_mul_i32 s41, s17, 24576
s_add_u32 s41, s41, {G_OFF}
v_and_b32 v11, 7, v1
v_lshlrev_b32 v11, 6, v11
s_lshl_b32 s22, s17, 9
v_add_u32 v11, s22, v11
s_mov_b32 s39, 0
s_waitcnt vmcnt(0)""")
    GB = 64; ACC = 24
    a.label("L_F2_loop")
    a(f"""s_add_u32 s31, s20, 1
s_and_b32 s35, s20, 7
s_lshl_b32 s35, s35, 11
s_add_u32 s35, s35, {FLAG_OFF + ROLE_G*8192}""")
    wait_flags(a, "L_F2_w", 11, 35, 31)
    stamp(a, 0)
    a(f"s_mul_i32 s23, s20, {8*12288}\ns_add_u32 s23, s23, s41")
    for T in range(24):
        if T % 4 == 0: a(f"s_add_u32 s22, s23, {T*1024}")
        a(f"buffer_load_dwordx4 v[{GB+4*T}:{GB+4*T+3}], v4, s[4:7], s22 offen offset:{(T%4)*1024} sc1")
    a(f"""s_mul_i32 s23, s20, {32*1280}
s_add_u32 s42, s23, s40
s_add_u32 s43, s42, {16*1280}
s_add_u32 s22, s42, {X1_OFF}
buffer_load_dwordx2 v[20:21], v6, s[4:7], s22 offen sc1
s_add_u32 s22, s43, {X1_OFF}
buffer_load_dwordx2 v[22:23], v6, s[4:7], s22 offen sc1""")
    for p in range(12):
        b = GB + 8 * p
        a(f"v_swap_b32 v{b+2}, v{b+4}\nv_swap_b32 v{b+3}, v{b+5}")
        for t in range(4):
            for tt in range(2):
                acc = ACC + 8 * t + 4 * tt
                c = "0" if p == 0 else f"v[{acc}:{acc+3}]"
                a(f"v_mfma_f32_16x16x32_bf16 v[{acc}:{acc+3}], a[{(p*4+t)*4}:{(p*4+t)*4+3}], v[{b+4*tt}:{b+4*tt+3}], {c}")
    for j in range(8): a(f"ds_write_b128 v5, v[{ACC+4*j}:{ACC+4*j+3}] offset:{1024*j}")
    a("s_waitcnt lgkmcnt(0)\ns_barrier")
    for w in range(4):
        for tt in range(2): a(f"ds_read_b128 v[{64+8*w+4*tt}:{67+8*w+4*tt}], v10 offset:{8192*w + 1024*tt}")
    for j in range(0, 8, 2): a(f"v_pk_add_f32 v[{64+j}:{65+j}], v[{64+j}:{65+j}], v[{72+j}:{73+j}]\nv_pk_add_f32 v[{80+j}:{81+j}], v[{80+j}:{81+j}], v[{88+j}:{89+j}]")
    for j in range(0, 8, 2): a(f"v_pk_add_f32 v[{64+j}:{65+j}], v[{64+j}:{65+j}], v[{80+j}:{81+j}]")
    for tt in range(2):
        o = 64 + 4 * tt; x = 20 + 2 * tt
        for j in range(4): a(f"v_add_f32 v{o+j}, v{o+j}, v{16+j}")
        a(f"""v_lshlrev_b32 v72, 16, v{x}
v_and_b32 v73, 0xffff0000, v{x}
v_lshlrev_b32 v74, 16, v{x+1}
v_and_b32 v75, 0xffff0000, v{x+1}""")
        for j in range(4): a(f"v_fmac_f32 v{72+j}, v{o+j}, v{160+j}")
        a(f"""v_cvt_pk_bf16_f32 v{56+2*tt}, v72, v73
v_cvt_pk_bf16_f32 v{57+2*tt}, v74, v75
buffer_store_dwordx2 v[{56+2*tt}:{57+2*tt}], v6, s[48:51], s{42+tt} offen""")
    stamp(a, 1); stamp_flush(a, 2, row_s=20)
    a(f"""v_xor_b32 v5, 32768, v5
v_xor_b32 v10, 32768, v10
s_add_u32 s20, s20, 6
s_cmp_lt_u32 s20, 64
s_cbranch_scc1 L_F2_loop
s_endpgm""")
```

```python
import sys
sys.path.insert(0, 'gen')
import k_prep, k_main, k_post
NAME = "adaLN_cond__memory_aug_recurrent_mem_tr__dense_activation_gelu__prompt"
ref = open(f"cdna_kernels/{NAME}.s.ref").read()
head = [l for l in ref.split('\n') if l.startswith(';') and '@launch' not in l and 'Override launch' not in l and 'grid=ceil' not in l]
KD = """.amdhsa_kernel {name}
  .amdhsa_next_free_vgpr {vgpr}
  .amdhsa_next_free_sgpr {sgpr}
  .amdhsa_accum_offset {acc}
  .amdhsa_group_segment_fixed_size 0
  .amdhsa_kernarg_size 136
  .amdhsa_user_sgpr_count 2
  .amdhsa_user_sgpr_kernarg_segment_ptr 1
  .amdhsa_system_sgpr_workgroup_id_x 1
  .amdhsa_float_denorm_mode_32 3
.end_amdhsa_kernel
"""
def build(kernels, path):
    out = list(head)
    for (name, fn, grid, lds) in kernels:
        out.append(f"; @launch kernel={name} grid=({grid},1,1) block=(256,1,1) lds={lds}")
    out.append('.amdgcn_target "amdgcn-amd-amdhsa--gfx950"\n.text')
    kds = []; seen = set()
    for (name, fn, grid, lds) in kernels:
        if name in seen: continue
        seen.add(name)
        body, info = fn()
        out.append(f".globl {name}\n.p2align 8\n.type {name},@function\n{name}:")
        out.append(body)
        acc = info.get('acc', (info['vgpr'] + 3) // 4 * 4)
        kds.append(".p2align 6\n" + KD.format(name=name, vgpr=info['vgpr'], sgpr=info['sgpr'], acc=acc))
    out.append('.section .rodata,"a"')
    out += kds
    open(path, 'w').write('\n'.join(out))
KERNELS = [
    ("mod_kernel", k_prep.gen_mod, 62, 8192),
    ("ln1_kernel", k_prep.gen_ln1, 128 + k_prep.N_INIT, 0),
    ("main_kernel", k_main.gen_main, 256, 163840),
]
if __name__ == "__main__":
    build(KERNELS, sys.argv[1] if len(sys.argv) > 1 else f"cdna_kernels/{NAME}.s")
```

```python
from asmgen import Asm
from layout import *
from k_prep import srd, f2u, round_bf16
from k_main import spin_guard, stamp, stamp_flush
import k_main as km

CAL_OFF = 0xA0000
DBG = 96
CNT_MOD, CNT_HEAD = 0, 128

def wait_head(a, lbl, vt):
    a(f"s_branch {lbl}_in")
    a.label(lbl)
    a("s_sleep 2")
    a.label(lbl + "_in")
    a(f"buffer_load_dword v{vt}, off, s[{DBG}:{DBG+3}], 0 offset:{CNT_HEAD} sc1")
    spin_guard(a, 39)
    a(f"""s_waitcnt vmcnt(0)
v_readfirstlane_b32 s19, v{vt}
s_nop 0
s_and_b32 s22, s19, 255
s_cmp_lg_u32 s22, 64
s_cbranch_scc1 {lbl}
s_and_b32 s19, s19, 256
s_lshl_b32 s19, s19, 5""")

def role_head(a):
    a.label("L_H")
    a(f"""s_load_dwordx4 s[28:31], s[0:1], {K_X}       ; x, mem0
s_load_dwordx4 s[32:35], s[0:1], {K_C}       ; c, w_mod
s_mov_b32 s39, 0
s_mov_b32 s43, 1
s_waitcnt lgkmcnt(0)""")
    srd(a, 8, 28, 2048 * 1280); srd(a, 12, 30, 8 * 1280); srd(a, 44, 32, 1280); srd(a, 48, 34, 640 * 7680)
    RAW = 200
    a(f"""v_lshrrev_b32 v4, 4, v0
v_mul_u32_u24 v5, 1280, v4
v_lshl_add_u32 v5, v3, 4, v5
s_mul_i32 s36, s18, {32*1280}
s_add_u32 s37, s36, {16*1280}
s_cmp_ge_u32 s18, 60
s_cbranch_scc1 L_H_nomod
v_lshrrev_b32 v6, 3, v0
v_and_b32 v7, 7, v0
v_mul_u32_u24 v28, 7680, v6
v_lshl_add_u32 v28, v7, 4, v28
s_lshl_b32 s3, s18, 7
v_lshlrev_b32 v29, 1, v6""")
    for i in range(20):
        a(f"s_add_u32 s24, s3, {i*32*7680}\nbuffer_load_dwordx4 v[{32+4*i}:{35+4*i}], v28, s[48:51], s24 offen {km.PH}")
    for i in range(20):
        a(f"buffer_load_ushort v{8+i}, v29, s[44:47], 0 offen offset:{64*i}")
    def xloads():
        for tt in range(2):
            for i in range(5):
                a(f"buffer_load_dwordx4 v[{RAW+20*tt+4*i}:{RAW+20*tt+4*i+3}], v5, s[8:11], s{36+tt} offen offset:{256*i}")
    xloads()
    for i in range(20):
        r = 8 + i
        a(f"""v_lshlrev_b32 v{r}, 16, v{r}
v_mul_f32 v30, 0xbfb8aa3b, v{r}
v_exp_f32 v30, v30
v_add_f32 v30, 1.0, v30
v_rcp_f32 v30, v30
v_mul_f32 v{r}, v{r}, v30""")
        round_bf16(a, r, 30)
    stamp(a, 3)
    for j in range(8): a(f"v_mov_b32 v{112+j}, 0")
    for i in range(20):
        for j in range(4):
            w = 32 + 4 * i + j
            a(f"""v_lshlrev_b32 v30, 16, v{w}
v_and_b32 v31, 0xffff0000, v{w}
v_fmac_f32 v{112+2*j}, v30, v{8+i}
v_fmac_f32 v{113+2*j}, v31, v{8+i}""")
    a(f"""v_lshlrev_b32 v30, 5, v0
ds_write_b128 v30, v[112:115]
ds_write_b128 v30, v[116:119] offset:16
s_waitcnt lgkmcnt(0)
s_barrier
s_cmp_lg_u32 s17, 0
s_cbranch_scc1 L_H_init
v_lshlrev_b32 v30, 2, v0""")
    for i in range(32): a(f"ds_read_b32 v{32+i}, v30 offset:{256*i}")
    for st in (16, 8, 4, 2, 1):
        for i in range(st): a(f"v_add_f32 v{32+i}, v{32+i}, v{32+st+i}")
    round_bf16(a, 32, 31)
    a(f"""s_mov_b32 s24, 0
s_sub_u32 s25, s18, 10
s_cmp_lt_u32 s25, 10
s_cselect_b32 s24, 1.0, s24
s_sub_u32 s25, s18, 40
s_cmp_lt_u32 s25, 10
s_cselect_b32 s24, 1.0, s24
v_add_f32 v32, s24, v32""")
    round_bf16(a, 32, 31)
    a(f"""s_lshl_b32 s3, s18, 8
buffer_store_dword v32, v30, s[4:7], s3 offen offset:{MOD_OFF} sc1
s_cmp_ge_u32 s18, 20
s_cbranch_scc1 L_H_init
v_mov_b32 v31, 1
s_waitcnt vmcnt(0)
s_mov_b64 exec, 1
buffer_atomic_add v31, off, s[{DBG}:{DBG+3}], 0 offset:{CNT_MOD}
s_mov_b64 exec, -1
s_branch L_H_init""")
    a.label("L_H_nomod")
    xloads()
    a(f"""s_cmp_lg_u32 s18, 63
s_cbranch_scc1 L_H_init
s_cmp_lg_u32 s17, 0
s_cbranch_scc1 L_H_init
v_and_b32 v6, 15, v0
v_lshlrev_b32 v6, 8, v6
v_bfe_u32 v7, v0, 4, 1
v_lshl_add_u32 v6, v7, 13, v6
s_mov_b32 s24, {CAL_OFF}
buffer_load_dword v7, v6, s[4:7], s24 offen sc1
s_waitcnt vmcnt(0)
buffer_store_dword v7, v6, s[4:7], s24 offen sc1
s_waitcnt vmcnt(0)
s_mov_b32 s40, -1
s_mov_b32 s41, -1
s_mov_b32 s42, {CAL_OFF}
s_mov_b64 exec, 1""")
    a.label("L_H_cal")
    for hf in range(2):
        a(f"""s_add_u32 s24, s42, {hf*8192}
s_memtime s[52:53]
s_waitcnt lgkmcnt(0)
buffer_load_dword v7, off, s[4:7], s24 sc1
s_waitcnt vmcnt(0)
s_memtime s[54:55]
s_waitcnt lgkmcnt(0)
s_sub_u32 s54, s54, s52
s_min_u32 s{40+hf}, s{40+hf}, s54""")
    a(f"""s_add_u32 s42, s42, 256
s_cmp_lt_u32 s42, {CAL_OFF + km.NCAL*256}
s_cbranch_scc1 L_H_cal
s_mov_b64 exec, -1
s_cmp_lt_u32 s40, s41
s_cselect_b32 s24, 0, 256
s_getreg_b32 s25, hwreg(HW_REG_XCC_ID, 0, 4)
s_and_b32 s25, s25, 4
s_lshl_b32 s25, s25, 6
s_xor_b32 s24, s24, s25
s_add_u32 s43, s24, 1""")
    if km.STAMP:
        a(f"v_mov_b32 v6, s40\nv_mov_b32 v7, s41\ns_mov_b32 s24, {PAR_OFF}\nbuffer_store_dwordx2 v[6:7], off, s[4:7], s24 offset:4")
    a.label("L_H_init")
    stamp(a, 4)
    a(f"""v_lshlrev_b32 v6, 4, v0
v_lshlrev_b32 v7, 2, v0
v_mov_b32 v8, {hex(SENT)}
v_mov_b32 v9, v8
v_mov_b32 v10, v8
v_mov_b32 v11, v8
v_mov_b32 v12, 0
s_lshl_b32 s24, s18, 10
s_add_u32 s24, s24, {FLAG_OFF}
buffer_store_dword v12, v7, s[4:7], s24 offen sc1
s_lshr_b32 s24, s18, 5
s_lshl_b32 s24, s24, 20
s_and_b32 s25, s18, 31
s_mul_i32 s25, s25, 20480
s_add_u32 s24, s24, s25
s_add_u32 s24, s24, {Y_OFF}""")
    for i in range(5): a(f"s_add_u32 s25, s24, {4096*i}\nbuffer_store_dwordx4 v[8:11], v6, s[4:7], s25 offen sc1")
    a(f"s_lshl_b32 s24, s18, 16\ns_add_u32 s24, s24, {MP_OFF}\ns_cmp_eq_u32 s18, 0\ns_cbranch_scc1 L_H_mem0")
    for i in range(16): a(f"s_add_u32 s25, s24, {4096*i}\nbuffer_store_dwordx4 v[8:11], v6, s[4:7], s25 offen sc1")
    a("s_branch L_H_ln")
    a.label("L_H_mem0")
    for i in range(3):
        a(f"""v_add_u32 v13, {256*i}, v0
v_bfe_u32 v14, v13, 1, 3
v_mul_u32_u24 v14, 1280, v14
v_lshrrev_b32 v15, 4, v13
v_lshl_add_u32 v14, v15, 5, v14
v_and_b32 v15, 1, v13
v_lshl_add_u32 v14, v15, 4, v14
v_cmp_gt_u32 vcc, 640, v13
v_cndmask_b32 v14, -1, v14, vcc
buffer_load_dwordx4 v[{16+4*i}:{19+4*i}], v14, s[12:15], 0 offen""")
    a("v_mov_b32 v13, 0xffc0ffc0")
    for r in range(16, 28): a(f"v_cmp_eq_u32 vcc, v{r}, v8\nv_cndmask_b32 v{r}, v{r}, v13, vcc")
    a("v_cmp_gt_u32 vcc, 128, v0")
    for r in range(24, 28): a(f"v_cndmask_b32 v{r}, v8, v{r}, vcc")
    for i in range(16):
        lg = (i >> 2) * 2 + (i & 1)
        src = f"v[{16+4*lg}:{19+4*lg}]" if lg < 3 else "v[8:11]"
        a(f"s_add_u32 s25, s24, {4096*i}\nbuffer_store_dwordx4 {src}, v6, s[4:7], s25 offen sc1")
    a.label("L_H_ln")
    a("s_waitcnt vmcnt(22)")
    for tt in range(2):
        X = 32 + 40 * tt
        for i in range(20): a(f"v_lshlrev_b32 v{X+2*i}, 16, v{RAW+20*tt+i}\nv_and_b32 v{X+2*i+1}, 0xffff0000, v{RAW+20*tt+i}")
        def rowsum(v):
            for sh in (8, 4, 2, 1): a(f"v_add_f32_dpp v{v}, v{v}, v{v} row_ror:{sh} row_mask:0xf bank_mask:0xf")
        a(f"v_pk_add_f32 v[28:29], v[{X}:{X+1}], v[{X+2}:{X+3}]")
        for i in range(4, 40, 2): a(f"v_pk_add_f32 v[28:29], v[28:29], v[{X+i}:{X+i+1}]")
        a("v_add_f32 v28, v28, v29")
        rowsum(28)
        a(f"v_mul_f32 v28, {hex(f2u(-1.0/640))}, v28")
        for i in range(0, 40, 2): a(f"v_pk_add_f32 v[{X+i}:{X+i+1}], v[{X+i}:{X+i+1}], v[28:29] op_sel_hi:[1,0]")
        a(f"v_pk_mul_f32 v[28:29], v[{X}:{X+1}], v[{X}:{X+1}]")
        for i in range(2, 40, 2): a(f"v_pk_fma_f32 v[28:29], v[{X+i}:{X+i+1}], v[{X+i}:{X+i+1}], v[28:29]")
        a("v_add_f32 v28, v28, v29")
        rowsum(28)
        a(f"""v_mov_b32 v30, {hex(f2u(1e-5))}
v_fmac_f32 v30, {hex(f2u(1.0/640))}, v28
v_rsq_f32 v30, v30""")
        for i in range(0, 40, 2): a(f"v_pk_mul_f32 v[{X+i}:{X+i+1}], v[{X+i}:{X+i+1}], v[30:31] op_sel_hi:[1,0]")
    stamp(a, 5)
    a("s_branch L_H_wm_in")
    a.label("L_H_wm")
    a("s_sleep 2")
    a.label("L_H_wm_in")
    a(f"buffer_load_dword v28, off, s[{DBG}:{DBG+3}], 0 offset:{CNT_MOD} sc1")
    spin_guard(a, 39)
    a(f"""s_waitcnt vmcnt(0)
v_cmp_gt_u32 vcc, 20, v28
s_cbranch_vccnz L_H_wm
v_lshlrev_b32 v28, 5, v3
s_mov_b32 s24, {MOD_OFF}
s_mov_b32 s25, {MOD_OFF + 2560}""")
    stamp(a, 6)
    for i in range(5):
        for hf in range(2):
            a(f"buffer_load_dwordx4 v[{112+8*i+4*hf}:{115+8*i+4*hf}], v28, s[4:7], s24 offen offset:{512*i+16*hf} sc1")
            a(f"buffer_load_dwordx4 v[{152+8*i+4*hf}:{155+8*i+4*hf}], v28, s[4:7], s25 offen offset:{512*i+16*hf} sc1")
    a(f"""v_lshrrev_b32 v6, 2, v3
v_lshlrev_b32 v6, 10, v6
v_and_b32 v7, 3, v3
v_lshl_add_u32 v6, v7, 8, v6
v_lshl_add_u32 v6, v4, 4, v6
s_mul_i32 s3, s18, 40960
s_add_u32 s3, s3, {HF_OFF}""")
    for i in range(5):
        for tt in range(2):
            X = 32 + 40 * tt + 8 * i; O = RAW + 20 * tt + 4 * i
            for j in range(0, 8, 2): a(f"v_pk_fma_f32 v[{X+j}:{X+j+1}], v[{X+j}:{X+j+1}], v[{152+8*i+j}:{153+8*i+j}], v[{112+8*i+j}:{113+8*i+j}]")
            for j in range(4): a(f"v_cvt_pk_bf16_f32 v{O+j}, v{X+2*j}, v{X+2*j+1}")
            a(f"s_add_u32 s24, s3, {20480*tt + 4096*i}\nbuffer_store_dwordx4 v[{O}:{O+3}], v6, s[4:7], s24 offen sc1")
    stamp(a, 7)
    a(f"""v_mov_b32 v31, s43
s_waitcnt vmcnt(0)
s_barrier
s_cmp_lg_u32 s17, 0
s_cbranch_scc1 L_H_done
s_mov_b64 exec, 1
buffer_atomic_add v31, off, s[{DBG}:{DBG+3}], 0 offset:{CNT_HEAD}
s_mov_b64 exec, -1""")
    a.label("L_H_done")
    stamp(a, 1)
    wait_head(a, "L_H_wh", 28)
    stamp(a, 2); stamp_flush(a, 8, row=64)
```

```python
from asmgen import Asm
from layout import *
from k_prep import srd, f2u
import math

import os
STAMP = bool(os.environ.get('STAMP'))
ST_OFF = 244 * MB
def stamp(a, i):
    if STAMP: a(f"{'s_memtime' if os.environ.get('STAMP') == '2' else 's_memrealtime'} s[{76+2*i}:{77+2*i}]")
def stamp_flush(a, n, row_s=None, row=None, tmp=15):
    if not STAMP: return
    a("s_waitcnt lgkmcnt(0)\ns_lshl_b32 s92, s16, 2\ns_add_u32 s92, s92, s17\ns_mul_i32 s92, s92, 66")
    a(f"s_add_u32 s92, s92, s{row_s}" if row_s is not None else f"s_add_u32 s92, s92, {row}")
    a(f"s_lshl_b32 s92, s92, 5\ns_add_u32 s92, s92, {ST_OFF}\ns_mov_b64 exec, 1")
    for i in range(n): a(f"v_mov_b32 v{tmp}, s{76+2*i}\nbuffer_store_dword v{tmp}, off, s[4:7], s92 offset:{4*i}")
    a("s_mov_b64 exec, -1")
SLOT = 24576
NCAL = 8
PW = os.environ.get('PW', ''); PA = os.environ.get('PA', ''); PH = os.environ.get('PH', '')
DW = int(os.environ.get('DW', 5)); DA = int(os.environ.get('DA', 5))
SPIN_MAX = 200000

def R(kind, i, n=1):
    return f"{kind}{i}" if n == 1 else f"{kind}[{i}:{i+n-1}]"

def lane_decomp(a):
    a("""v_and_b32 v1, 63, v0
v_lshrrev_b32 v2, 4, v1
v_and_b32 v3, 15, v1""")

def loader(a, stages, shift, tmp, stampload=False, depth=5, pol=''):
    vW = {}; need = {(s['kind'], s['style'], s['stride']) for s in stages}
    t = tmp
    rho, pi, swz, x, y = t, t + 1, t + 2, t + 3, t + 4
    a(f"""v_lshrrev_b32 v{rho}, 3, v1
v_and_b32 v{pi}, 7, v1
v_lshrrev_b32 v{x}, 1, v{pi}
v_lshrrev_b32 v{y}, 1, v{rho}
v_xor_b32 v{x}, v{x}, v{y}
v_lshlrev_b32 v{swz}, 5, v{x}
v_and_b32 v{x}, 1, v{pi}
v_lshl_add_u32 v{swz}, v{x}, 4, v{swz}""")
    nxt = t + 5
    for key in sorted(need):
        kind, style, stride = key
        v = nxt; nxt += 1; vW[key] = v
        if style == 'nat':
            a(f"v_lshrrev_b32 v{x}, 2, v{rho}\nv_and_b32 v{y}, 3, v{rho}\nv_lshl_add_u32 v{v}, v{x}, 3, v{y}")
        elif style == 'sp':
            a(f"v_bfe_u32 v{x}, v{rho}, 1, 1\nv_lshlrev_b32 v{v}, 3, v{x}\nv_lshrrev_b32 v{x}, 2, v{rho}\nv_lshl_add_u32 v{v}, v{x}, 2, v{v}\nv_and_b32 v{x}, 1, v{rho}\nv_add_u32 v{v}, v{v}, v{x}")
        else:
            a(f"v_mov_b32 v{v}, v{rho}")
        if kind == 'W':
            if style == 'lin':
                a(f"s_lshl_b32 s22, s17, 4")
            else:
                a(f"s_lshr_b32 s22, s17, 1\ns_lshl_b32 s22, s22, 5\ns_and_b32 s23, s17, 1\ns_lshl_b32 s23, s23, {2 if style == 'nat' else 1}\ns_add_u32 s22, s22, s23")
            a(f"v_add_u32 v{v}, s22, v{v}\ns_mov_b32 s22, {stride}\nv_mul_lo_u32 v{v}, v{v}, s22\nv_add_u32 v{v}, v{v}, v{swz}")
        else:
            a(f"s_and_b32 s22, s17, 1\ns_lshl_b32 s22, s22, {3 if style == 'lin' else 4}\nv_add_u32 v{v}, s22, v{v}\ns_mov_b32 s22, {stride}\nv_mul_lo_u32 v{v}, v{v}, s22\nv_add_u32 v{v}, v{v}, v{swz}")
            a(f"s_lshr_b32 s22, s17, 1\ns_mul_i32 s22, s22, 640\nv_add_u32 v{v}, s22, v{v}")
    a("s_mul_i32 s24, s17, 6144\ns_and_b32 s25, s17, 1\ns_mul_i32 s25, s25, 10240\ns_lshr_b32 s22, s17, 1\ns_mul_i32 s22, s22, 5120\ns_add_u32 s25, s25, s22")
    kinds = {s['kind'] for s in stages}
    aW = aO = None
    rr, cc = rho, pi
    a(f"""v_bfe_u32 v{rr}, v1, 2, 3               ; 4*(g&1) + r
v_and_b32 v{cc}, 3, v1
v_lshlrev_b32 v{cc}, 3, v{cc}
v_lshl_add_u32 v{cc}, v{rr}, 7, v{cc}      ; rho*128 + c*8
v_lshrrev_b32 v{rr}, 1, v{rr}              ; rho>>1
v_lshrrev_b32 v{y}, 5, v1                 ; gh""")
    def tile_addrs(n, ghmul):
        nonlocal nxt
        base = nxt; nxt += n
        for tt in range(n):
            a(f"""s_mul_i32 s22, s17, {n}
s_add_u32 s22, s22, {tt}
s_and_b32 s23, s22, 3
s_lshr_b32 s22, s22, 2
s_lshl_b32 s22, s22, 10
v_xor_b32 v{x}, s23, v{rr}
v_lshl_add_u32 v{base+tt}, v{x}, 5, v{cc}
v_add_u32 v{base+tt}, s22, v{base+tt}
v_mul_u32_u24 v{x}, {ghmul}, v{y}
v_add_u32 v{base+tt}, v{base+tt}, v{x}""")
        return base
    if 'W' in kinds: aW = tile_addrs(3, 3072)
    if 'O' in kinds: aO = tile_addrs(10, 10240)
    cur = nxt; nxt += 10
    assert nxt <= tmp + 34, nxt - tmp
    cnt = [6 if s['kind'] == 'W' else 5 for s in stages]
    def issue(n):
        s = stages[n]; slot = ((n + shift) % 6) * SLOT
        v = vW[(s['kind'], s['style'], s['stride'])]
        for i in range(cnt[n]):
            if s['kind'] == 'W':
                gh, cb = divmod(i, 3)
                rows = s['row0'] + (8 if s['style'] == 'lin' else 16) * gh
                off = rows * s['stride'] + cb * 128
                a(f"s_add_u32 m0, s24, {slot + i*1024}")
            else:
                off = s['row0'] * s['stride'] + i * 128
                a(f"s_add_u32 m0, s25, {slot + i*1024}")
            a(f"s_add_u32 s26, s{s['col']}, {off}\nbuffer_load_dwordx4 v{v}, s[{s['srd']}:{s['srd']+3}], s26 offen {pol} lds")
    N = len(stages)
    for n in range(min(depth, N)): issue(n)
    for n in range(N):
        s = stages[n]
        if s['dests'] is None and all(x['dests'] is None for x in stages[n:]) and n + depth >= N:
            break
        later = sum(cnt[n+1:min(n+depth, N)])
        a(f"s_waitcnt vmcnt({later})\ns_barrier")
        if n + depth < N: issue(n + depth)
        if s['dests'] is None: continue
        slot = ((n + shift) % 6) * SLOT
        nt = 3 if s['kind'] == 'W' else 10
        base = aW if s['kind'] == 'W' else aO
        for tt in range(nt): a(f"v_add_u32 v{cur+tt}, {slot}, v{base+tt}")
        for tt in range(nt):
            for q in range(4 if s['kind'] == 'W' else 1):
                k, r = s['dests'](tt, q)
                a(f"ds_read_b64_tr_b16 {R(k, r, 2)}, v{cur+tt} offset:{q*6144}")
        a("s_waitcnt lgkmcnt(0)")
    a("s_waitcnt vmcnt(0)\ns_barrier")
    res = [n for n in range(N) if stages[n]['dests'] is None]
    if res:
        fb = tmp + 36
        a(f"s_mul_i32 s22, s17, 6144\nv_lshlrev_b32 v{x}, 4, v1\nv_add_u32 v{x}, s22, v{x}")
        for n in res:
            slot = ((n + shift) % 6) * SLOT
            for tt in range(3): a(f"v_add_u32 v{cur+tt}, {slot}, v{aW+tt}")
            a(f"v_add_u32 v{cur+3}, {slot}, v{x}")
            for tt in range(3):
                for q in range(4): a(f"ds_read_b64_tr_b16 v[{fb+8*tt+2*q}:{fb+8*tt+2*q+1}], v{cur+tt} offset:{q*6144}")
            a("s_waitcnt lgkmcnt(0)\ns_barrier")
            for j in range(6): a(f"ds_write_b128 v{cur+3}, v[{fb+4*j}:{fb+4*j+3}] offset:{j*1024}")
            a("s_waitcnt lgkmcnt(0)")
    if STAMP and stampload:
        stamp(a, 1); a("s_memtime s[80:81]"); stamp_flush(a, 3, row=64, tmp=tmp); a("s_waitcnt vmcnt(0)")
    if stampload:
        import k_head
        loader.n = getattr(loader, 'n', 0) + 1
        k_head.wait_head(a, f"L_wh{loader.n}", tmp)
    return aW

def spin_guard(a, s):
    a(f"s_add_u32 s{s}, s{s}, 1\ns_cmp_gt_u32 s{s}, {SPIN_MAX}\ns_cbranch_scc1 L_exit")

def flag_addr(a, dst_s, role, head_s, wave_s=None):
    a(f"s_lshl_b32 s{dst_s}, s{head_s}, 8\ns_add_u32 s{dst_s}, s{dst_s}, {FLAG_OFF + role*32*256}")
    if wave_s is not None:
        a(f"s_lshl_b32 s22, s{wave_s}, 6\ns_add_u32 s{dst_s}, s{dst_s}, s22")

def proj_loop(a, pfx, src_off, seg0_s, nseg, out_base_s, sc, epilogue, flag_s=None, segstride=32*12288):
    HS = 40960
    a(f"""v_lshlrev_b32 v4, 4, v1                 ; lane*16
s_mul_i32 s22, s17, 10240
v_add_u32 v5, s22, v4
v_mov_b32 v6, 0
s_mov_b32 s28, 0
s_mov_b32 s29, {HS}                     ; next
s_mov_b32 s30, {2*HS}                   ; next-next""")
    def dma(seg_s, slot_s):
        a(f"s_min_u32 s23, s{seg_s}, 63\ns_mul_i32 s23, s23, {HS}\ns_add_u32 s23, s23, {src_off}\ns_mul_i32 s22, s17, 10240\ns_add_u32 s22, s22, s{slot_s}")
        for i in range(10):
            if i % 4 == 0:
                a(f"s_add_u32 m0, s22, {i*1024}\ns_add_u32 s26, s23, {i*1024}")
            a(f"buffer_load_dwordx4 v5, s[4:7], s26 offen offset:{(i%4)*1024} lds")
    dma(20, 28)
    a("s_add_u32 s31, s20, 1"); dma(31, 29)
    a("s_waitcnt vmcnt(10)")
    a.label(pfx + "_loop")
    a("s_barrier\ns_add_u32 s31, s20, 2")
    dma(31, 30)
    a("v_add_u32 v7, s28, v4")
    B = 16; ACC = 48
    def rd(kk):
        b = B + 8 * (kk % 3)
        a(f"ds_read_b128 v[{b}:{b+3}], v7 offset:{kk*1024}\nds_read_b128 v[{b+4}:{b+7}], v7 offset:{(20+kk)*1024}")
    rd(0); rd(1)
    for kk in range(20):
        if kk + 2 < 20: rd(kk + 2)
        b = B + 8 * (kk % 3)
        for tt in range(2):
            for t in range(3):
                acc = ACC + 8 * t + 4 * tt
                c = "0" if kk == 0 else f"v[{acc}:{acc+3}]"
                a(f"v_mfma_f32_16x16x32_bf16 v[{acc}:{acc+3}], a[{(kk*3+t)*4}:{(kk*3+t)*4+3}], v[{b+4*tt}:{b+4*tt+3}], {c}")
        if kk == 10:
            a("s_waitcnt vmcnt(10)")
            if flag_s is not None:
                a(f"v_mov_b32 v8, s20\ns_mov_b64 exec, 1\nbuffer_store_dword v8, v6, s[4:7], s{flag_s} offen sc1\ns_mov_b64 exec, -1")
    epilogue(a, ACC)
    a(f"s_mul_i32 s23, s20, {segstride}\ns_add_u32 s23, s23, s{out_base_s}")
    for t in range(3):
        o = 72 + 4 * t; acc = ACC + 8 * t
        for j in range(4): a(f"v_cvt_pk_bf16_f32 v{o+j}, v{acc+2*j}, v{acc+2*j+1}")
        a(f"buffer_store_dwordx4 v[{o}:{o+3}], v4, s[4:7], s23 offen offset:{t*1024} {sc}")
    a(f"""s_mov_b32 s22, s28
s_mov_b32 s28, s29
s_mov_b32 s29, s30
s_mov_b32 s30, s22
s_add_u32 s20, s20, 1
s_cmp_lt_u32 s20, s21
s_cbranch_scc1 {pfx}_loop
s_waitcnt vmcnt(0)""")
    if flag_s is not None:
        a(f"v_mov_b32 v8, s20\ns_mov_b64 exec, 1\nbuffer_store_dword v8, v6, s[4:7], s{flag_s} offen sc1\ns_mov_b64 exec, -1")

def proj_stream(a, pfx, src_off, out_base_s, flag_s):
    HS = 40960
    a(f"""v_lshlrev_b32 v4, 4, v1                 ; lane*16
s_mul_i32 s42, s17, 10240
v_add_u32 v5, s42, v4
v_mov_b32 v6, 0""")
    def dma_ops(seg_s, slot_s):
        ops = [[f"s_min_u32 s23, s{seg_s}, 63", f"s_mul_i32 s23, s23, {HS}", f"s_add_u32 s23, s23, {src_off}", f"s_add_u32 s22, s42, s{slot_s}"]]
        for i in range(10):
            o = []
            if i % 4 == 0: o += [f"s_add_u32 m0, s22, {i*1024}", f"s_add_u32 s26, s23, {i*1024}"]
            o.append(f"buffer_load_dwordx4 v5, s[4:7], s26 offen offset:{(i%4)*1024} sc1 lds")
            ops.append(o)
        return ops
    for j in range(3):
        a(f"s_mov_b32 s31, {j}\ns_mov_b32 s30, {j*HS}")
        for o in dma_ops(31, 30):
            for x in o: a(x)
    B = 16; ACCS = (48, 72); O = 96
    def rd(kk, ad):
        b = B + 8 * (kk % 4)
        return [f"ds_read_b128 v[{b}:{b+3}], v{ad} offset:{(kk%20)*1024}", f"ds_read_b128 v[{b+4}:{b+7}], v{ad} offset:{(20+kk%20)*1024}"]
    a(f"""s_mov_b32 s28, 0
s_mov_b32 s43, s{out_base_s}
v_mov_b32 v7, v4
s_waitcnt vmcnt(20)
s_barrier""")
    for x in rd(0, 7) + rd(1, 7): a(x)
    a("s_waitcnt lgkmcnt(0)")
    def epi_ops(acc):
        ops = []
        for t in range(3):
            o = O + 4 * t
            for j in range(4): ops.append(f"v_cvt_pk_bf16_f32 v{o+j}, v{acc+8*t+2*j}, v{acc+8*t+2*j+1}")
            ops.append(f"buffer_store_dwordx4 v[{o}:{o+3}], v4, s[4:7], s43 offen offset:{t*1024} sc1")
        return ops
    def body(par, first):
        acc = ACCS[par]; cur = 7 + par; nxt = 8 - par
        slots = []
        for kk in range(20):
            b = B + 8 * (kk % 4)
            for tt in range(2):
                for t in range(3):
                    d = acc + 8 * t + 4 * tt
                    c = "0" if kk == 0 else f"v[{d}:{d+3}]"
                    slots.append([f"v_mfma_f32_16x16x32_bf16 v[{d}:{d+3}], a[{(kk*3+t)*4}:{(kk*3+t)*4+3}], v[{b+4*tt}:{b+4*tt+3}], {c}", []])
        for kk in range(20):
            r = rd(kk + 2, cur if kk + 2 < 20 else nxt)
            slots[6*kk][1].append(r[0]); slots[6*kk + 1][1].append(r[1])
        if not first:
            for j, x in enumerate(epi_ops(ACCS[1 - par])): slots[3 + 2*j][1].append(x)
            slots[32][1].append(f"s_add_u32 s43, s43, {32*12288}")
        nst = 0 if first else 3
        slots[33][1] += [f"s_add_u32 s29, s28, {HS}", f"s_cmp_eq_u32 s29, {4*HS}", "s_cselect_b32 s29, 0, s29"]
        slots[34][1] += [f"v_add_u32 v{nxt}, s29, v4", "v_mov_b32 v9, s20"]
        slots[35][1] += [f"s_waitcnt vmcnt({10 + nst})", "s_barrier"]
        slots[38][1] += [f"s_add_u32 s30, s28, {3*HS}", f"s_sub_u32 s31, s30, {4*HS}", f"s_cmp_ge_u32 s30, {4*HS}"]
        slots[39][1] += ["s_cselect_b32 s30, s31, s30", "s_add_u32 s31, s20, 3"]
        ops = dma_ops(31, 30)
        slots[40][1] += ops[0][:2]; slots[41][1] += ops[0][2:]
        for i in range(10): slots[(44, 47, 51, 56, 59, 63, 68, 71, 75, 80)[i]][1] += ops[1 + i]
        return slots
    def flag(n):
        return [f"s_waitcnt vmcnt({n})", "s_mov_b64 exec, 1", f"buffer_store_dword v9, v6, s[4:7], s{flag_s} offen sc1", "s_mov_b64 exec, -1"]
    def emit(par, first):
        sl = body(par, first)
        if not first: sl[93][1] += flag(10)
        for mf, fl in sl:
            a(mf)
            fl = sorted(fl, key=lambda x: 1 if x.startswith('v_') else 0)
            for f in fl: a(f)
        a("s_mov_b32 s28, s29\ns_add_u32 s20, s20, 1")
    emit(0, True)
    a("s_waitcnt lgkmcnt(0)")
    a.label(pfx + "_loop")
    emit(1, False)
    a(f"s_cmp_eq_u32 s20, 64\ns_cbranch_scc1 {pfx}_fin")
    emit(0, False)
    a(f"s_waitcnt lgkmcnt(0)\ns_branch {pfx}_loop")
    a.label(pfx + "_fin")
    for x in epi_ops(ACCS[1]): a(x)
    a("v_mov_b32 v9, s20")
    for x in flag(0): a(x)
    a("s_waitcnt vmcnt(0) lgkmcnt(0)\ns_barrier")

def w_stages(srd_, stride, col, style, dest_fn, n=10, resident=()):
    st = []
    for c in range(n):
        st.append(dict(kind='W', srd=srd_, stride=stride, col=col, style=style, row0=64 * c,
                       dests=None if c in resident else (lambda t, q, c=c: dest_fn(c, t, q))))
    return st

def role_proj(a):
    a.label("L_proj")
    a("s_mul_i32 s32, s18, 384")
    loader(a, w_stages(8, 12288, 32, 'nat', lambda c, t, q: ('a', ((2*c + (q >> 1)) * 3 + t) * 4 + 2 * (q & 1))), 0, 16, True, depth=DW, pol=PW)
    a(f"""s_mov_b32 s33, {KX_OFF}
s_cmp_eq_u32 s27, {ROLE_V}
s_cselect_b32 s33, {VX_OFF}, s33
s_cmp_eq_u32 s27, {ROLE_Q}
s_cselect_b32 s33, {QX_OFF}, s33
s_mul_i32 s22, s18, 12288
s_add_u32 s33, s33, s22
s_mul_i32 s22, s17, 3072
s_add_u32 s33, s33, s22
s_lshl_b32 s34, s27, 13
s_lshl_b32 s22, s18, 8
s_add_u32 s34, s34, s22
s_lshl_b32 s22, s17, 6
s_add_u32 s34, s34, s22
s_add_u32 s34, s34, {FLAG_OFF}
s_mov_b32 s20, 0
s_mov_b32 s21, 64""")
    proj_stream(a, "L_proj", HF_OFF, 33, 34)
    stamp(a, 0)
    if STAMP: a("s_memtime s[78:79]")
    stamp_flush(a, 2, row=65)
    if STAMP: a("s_waitcnt vmcnt(0)")
    a(f"""s_cmp_eq_u32 s27, {ROLE_K}
s_cbranch_scc1 L_F1
s_add_u32 s18, s18, 32
s_cmp_eq_u32 s27, {ROLE_V}
s_cbranch_scc1 L_F1
s_sub_u32 s18, s18, 32
s_cmp_lt_u32 s18, 30
s_cbranch_scc1 L_F2
s_endpgm""")

def role_oworker(a):
    a.label("L_ow")
    a("s_mul_i32 s32, s18, 245760")
    st = [dict(kind='O', srd=8, stride=1280, col=32, style='lin', row0=16 * q,
               dests=(lambda t, qq, q=q: ('a', (t * 6 + (q >> 1)) * 4 + 2 * (q & 1)))) for q in range(12)]
    loader(a, st, 0, 16, True, depth=DW, pol=PW)
    flag_addr(a, 34, ROLE_O, 18, 17)
    flag_addr(a, 35, ROLE_V, 18)
    a(f"""v_lshlrev_b32 v4, 4, v1                 ; lane*16
v_and_b32 v5, 3, v1
v_lshlrev_b32 v5, 6, v5
v_mov_b32 v6, 0
s_mul_i32 s36, s18, 12288
s_mul_i32 s22, s17, 3072
s_add_u32 s36, s36, s22
s_add_u32 s36, s36, {VX_OFF}
s_lshl_b32 s37, s18, 10
s_mul_i32 s22, s17, {10*32768}
s_add_u32 s37, s37, s22
s_add_u32 s37, s37, {U_OFF}
s_mul_i32 s38, s17, 3072
s_mov_b32 s28, 0
s_mov_b32 s29, 12288
s_mov_b32 s20, 0
s_mov_b32 s39, 0""")
    def waitflag(lbl, need_s):
        a.label(lbl)
        a(f"buffer_load_dword v9, v5, s[4:7], s35 offen sc1")
        spin_guard(a, 39)
        a(f"s_waitcnt vmcnt(0)\nv_cmp_gt_u32 vcc, s{need_s}, v9\ns_cbranch_vccnz {lbl}")
    def dma(seg_s, slot_s):
        a(f"s_min_u32 s23, s{seg_s}, 63\ns_mul_i32 s23, s23, {32*12288}\ns_add_u32 s23, s23, s36\ns_add_u32 m0, s38, s{slot_s}")
        for i in range(3): a(f"buffer_load_dwordx4 v4, s[4:7], s23 offen offset:{i*1024} sc1 lds")
    a("s_mov_b32 s31, 1")
    waitflag("L_ow_w0", 31)
    a("s_mov_b32 s31, 0\ns_mov_b32 s30, 0"); dma(31, 30)
    a("s_waitcnt vmcnt(0)\ns_barrier")
    AS = (16, 64)
    ACC = 112; OB = 128
    def aread(A0, ad):
        return [f"ds_read2_b64 v[{A0+8*p+4*tt}:{A0+8*p+4*tt+3}], v{ad+p} offset0:{tt} offset1:{128+tt}" for p in range(6) for tt in range(2)]
    AD = 140
    for p in range(6): a(f"v_add_u32 v{AD+p}, {2048*p}, v4")
    for x in aread(AS[0], AD): a(x)
    a("s_mov_b32 s31, 2")
    waitflag("L_ow_w1", 31)
    a("s_mov_b32 s31, 1\ns_mov_b32 s30, 12288"); dma(31, 30)
    a(f"s_mov_b32 s28, 12288\ns_mov_b32 s43, s37\ns_waitcnt lgkmcnt(0)")
    def epi(t):
        acc = ACC + 8 * (t % 2); o = OB + 4 * (t % 2)
        return [f"v_cvt_pk_bf16_f32 v{o}, v{acc}, v{acc+1}", f"v_cvt_pk_bf16_f32 v{o+1}, v{acc+4}, v{acc+5}",
                f"v_cvt_pk_bf16_f32 v{o+2}, v{acc+2}, v{acc+3}", f"v_cvt_pk_bf16_f32 v{o+3}, v{acc+6}, v{acc+7}",
                f"buffer_store_dwordx4 v[{o}:{o+3}], v4, s[4:7], s43 offen sc1", "s_add_u32 s43, s43, 32768"]
    def emit(par, first):
        A0 = AS[par]
        slots = []
        for t in range(10):
            acc = ACC + 8 * (t % 2)
            for p in range(6):
                for tt in range(2):
                    c = "0" if p == 0 else f"v[{acc+4*tt}:{acc+4*tt+3}]"
                    slots.append([f"v_mfma_f32_16x16x32_bf16 v[{acc+4*tt}:{acc+4*tt+3}], v[{A0+8*p+4*tt}:{A0+8*p+4*tt+3}], a[{(t*6+p)*4}:{(t*6+p)*4+3}], {c}", []])
        for t in range(10):
            if t == 0 and first: continue
            e = epi((t - 1) % 10)
            for jj in range(4): slots[12*t + 2 + jj][1].append(e[jj])
            slots[12*t + 7][1].append(e[4]); slots[12*t + 8][1].append(e[5])
        if not first: slots[9][1].append(f"s_add_u32 s43, s43, {30*32768}")
        slots[10][1] += ["buffer_load_dword v9, v5, s[4:7], s35 offen sc1", "s_add_u32 s31, s20, 3", "s_min_u32 s31, s31, 64"]
        slots[58][1] += ["v_mov_b32 v8, s20"]
        for p in range(6): slots[48 + p][1].append(f"v_add_u32 v{AD+p}, s{46+p}, v4")
        for p in range(6): slots[36 + p][1].append(f"s_add_u32 s{46+p}, s28, {2048*p}")
        lbl = f"L_ow_x{par}{int(first)}"
        def out(lo, hi):
            for mf, fl in slots[lo:hi]:
                a(mf)
                for f in sorted(fl, key=lambda x: 1 if x.startswith('v_') else 0): a(f)
        out(0, 60)
        a("s_waitcnt vmcnt(4)\ns_barrier")
        if not first: a("s_mov_b64 exec, 1\nbuffer_store_dword v8, v6, s[4:7], s34 offen sc1\ns_mov_b64 exec, -1")
        a(f"v_cmp_gt_u32 vcc, s31, v9\ns_cbranch_vccz {lbl}_go")
        waitflag(lbl, 31)
        a.label(lbl + "_go")
        a("s_add_u32 s30, s28, 12288\ns_cmp_eq_u32 s30, 36864\ns_cselect_b32 s30, 0, s30\ns_add_u32 s31, s20, 2")
        for k, x in enumerate(aread(AS[1 - par], AD)): slots[72 + 3*k][1].insert(0, x)
        d = [f"s_min_u32 s23, s31, 63", f"s_mul_i32 s23, s23, {32*12288}", "s_add_u32 s23, s23, s36", "s_add_u32 m0, s38, s30"]
        slots[60][1] += d[:2]; slots[61][1] += d[2:]
        for i in range(3): slots[(66, 69, 70)[i]][1].append(f"buffer_load_dwordx4 v4, s[4:7], s23 offen offset:{i*1024} sc1 lds")
        out(60, 120)
        a("s_mov_b32 s28, s30\ns_add_u32 s20, s20, 1\ns_waitcnt lgkmcnt(0)")
    emit(0, True)
    a.label("L_ow_loop")
    emit(1, False)
    a("s_cmp_eq_u32 s20, 64\ns_cbranch_scc1 L_ow_fin")
    emit(0, False)
    a("s_branch L_ow_loop")
    a.label("L_ow_fin")
    for x in epi(9): a(x)
    a("""s_waitcnt vmcnt(0)
v_mov_b32 v8, s20
s_mov_b64 exec, 1
buffer_store_dword v8, v6, s[4:7], s34 offen sc1
s_mov_b64 exec, -1
s_barrier""")
    stamp(a, 0)
    if STAMP: a("s_memtime s[78:79]")
    stamp_flush(a, 2, row=65)
    a("""s_add_u32 s18, s18, 30
s_cmp_lt_u32 s18, 60
s_cbranch_scc1 L_F2
s_endpgm""")

def remap(a, v, t):
    a(f"v_lshrrev_b32 v{t}, 13, v{v}\nv_and_b32 v{v}, 8191, v{v}\nv_lshl_add_u32 v{v}, v{t}, 14, v{v}")

def span_off(a, dst, step_s, plus, base, shift):
    a(f"s_add_u32 s{dst}, s{step_s}, {plus}\ns_lshl_b32 s{dst}, s{dst}, {shift}\ns_add_u32 s{dst}, s{dst}, {base}\ns_lshr_b32 s22, s{dst}, 8\ns_and_b32 s22, s22, 8192\ns_xor_b32 s22, s22, s19\ns_add_u32 s{dst}, s{dst}, s22")

def idx_reg(a, v):
    a(f"v_and_b32 v{v}, 1, v1\nv_cmp_eq_u32 vcc, 0, v{v}\nv_mov_b32 v{v}, 0xeeee\nv_mov_b32 v{v+1}, 0x4444\nv_cndmask_b32 v{v}, v{v}, v{v+1}, vcc")

def check(a, regs, acc):
    regs = list(regs)
    first = True
    while regs:
        if first:
            x = regs[:3]; regs = regs[3:]; a(f"v_max3_u32 v{acc}, v{x[0]}, v{x[1]}, v{x[2]}"); first = False
        elif len(regs) >= 2:
            x = regs[:2]; regs = regs[2:]; a(f"v_max3_u32 v{acc}, v{acc}, v{x[0]}, v{x[1]}")
        else:
            a(f"v_max_u32 v{acc}, v{acc}, v{regs[0]}"); regs = []

MEMLDS = 6 * SLOT
def mem_poll_setup(a, vA):
    a(f"""s_mul_i32 s22, s17, 2560
v_lshlrev_b32 v{vA}, 4, v1
v_add_u32 v{vA}, s22, v{vA}
v_add_u32 v{vA+3}, {MEMLDS}, v{vA}
v_add_u32 v{vA+1}, 1024, v{vA}
v_and_b32 v{vA+2}, 31, v1
v_lshlrev_b32 v{vA+2}, 4, v{vA+2}
v_add_u32 v{vA+2}, s22, v{vA+2}
v_add_u32 v{vA+2}, 2048, v{vA+2}
v_add_u32 v{vA+4}, {MEMLDS}, v{vA+2}""")
    for i in range(3): remap(a, vA + i, 15)

def mem_poll(a, lbl, vA, P, T):
    stamp(a, 0)
    if STAMP: a("s_waitcnt lgkmcnt(0)")
    a.label(lbl)
    for i in range(3): a(f"buffer_load_dwordx4 v[{P+4*i}:{P+4*i+3}], v{vA+i}, s[4:7], s40 offen sc1")
    spin_guard(a, 39)
    a(f"""ds_write_b128 v{vA+3}, v[{P}:{P+3}]
v_max3_u32 v{T}, v{P}, v{P+1}, v{P+2}
ds_write_b128 v{vA+3}, v[{P+4}:{P+7}] offset:1024
v_max3_u32 v{T}, v{T}, v{P+3}, v{P+4}
v_max3_u32 v{T}, v{T}, v{P+5}, v{P+6}
ds_write_b128 v{vA+4}, v[{P+8}:{P+11}]
v_max3_u32 v{T}, v{T}, v{P+7}, v{P+8}
v_max3_u32 v{T}, v{T}, v{P+9}, v{P+10}
v_max_u32 v{T}, v{T}, v{P+11}
v_cmp_eq_u32 vcc, s41, v{T}""")
    a(f"s_cbranch_vccnz {lbl}")
    stamp(a, 1)
    a("s_waitcnt lgkmcnt(0)\ns_barrier")

def emit_stream(a, slots):
    for mf, fl in slots:
        a(mf)
        fl = sorted(fl, key=lambda x: 1 if x.startswith('v_') else 0)
        for f in fl: a(f)

def role_R(a):
    a.label("L_R")
    a(f"""s_lshl_b32 s22, s17, 3
s_mul_i32 s23, s22, 640
s_add_u32 s23, s23, 10240
v_lshrrev_b32 v14, 5, v1
v_mul_u32_u24 v14, 640, v14
v_and_b32 v15, 31, v1
v_lshl_add_u32 v14, v15, 4, v14
v_add_u32 v4, s23, v14
v_add_u32 v5, 1280, v4
v_add_u32 v6, 2560, v4
v_add_u32 v7, 3840, v4
v_mul_u32_u24 v14, 1280, v2
v_lshl_add_u32 v14, v3, 3, v14
v_add_u32 v14, 512, v14
v_add_u32 v8, s23, v14
v_add_u32 v9, 640, v8""")
    for v in range(4, 10): remap(a, v, 15)
    a(f"""s_lshl_b32 s23, s18, 14
s_lshl_b32 s24, s17, 11
s_add_u32 s23, s23, s24
v_lshlrev_b32 v11, 4, v1
v_add_u32 v10, s23, v11
s_lshl_b32 s36, s18, 15
s_lshl_b32 s24, s17, 13
s_add_u32 s36, s36, s24
s_add_u32 s36, s36, {U_OFF}
s_mul_i32 s24, s18, 6554
s_lshr_b32 s24, s24, 16
s_lshl_b32 s24, s24, 6
v_and_b32 v12, 7, v1
v_add_u32 v12, s22, v12
v_lshlrev_b32 v12, 8, v12
v_add_u32 v12, s24, v12
s_mov_b32 s35, {FLAG_OFF + ROLE_O*32*256}
s_mov_b32 s41, {hex(SENT)}
s_mov_b32 s39, 0
s_mov_b32 s20, 0""")
    idx_reg(a, 16)
    a(f"""v_lshlrev_b32 v14, 7, v2
v_lshl_add_u32 v14, v3, 2, v14
s_lshl_b32 s22, s17, 9
v_add_u32 v18, s22, v14
v_lshlrev_b32 v19, 3, v1
v_lshlrev_b32 v14, 2, v1
s_lshl_b32 s22, s18, 8
v_add_u32 v20, s22, v14""")
    remap(a, 20, 15)
    UB = 64; YB = 56; PB = 32; PM = 48; D = 24
    a.label("L_R_loop")
    a("s_add_u32 s31, s20, 1")
    a.label("L_R_fl")
    a("buffer_load_dword v13, v12, s[4:7], s35 offen sc1")
    spin_guard(a, 39)
    a(f"s_waitcnt vmcnt(0)\nv_cmp_gt_u32 vcc, s31, v13\ns_cbranch_vccnz L_R_fl")
    a(f"s_mul_i32 s23, s20, {40*32768}\ns_add_u32 s23, s23, s36\ns_add_u32 s24, s23, 4096")
    for i in range(8):
        a(f"buffer_load_dwordx4 v[{UB+4*i}:{UB+4*i+3}], v11, s[4:7], s{23 + i//4} offen offset:{(i%4)*1024} sc1")
    span_off(a, 40, 20, 0, MP_OFF, 16)
    span_off(a, 42, 20, 0, Y_OFF, 20)
    span_off(a, 43, 20, 1, MP_OFF, 16)
    a("s_waitcnt vmcnt(0)")
    stamp(a, 0)
    if STAMP: a("s_waitcnt lgkmcnt(0)")
    a.label("L_R_pollY")
    for i in range(2): a(f"buffer_load_dwordx4 v[{YB+4*i}:{YB+4*i+3}], v10, s[4:7], s42 offen offset:{i*1024} sc1")
    spin_guard(a, 39)
    check(a, range(YB, YB + 8), 14)
    a("v_cmp_eq_u32 vcc, s41, v14\ns_cbranch_vccnz L_R_pollY")
    stamp(a, 1)
    if STAMP: a("s_waitcnt lgkmcnt(0)")
    a.label("L_R_pollP")
    for i in range(2): a(f"buffer_load_dwordx2 v[{PM+2*i}:{PM+2*i+1}], v{8+i}, s[4:7], s40 offen sc1")
    for i in range(4): a(f"buffer_load_dwordx4 v[{PB+4*i}:{PB+4*i+3}], v{4+i}, s[4:7], s40 offen sc1")
    spin_guard(a, 39)
    a(f"v_mov_b64 v[{D}:{D+1}], 0\nv_mov_b64 v[{D+2}:{D+3}], 0")
    a(f"v_smfmac_f32_16x16x64_bf16 v[{D}:{D+3}], v[{PM}:{PM+3}], v[{YB}:{YB+7}], v16")
    a(f"v_max3_u32 v14, v{PM}, v{PM+1}, v{PM+2}\nv_max_u32 v14, v14, v{PM+3}")
    for m in range(4):
        a(f"v_smfmac_f32_16x16x64_bf16 v[{D}:{D+3}], v[{PB+4*m}:{PB+4*m+3}], v[{UB+8*m}:{UB+8*m+7}], v16")
        a(f"v_max3_u32 v14, v14, v{PB+4*m}, v{PB+4*m+1}\nv_max3_u32 v14, v14, v{PB+4*m+2}, v{PB+4*m+3}")
    a("v_cmp_eq_u32 vcc, s41, v14\ns_cbranch_vccnz L_R_pollP")
    stamp(a, 2)
    a(f"""v_add_f32 v{D}, v{D}, v{D+1}
v_add_f32 v{D+2}, v{D+2}, v{D+3}
ds_write2_b32 v18, v{D}, v{D+2} offset0:0 offset1:16
s_waitcnt lgkmcnt(0)
s_barrier
s_cmp_lg_u32 s17, 0
s_cbranch_scc1 L_R_next
ds_read2_b64 v[32:35], v19 offset0:0 offset1:64
ds_read2_b64 v[36:39], v19 offset0:128 offset1:192
v_pk_add_f32 v[32:33], v[32:33], v[34:35]
v_pk_add_f32 v[36:37], v[36:37], v[38:39]
v_pk_add_f32 v[32:33], v[32:33], v[36:37]
v_cvt_pk_bf16_f32 v32, v32, v33
buffer_store_dword v32, v20, s[4:7], s43 offen sc1""")
    a.label("L_R_next")
    stamp(a, 3); stamp_flush(a, 4, row_s=20)
    a(f"""v_xor_b32 v18, 2048, v18
v_xor_b32 v19, 2048, v19
s_add_u32 s20, s20, 1
s_cmp_lt_u32 s20, 63
s_cbranch_scc1 L_R_loop
s_endpgm""")

def role_V(a):
    a.label("L_V")
    def wv(c, t):
        f = c * 3 + t
        return ('a', 240 + 8 * f) if f < 2 else ('v', 128 + 8 * (f - 2))
    a("s_mul_i32 s32, s18, 384\ns_mul_i32 s33, s18, 245760")
    st = [dict(kind='O', srd=12, stride=1280, col=33, style='nat', row0=64 * (q >> 2) + 32 * ((q >> 1) & 1) + 4 * (q & 1),
               dests=(lambda t, qq, q=q: ('a', (t * 3 + (q >> 2)) * 8 + 2 * (q & 3)))) for q in range(12)]
    st += w_stages(8, 12288, 32, 'sp', lambda c, t, q: (wv(c, t)[0], wv(c, t)[1] + 2 * q), resident=(6, 7, 8, 9))
    aW = loader(a, st, 0, 40, True, depth=DA, pol=PA)
    a("s_mul_i32 s22, s17, 6144\nv_lshlrev_b32 v4, 4, v1\nv_add_u32 v4, s22, v4\nv_add_u32 v5, 49152, v4")
    mem_poll_setup(a, 10)
    idx_reg(a, 16)
    VIMG = 4 * SLOT
    a(f"""v_lshlrev_b32 v18, 4, v1
v_add_u32 v18, {MEMLDS}, v18
s_mul_i32 s22, s17, 768
v_lshlrev_b32 v19, 6, v2                ; rows 2g (+32B: 2g+1)
v_bfe_u32 v15, v1, 1, 1
v_lshl_add_u32 v19, v15, 4, v19
v_bfe_u32 v15, v1, 2, 2
v_lshl_add_u32 v19, v15, 2, v19
v_and_b32 v15, 1, v1
v_lshl_add_u32 v19, v15, 1, v19
v_add_u32 v19, s22, v19
v_add_u32 v19, {VIMG}, v19
v_lshlrev_b32 v20, 4, v1
v_add_u32 v20, {VIMG}, v20
v_mov_b32 v15, v2
s_mul_i32 s22, s17, 10
v_add_u32 v15, s22, v15
v_lshlrev_b32 v21, 14, v15              ; ct*16K
s_lshl_b32 s22, s18, 8
v_add_u32 v21, s22, v21
v_lshl_add_u32 v21, v3, 4, v21
s_mov_b32 s41, {hex(SENT)}
s_mov_b32 s39, 0
s_mov_b32 s20, 0""")
    M = 24; ACC = 64; WIN = 80; VA = 80; P = 24; YA = 24
    for j in range(4): a(f"v_mov_b32 v{124+j}, s41")
    def winread(c, t, w):
        off = (c - 6) * SLOT + t * 2048
        base = 4
        if off >= 49152: base = 5; off -= 49152
        return [f"ds_read_b128 v[{WIN+8*w+4*hh}:{WIN+8*w+4*hh+3}], v{base} offset:{off + hh*1024}" for hh in range(2)]
    a.label("L_V_loop")
    span_off(a, 40, 20, 0, MP_OFF, 16)
    span_off(a, 42, 20, 0, Y_OFF, 20)
    for j in range(4):
        for x in winread(6 + j, 0, j): a(x)
    for j in range(0, 12, 2): a(f"v_mov_b64 v[{ACC+j}:{ACC+j+1}], 0")
    a("s_waitcnt lgkmcnt(0)")
    mem_poll(a, "L_V_poll", 10, P, 15)
    order = [6, 0, 7, 1, 2, 8, 3, 9, 4, 5]
    for c in order: a(f"ds_read_b128 v[{M+4*c}:{M+4*c+3}], v18 offset:{c*1024}")
    def post_v(t):
        d = ACC + 4 * t
        return [f"v_add_f32 v{d}, v{d}, v{d+1}", f"v_add_f32 v{d+2}, v{d+2}, v{d+3}", f"v_cvt_pk_bf16_f32 v{d}, v{d}, v{d+2}",
                f"ds_write_b16 v19, v{d} offset:{t*256}", f"ds_write_b16_d16_hi v19, v{d} offset:{t*256+32}"]
    slots = []
    for t in range(3):
        d = ACC + 4 * t
        for n, c in enumerate(order):
            if c >= 6: src = f"v[{WIN+8*(c-6)}:{WIN+8*(c-6)+7}]"
            else: src = R(*wv(c, t), 8)
            slots.append((f"v_smfmac_f32_16x16x64_bf16 v[{d}:{d+3}], v[{M+4*c}:{M+4*c+3}], {src}, v16", []))
    for t in range(2):
        for n, c in enumerate(order):
            if c >= 6:
                r = winread(c, t + 1, c - 6)
                slots[10*t + n][1].append(r[0]); slots[10*t + n + 1][1].append(r[1])
    for t in (1, 2):
        for j, x in enumerate(post_v(t - 1)): slots[10*t + (2, 3, 5, 9, 9)[j]][1].append(x)
    emit_stream(a, slots)
    for j in range(0, 8, 2): a(f"v_mov_b64 v[{YA+j}:{YA+j+1}], 0")
    for x in post_v(2): a(x)
    for j in range(8, 40, 2): a(f"v_mov_b64 v[{YA+j}:{YA+j+1}], 0")
    stamp(a, 2)
    a("s_waitcnt lgkmcnt(0)\ns_barrier")
    for c in range(3): a(f"ds_read_b128 v[{VA+4*c}:{VA+4*c+3}], v20 offset:{c*1024}")
    YO = 112
    def post_y(t):
        d = YA + 4 * t
        return [f"v_add_f32 v{d}, v{d}, v{d+1}", f"v_add_f32 v{d+2}, v{d+2}, v{d+3}", f"v_cvt_pk_bf16_f32 v{YO+t}, v{d}, v{d+2}"]
    def xpose(gp):
        o = YO + 4 * gp
        return [f"v_permlane32_swap_b32 v{o}, v{o+2}", f"v_permlane32_swap_b32 v{o+1}, v{o+3}",
                f"v_permlane16_swap_b32 v{o}, v{o+1}", f"v_permlane16_swap_b32 v{o+2}, v{o+3}"]
    def store_y(gp):
        o = YO + 4 * gp
        return [f"s_add_u32 s26, s42, {gp*65536}", f"buffer_store_dwordx4 v[{o}:{o+3}], v21, s[4:7], s26 offen sc1"]
    slots = []
    for t in range(10):
        d = YA + 4 * t
        for c in range(3):
            slots.append((f"v_smfmac_f32_16x16x64_bf16 v[{d}:{d+3}], v[{VA+4*c}:{VA+4*c+3}], a[{(t*3+c)*8}:{(t*3+c)*8+7}], v16", []))
    for t in range(8):
        for j, x in enumerate(post_y(t)): slots[3*t + 4 + j][1].append(x)
    for j, x in enumerate(xpose(0)): slots[17 + j][1].append(x)
    slots[21][1].extend(store_y(0))
    p8 = post_y(8)
    slots[28][1].append(p8[0]); slots[29][1].append(p8[1])
    emit_stream(a, slots)
    for x in [p8[2]] + xpose(1) + store_y(1) + post_y(9) + xpose(2): a(x)
    st2 = store_y(2)
    for x in [st2[0], "s_mov_b32 exec_hi, 0", st2[1], "s_mov_b32 exec_hi, -1"]: a(x)
    stamp(a, 3)
    a("s_cmp_ge_u32 s20, 62\ns_cbranch_scc1 L_V_noarm")
    span_off(a, 42, 20, 2, Y_OFF, 20)
    a("""buffer_store_dwordx4 v[124:127], v21, s[4:7], s42 offen sc1
s_add_u32 s26, s42, 65536
buffer_store_dwordx4 v[124:127], v21, s[4:7], s26 offen sc1
s_add_u32 s26, s42, 131072
s_mov_b32 exec_hi, 0
buffer_store_dwordx4 v[124:127], v21, s[4:7], s26 offen sc1
s_mov_b32 exec_hi, -1""")
    a.label("L_V_noarm")
    stamp_flush(a, 4, row_s=20)
    a(f"""s_add_u32 s20, s20, 1
s_cmp_lt_u32 s20, 64
s_cbranch_scc1 L_V_loop
s_endpgm""")

SCL = (192 ** -0.5) * math.log2(math.e)
def xlane(a, op, v, t, ror8):
    if ror8: a(f"{op}_dpp v{v}, v{v}, v{v} row_ror:8 row_mask:0xf bank_mask:0xf")
    a(f"v_mov_b32 v{t}, v{v}\nv_permlane16_swap_b32 v{t}, v{v}\n{op} v{v}, v{v}, v{t}")
    a(f"v_mov_b32 v{t}, v{v}\nv_permlane32_swap_b32 v{t}, v{v}\n{op} v{v}, v{v}, v{t}")

def dpp8(a, op, v):
    for m in ("quad_perm:[1,0,3,2]", "quad_perm:[2,3,0,1]", "row_half_mirror"):
        a(f"{op}_dpp v{v}, v{v}, v{v} {m} row_mask:0xf bank_mask:0xf")

def role_A(a):
    a.label("L_A")
    def fr(m, c, t):
        f = (c * 3 + t) if m == 0 else (24 + c * 3 + t)
        return ('a', 8 * f) if f < 32 else ('v', 152 + 8 * (f - 32))
    a("s_mul_i32 s32, s18, 384")
    sq = w_stages(8, 12288, 32, 'sp', lambda c, t, q: (fr(0, c, t)[0], fr(0, c, t)[1] + 2 * q), resident=(8, 9))
    sk = w_stages(12, 12288, 32, 'sp', lambda c, t, q: (fr(1, c, t)[0], fr(1, c, t)[1] + 2 * q), resident=(7, 8, 9))
    st = sq[:8] + sk[:7] + [sq[8], sq[9], sk[7], sk[8], sk[9]]
    resid = {(0, 8): 0, (0, 9): 1, (1, 7): 2, (1, 8): 3, (1, 9): 4}
    aW = loader(a, st, 3, 40, True, depth=DA, pol=PA)
    a("s_mul_i32 s22, s17, 6144\nv_lshlrev_b32 v4, 4, v1\nv_add_u32 v4, s22, v4\nv_add_u32 v5, 61440, v4")
    mem_poll_setup(a, 10)
    idx_reg(a, 16)
    SP = MEMLDS + 10240
    SROW = 176; SWV = 8 * SROW
    XP = 5 * SLOT
    a(f"""v_lshlrev_b32 v30, 4, v1                ; lane*16
v_add_u32 v18, {MEMLDS}, v30
v_mul_u32_u24 v19, {SROW}, v3
v_lshl_add_u32 v19, v2, 4, v19
s_mul_i32 s22, s17, {SWV}
s_add_u32 s22, s22, {SP}
v_add_u32 v19, s22, v19
v_lshrrev_b32 v31, 3, v1                ; i
v_mul_u32_u24 v21, {SROW}, v31
v_add_u32 v21, {SP}, v21
v_and_b32 v15, 1, v1
v_lshl_add_u32 v21, v15, 4, v21
v_bfe_u32 v15, v1, 1, 1                 ; hf
v_lshl_add_u32 v20, v15, 6, v21
v_lshl_add_u32 v21, v15, 3, v21
v_add_u32 v21, 128, v21
v_bfe_u32 v15, v1, 2, 1
v_lshl_add_u32 v20, v15, 5, v20
s_mul_i32 s22, s18, 640
s_add_u32 s22, s22, 10240
v_lshlrev_b32 v22, 8, v15
v_lshl_add_u32 v22, v31, 5, v22
v_and_b32 v15, 3, v1
v_lshl_add_u32 v22, v15, 3, v22
v_add_u32 v22, s22, v22
v_lshlrev_b32 v23, 4, v31
v_lshl_add_u32 v23, v15, 2, v23
v_add_u32 v23, s22, v23
v_add_u32 v23, 512, v23""")
    remap(a, 22, 15); remap(a, 23, 15)
    SEL = 6
    a(f"""v_lshlrev_b32 v15, 1, v2
v_sub_u32 v15, v3, v15                  ; n - 2g
v_mov_b32 v26, 0x3f80
v_mov_b32 v27, 0x3f800000""")
    for j in range(2):
        base = (0, 8)[j]
        a(f"""v_mov_b32 v{SEL+j}, 0
v_cmp_eq_u32 vcc, {base}, v15
v_cndmask_b32 v{SEL+j}, v{SEL+j}, v26, vcc
v_cmp_eq_u32 vcc, {base+1}, v15
v_cndmask_b32 v{SEL+j}, v{SEL+j}, v27, vcc""")
    a("v_lshlrev_b32 v15, 2, v2\nv_sub_u32 v15, v3, v15")
    for r in range(4): a(f"v_cmp_le_i32 s[{44+2*r}:{45+2*r}], {r}, v15")
    a("s_nop 4\ns_and_b32 s22, s17, 1\ns_cmp_eq_u32 s22, 1")
    for r in range(4):
        a(f"s_cselect_b64 s[{52+2*r}:{53+2*r}], s[{44+2*r}:{45+2*r}], 0\ns_cselect_b64 s[{44+2*r}:{45+2*r}], -1, s[{44+2*r}:{45+2*r}]")
    a(f"""s_mov_b32 s60, 0
s_mov_b32 s61, -1
s_mul_i32 s22, s17, 5120
s_add_u32 s22, s22, {XP}
v_add_u32 v17, s22, v30
s_and_b32 s22, s17, 1
s_lshl_b32 s22, s22, 11
s_add_u32 s22, s22, {XP}
v_add_u32 v0, s22, v30
s_mul_i32 s36, s18, 12288
s_mul_i32 s22, s17, 3072
s_add_u32 s36, s36, s22
s_and_b32 s22, s17, 1
s_lshl_b32 s37, s22, 15
s_lshl_b32 s23, s18, 10
s_add_u32 s37, s37, s23
s_add_u32 s37, s37, {PX_OFF}
s_lshl_b32 s38, s22, 13
s_lshl_b32 s23, s18, 8
s_add_u32 s38, s38, s23
s_add_u32 s38, s38, {PXM_OFF}
v_and_b32 v15, 1, v2
v_lshlrev_b32 v3, 4, v3
v_lshl_add_u32 v3, v15, 3, v3
v_and_b32 v2, 1, v1
v_mul_u32_u24 v2, {(ROLE_Q - ROLE_K) * 32 * 256}, v2
v_mov_b32 v1, v30
s_mov_b32 s62, {hex(f2u(SCL))}
s_mov_b32 s63, {hex(f2u(SCL))}
s_mov_b32 s64, 0xff800000
s_mov_b32 s65, {hex(f2u(-1e9 / (192 ** -0.5)))}
s_mov_b32 s66, 0x00ff00ff
s_mov_b32 s67, 0x00ff00ff
s_mov_b32 s68, 0x0f0f0f0f
s_mov_b32 s69, 0x0f0f0f0f
s_mov_b32 s70, 0
s_mov_b32 s41, {hex(SENT)}
s_mov_b32 s39, 0
s_mov_b32 s20, 0""")
    flag_addr(a, 35, ROLE_K, 18, 17)
    a(f"s_add_u32 s72, s35, {(ROLE_PX - ROLE_K) * 8192}")
    X = 24; M = 32; ACC = 72; WIN = 88; KX = 104; KN = 116; QX = 128; S = 140
    P = M
    kxsrc = [0, 1, 4, 5, 2, 3, 6, 7, 8, 9, 10, 11]
    def winread(m, c, t, w):
        off = resid[(m, c)] * SLOT + t * 2048; base = 4
        if off + 1024 > 65535: base = 5; off -= 61440
        return [f"ds_read_b128 v[{WIN+8*w+4*hh}:{WIN+8*w+4*hh+3}], v{base} offset:{off + hh*1024}" for hh in range(2)]
    regs_ = []
    for c in range(6): regs_ += [(0, c), (1, c)]
    regs_ += [(1, 6), (0, 6), (0, 7)]
    lds_ = [(0, 8), (1, 8), (0, 9), (1, 9), (1, 7)]
    seq = []
    for i in range(5): seq += [lds_[i]] + regs_[3*i:3*i+3]
    ldsfr = [(m, c, t) for t in range(3) for (m, c) in lds_]
    def waitflags(lbl):
        a(f"s_cmp_ge_u32 s70, s31\ns_cbranch_scc1 {lbl}_ok")
        a.label(lbl)
        a("buffer_load_dword v15, v2, s[4:7], s35 offen sc1")
        spin_guard(a, 39)
        a(f"s_waitcnt vmcnt(0)\nv_readlane_b32 s70, v15, 0\nv_readlane_b32 s71, v15, 1\ns_nop 0\ns_min_u32 s70, s70, s71\ns_cmp_lt_u32 s70, s31\ns_cbranch_scc1 {lbl}")
        a.label(lbl + "_ok")
    a("s_mov_b32 s31, 1")
    waitflags("L_A_f0")
    a(f"s_add_u32 s23, s36, {KX_OFF}")
    for t in range(3): a(f"buffer_load_dwordx4 v[{KN+4*t}:{KN+4*t+3}], v1, s[4:7], s23 offen offset:{t*1024} sc1")
    a("s_waitcnt vmcnt(0)")
    a.label("L_A_loop")
    a("s_add_u32 s31, s20, 2\ns_min_u32 s31, s31, 64")
    waitflags("L_A_fl")
    for j in range(0, 12, 2): a(f"v_mov_b64 v[{KX+j}:{KX+j+1}], v[{KN+kxsrc[j]}:{KN+kxsrc[j]+1}]")
    span_off(a, 40, 20, 0, MP_OFF, 16)
    a(f"""s_add_u32 s23, s20, 1
s_min_u32 s23, s23, 63
s_mul_i32 s23, s23, {32*12288}
s_add_u32 s23, s23, s36
s_add_u32 s42, s23, {KX_OFF}
s_mul_i32 s23, s20, {32*12288}
s_add_u32 s23, s23, s36
s_add_u32 s43, s23, {QX_OFF}""")
    for x in winread(*ldsfr[0], 0) + winread(*ldsfr[1], 1): a(x)
    for j in range(0, 16, 2): a(f"v_mov_b64 v[{ACC+j}:{ACC+j+1}], 0")
    a("s_waitcnt lgkmcnt(0)")
    mem_poll(a, "L_A_poll", 10, P, 15)
    corder = []
    for (m, c) in seq:
        if c not in corder: corder.append(c)
    mread = lambda c: f"ds_read_b128 v[{M+4*c}:{M+4*c+3}], v18 offset:{c*1024}"
    stamp(a, 5)
    for c in corder[:6]: a(mread(c))
    slots = []
    for t in range(3):
        dq = ACC + 8 * (t % 2)
        for n, (m, c) in enumerate(seq):
            d = dq + 4 * m
            if (m, c) in resid:
                k = 5 * t + n // 4; w = k % 2
                src = f"v[{WIN+8*w}:{WIN+8*w+7}]"
            else: src = R(*fr(m, c, t), 8)
            slots.append([f"v_smfmac_f32_16x16x64_bf16 v[{d}:{d+3}], v[{M+4*c}:{M+4*c+3}], {src}, v16", []])
    for k in range(13):
        r = winread(*ldsfr[k + 2], k % 2)
        slots[4*k][1].append(r[0]); slots[4*k + 1][1].append(r[1])
        slots[4*k + 7][1].append(f"@touch v[{WIN+8*(k%2)}:{WIN+8*(k%2)+7}]")
    for j, c in enumerate(corder[6:]): slots[(2, 3, 6, 10)[j]][1].insert(0, mread(c))
    for t in range(3):
        slots[(14, 18, 22)[t]][1].append(f"buffer_load_dwordx4 v[{QX+4*t}:{QX+4*t+3}], v1, s[4:7], s43 offen offset:{t*1024} sc1")
        slots[(26, 30, 34)[t]][1].append(f"buffer_load_dwordx4 v[{KN+4*t}:{KN+4*t+3}], v1, s[4:7], s42 offen offset:{t*1024} sc1")
    slots[36][1].append("v_mov_b32 v15, s20")
    slots[38][1] += ["s_mov_b64 exec, 1", "buffer_store_dword v15, v1, s[4:7], s72 offen sc1", "s_mov_b64 exec, -1"]
    def cvts(t):
        dq = ACC + 8 * (t % 2); dk = dq + 4
        return [f"v_add_f32 v{dk}, v{dk}, v{dk+1}", f"v_add_f32 v{dk+2}, v{dk+2}, v{dk+3}", f"v_cvt_pk_bf16_f32 v{dk+1}, v{dk}, v{dk+2}",
                f"v_add_f32 v{dq}, v{dq}, v{dq+1}", f"v_add_f32 v{dq+2}, v{dq+2}, v{dq+3}", f"v_cvt_pk_bf16_f32 v{dk}, v{dq}, v{dq+2}"]
    def tmf(t):
        dq = ACC + 8 * (t % 2); dk = dq + 4
        return f"v_mfma_f32_16x16x16_bf16 v[{dq}:{dq+3}], v[{dk}:{dk+1}], v[{SEL}:{SEL+1}], 0"
    def xcv(t):
        dq = ACC + 8 * (t % 2); x = X + 2 * t
        return [f"v_cvt_pk_bf16_f32 v{x}, v{dq}, v{dq+1}", f"v_cvt_pk_bf16_f32 v{x+1}, v{dq+2}, v{dq+3}"]
    extra = {}
    for t in (0, 1):
        b = 20 * (t + 1)
        for j, x in enumerate(cvts(t)): slots[b + j][1].append(x)
        extra[b + 6] = [tmf(t)]
        for j, x in enumerate(xcv(t)): slots[b + 9 + j][1].append(x)
    for j in range(4): slots[31 + j][1].append(f"v_mov_b64 v[{ACC+2*j}:{ACC+2*j+1}], 0")
    sc32 = [f"v_mfma_f32_16x16x32_bf16 v[{S+4*j}:{S+4*j+3}], v[{src}:{src+3}], v[{X}:{X+3}], 0" for j, src in enumerate((X, KX, KX + 4))]
    full = []
    for i, (mf, fl) in enumerate(slots):
        full.append((mf, fl))
        for e in extra.get(i, []): full.append((e, []))
    emit_stream(a, full)
    stamp(a, 6)
    cv = cvts(2)
    for x in (cv[0], sc32[0], cv[1], cv[2], sc32[1], cv[3], cv[4], cv[5], tmf(2), sc32[2]): a(x)
    for x in xcv(2): a(x)
    for j, src in enumerate((X + 4, KX + 8, KX + 10)):
        a(f"v_mfma_f32_16x16x16_bf16 v[{S+4*j}:{S+4*j+3}], v[{src}:{src+1}], v[{X+4}:{X+5}], v[{S+4*j}:{S+4*j+3}]")
    a("s_mov_b64 exec, s[66:67]")
    for j in range(3): a(f"ds_write_b128 v19, v[{S+4*j}:{S+4*j+3}] offset:{(96, 0, 64)[j]}")
    stamp(a, 2)
    a("s_mov_b64 exec, -1\ns_cmp_lg_u32 s17, 0\ns_waitcnt lgkmcnt(0)\ns_barrier\ns_cbranch_scc1 L_A_x")
    stamp(a, 7)
    T = M
    a(f"""ds_read_b128 v[{T}:{T+3}], v20
ds_read_b128 v[{T+8}:{T+11}], v20 offset:{SWV}
ds_read2_b64 v[{T+4}:{T+7}], v21 offset0:0 offset1:{SWV//8}
v_add_u32 v15, {2*SWV}, v21
ds_read_b128 v[{T+12}:{T+15}], v20 offset:{2*SWV}
ds_read_b128 v[{T+16}:{T+19}], v20 offset:{3*SWV}
ds_read2_b64 v[{T+20}:{T+23}], v15 offset0:0 offset1:{SWV//8}
v_pk_add_f32 v[{T}:{T+1}], v[{T}:{T+1}], v[{T+8}:{T+9}]
v_pk_add_f32 v[{T+2}:{T+3}], v[{T+2}:{T+3}], v[{T+10}:{T+11}]
v_pk_add_f32 v[{T+4}:{T+5}], v[{T+4}:{T+5}], v[{T+6}:{T+7}]
v_pk_add_f32 v[{T}:{T+1}], v[{T}:{T+1}], v[{T+12}:{T+13}]
v_pk_add_f32 v[{T+2}:{T+3}], v[{T+2}:{T+3}], v[{T+14}:{T+15}]
v_pk_add_f32 v[{T}:{T+1}], v[{T}:{T+1}], v[{T+16}:{T+17}]
v_pk_add_f32 v[{T+2}:{T+3}], v[{T+2}:{T+3}], v[{T+18}:{T+19}]
v_pk_add_f32 v[{T+4}:{T+5}], v[{T+4}:{T+5}], v[{T+20}:{T+21}]
v_max3_f32 v{T+8}, v{T}, v{T+1}, v{T+2}
v_pk_add_f32 v[{T+4}:{T+5}], v[{T+4}:{T+5}], v[{T+22}:{T+23}]
v_max_f32 v{T+8}, v{T+8}, v{T+3}
v_max3_f32 v{T+8}, v{T+8}, v{T+4}, v{T+5}""")
    mx = T + 8
    dpp8(a, "v_max_f32", mx)
    a(f"v_mul_f32 v{mx}, s62, v{mx}")
    for j in (0, 2, 4): a(f"v_pk_fma_f32 v[{T+j}:{T+j+1}], v[{T+j}:{T+j+1}], s[62:63], v[{mx}:{mx+1}] op_sel_hi:[1,1,0] neg_lo:[0,0,1] neg_hi:[0,0,1]")
    for j in range(6): a(f"v_exp_f32 v{T+j}, v{T+j}")
    a(f"""v_pk_add_f32 v[{mx}:{mx+1}], v[{T}:{T+1}], v[{T+2}:{T+3}]
v_pk_fma_f32 v[{mx}:{mx+1}], v[{T+4}:{T+5}], 0.5, v[{mx}:{mx+1}] op_sel_hi:[1,0,1]
v_add_f32 v{mx}, v{mx}, v{mx+1}""")
    dpp8(a, "v_add_f32", mx)
    a(f"v_rcp_f32 v{mx}, v{mx}")
    a(f"""v_pk_mul_f32 v[{T}:{T+1}], v[{T}:{T+1}], v[{mx}:{mx+1}] op_sel_hi:[1,0]
v_pk_mul_f32 v[{T+2}:{T+3}], v[{T+2}:{T+3}], v[{mx}:{mx+1}] op_sel_hi:[1,0]
v_pk_mul_f32 v[{T+4}:{T+5}], v[{T+4}:{T+5}], v[{mx}:{mx+1}] op_sel_hi:[1,0]
v_cvt_pk_bf16_f32 v{T}, v{T}, v{T+1}
v_cvt_pk_bf16_f32 v{T+1}, v{T+2}, v{T+3}
buffer_store_dwordx2 v[{T}:{T+1}], v22, s[4:7], s40 offen sc1
v_cvt_pk_bf16_f32 v{T+2}, v{T+4}, v{T+5}
s_mov_b64 exec, s[68:69]
buffer_store_dword v{T+2}, v23, s[4:7], s40 offen sc1
s_mov_b64 exec, -1""")
    stamp(a, 3)
    if STAMP: a("s_waitcnt lgkmcnt(0)")
    a("s_waitcnt vmcnt(2)\ns_branch L_A_x1")
    a.label("L_A_x")
    XS = M + 12
    a("s_waitcnt vmcnt(0)")
    a.label("L_A_x1")
    a(f"v_swap_b32 v{QX+2}, v{QX+4}\nv_swap_b32 v{QX+3}, v{QX+5}")
    tl = ((0, 0), (1, 0), (0, 1), (1, 1), (2, 1))
    for j, (kt, qt) in enumerate(tl):
        src = (X, KX, KX + 4)[kt]
        a(f"v_mfma_f32_16x16x32_bf16 v[{XS+4*j}:{XS+4*j+3}], v[{src}:{src+3}], v[{QX+4*qt}:{QX+4*qt+3}], 0")
    for j, (kt, qt) in enumerate(tl):
        src = (X + 4, KX + 8, KX + 10)[kt]
        a(f"v_mfma_f32_16x16x16_bf16 v[{XS+4*j}:{XS+4*j+3}], v[{src}:{src+1}], v[{QX+8+2*qt}:{QX+9+2*qt}], v[{XS+4*j}:{XS+4*j+3}]")
    for j in range(5): a(f"ds_write_b128 v17, v[{XS+4*j}:{XS+4*j+3}] offset:{1024*j}")
    a("s_waitcnt lgkmcnt(0)\ns_barrier\ns_cmp_lt_u32 s17, 2\ns_cbranch_scc1 L_A_next")
    for w in range(3):
        for j in range(3): a(f"ds_read_b128 v[{T+12*w+4*j}:{T+12*w+4*j+3}], v0 offset:{5120*w + 1024*j}")
    for j in range(0, 12, 2): a(f"v_pk_add_f32 v[{T+j}:{T+j+1}], v[{T+j}:{T+j+1}], v[{T+12+j}:{T+13+j}]")
    for j in range(3): a(f"ds_read_b128 v[{T+12+4*j}:{T+12+4*j+3}], v0 offset:{5120*3 + 1024*j}")
    for j in range(0, 12, 2): a(f"v_pk_add_f32 v[{T+j}:{T+j+1}], v[{T+j}:{T+j+1}], v[{T+24+j}:{T+25+j}]")
    for j in range(0, 12, 2): a(f"v_pk_add_f32 v[{T+j}:{T+j+1}], v[{T+j}:{T+j+1}], v[{T+12+j}:{T+13+j}]")
    a(f"v_mov_b32 v{T+12}, s65\nv_mov_b32 v{T+13}, s64")
    for r in range(4):
        a(f"v_cndmask_b32 v{T+r}, v{T+13}, v{T+r}, s[60:61]")
        a(f"v_cndmask_b32 v{T+4+r}, v{T+12}, v{T+4+r}, s[{44+2*r}:{45+2*r}]")
        a(f"v_cndmask_b32 v{T+8+r}, v{T+12}, v{T+8+r}, s[{52+2*r}:{53+2*r}]")
    mx = T + 12; tm = T + 13
    a(f"v_max3_f32 v{mx}, v{T}, v{T+1}, v{T+2}")
    for j in range(3, 11, 2): a(f"v_max3_f32 v{mx}, v{mx}, v{T+j}, v{T+j+1}")
    a(f"v_max_f32 v{mx}, v{mx}, v{T+11}")
    xlane(a, "v_max_f32", mx, tm, False)
    a(f"v_mul_f32 v{mx}, s62, v{mx}")
    for j in range(0, 12, 2): a(f"v_pk_fma_f32 v[{T+j}:{T+j+1}], v[{T+j}:{T+j+1}], s[62:63], v[{mx}:{mx+1}] op_sel_hi:[1,1,0] neg_lo:[0,0,1] neg_hi:[0,0,1]")
    for j in range(12): a(f"v_exp_f32 v{T+j}, v{T+j}")
    a(f"v_pk_add_f32 v[{mx}:{mx+1}], v[{T}:{T+1}], v[{T+2}:{T+3}]")
    for j in range(4, 12, 2): a(f"v_pk_add_f32 v[{mx}:{mx+1}], v[{mx}:{mx+1}], v[{T+j}:{T+j+1}]")
    a(f"v_add_f32 v{mx}, v{mx}, v{mx+1}")
    xlane(a, "v_add_f32", mx, tm, False)
    a(f"v_rcp_f32 v{mx}, v{mx}")
    for j in range(0, 12, 2): a(f"v_pk_mul_f32 v[{T+j}:{T+j+1}], v[{T+j}:{T+j+1}], v[{mx}:{mx+1}] op_sel_hi:[1,0]")
    O = T + 16
    a(f"""v_cvt_pk_bf16_f32 v{O}, v{T+4}, v{T+5}
v_cvt_pk_bf16_f32 v{O+1}, v{T+8}, v{T+9}
v_cvt_pk_bf16_f32 v{O+2}, v{T+6}, v{T+7}
v_cvt_pk_bf16_f32 v{O+3}, v{T+10}, v{T+11}
v_cvt_pk_bf16_f32 v{O+4}, v{T}, v{T+1}
v_cvt_pk_bf16_f32 v{O+5}, v{T+2}, v{T+3}
s_lshl_b32 s23, s20, 16
s_add_u32 s23, s23, s37
buffer_store_dwordx4 v[{O}:{O+3}], v1, s[4:7], s23 offen sc1
s_lshl_b32 s23, s20, 14
s_add_u32 s23, s23, s38
s_mov_b32 exec_lo, 0
buffer_store_dwordx2 v[{O+4}:{O+5}], v3, s[4:7], s23 offen sc1
s_mov_b32 exec_lo, -1""")
    a.label("L_A_next")
    stamp(a, 4); stamp_flush(a, 8, row_s=20)
    a(f"""s_add_u32 s20, s20, 1
s_cmp_lt_u32 s20, 64
s_cbranch_scc1 L_A_loop
v_mov_b32 v15, s20
s_waitcnt vmcnt(0)
s_mov_b64 exec, 1
buffer_store_dword v15, v1, s[4:7], s72 offen sc1
s_mov_b64 exec, -1""")
    stamp(a, 0)
    if STAMP: a("s_memtime s[78:79]")
    stamp_flush(a, 2, row=65)
    a("s_endpgm")

def gen_main():
    a = Asm()
    a(f"""s_cmp_ge_u32 s2, 256
s_cbranch_scc1 L_exit""")
    if os.environ.get('NOPF') is None:
        a("""s_getpc_b64 s[8:9]
L_pc:
s_mov_b32 s10, L_codeend-L_pc
s_mov_b32 s11, 0x20000
s_lshr_b32 s3, s2, 3
s_lshl_b32 s3, s3, 12
v_lshlrev_b32 v1, 4, v0
buffer_load_dwordx4 v[248:251], v1, s[8:11], s3 offen""")
    a(f"""s_load_dwordx2 s[24:25], s[0:1], {K_WS}
s_load_dwordx2 s[96:97], s[0:1], {K_DBG}
s_load_dwordx8 s[68:75], s[0:1], {K_WQ}
""")
    if os.environ.get('MAP', '0') == '0':
        a("""s_lshr_b32 s16, s2, 3
s_lshl_b32 s16, s16, 2
s_and_b32 s3, s2, 3
s_or_b32 s16, s16, s3
s_and_b32 s3, s2, 4
s_lshl_b32 s3, s3, 5
s_or_b32 s16, s16, s3                   ; position: dies 0..3 first (speed only)""")
    else:
        a("""s_lshr_b32 s16, s2, 3
s_and_b32 s3, s2, 7
s_cmp_lt_u32 s3, 2
s_cbranch_scc0 L_map2
""" + ("""s_lshl_b32 s3, s3, 5
s_or_b32 s16, s16, s3""" if os.environ.get('MAP') == '1' else """s_lshl_b32 s16, s16, 1
s_or_b32 s16, s16, s3""") + """
s_branch L_mapd
L_map2:
s_cmp_lt_u32 s3, 4
s_cbranch_scc0 L_map4
s_lshl_b32 s16, s16, 1
s_and_b32 s3, s3, 1
s_or_b32 s16, s16, s3
s_add_u32 s16, s16, 64
s_branch L_mapd
L_map4:
s_lshl_b32 s16, s16, 2
s_and_b32 s3, s3, 3
s_or_b32 s16, s16, s3
s_add_u32 s16, s16, 128
L_mapd:""")
    a(f"""v_lshrrev_b32 v1, 6, v0
s_nop 0
v_readfirstlane_b32 s17, v1
s_waitcnt lgkmcnt(0)
s_mov_b32 s98, 256
s_mov_b32 s99, 0x20000
s_mov_b32 s39, 0""")
    stamp(a, 0)
    srd(a, 4, 24, WS_BYTES)
    lane_decomp(a)
    WB = 640 * 6144 * 2
    a(f"""s_and_b32 s18, s16, 31
s_lshr_b32 s27, s16, 5                  ; 0 A, 1 V, 2-3 R/idle, 4 K, 5 V, 6 O, 7 Q
s_mov_b32 s10, {WB}
s_mov_b32 s11, 0x20000
s_mov_b32 s14, {WB}
s_mov_b32 s15, 0x20000
s_mov_b64 s[8:9], s[68:69]
s_mov_b64 s[12:13], s[70:71]
s_cmp_eq_u32 s27, 0
s_cbranch_scc1 L_A
s_mov_b64 s[8:9], s[72:73]
s_mov_b64 s[12:13], s[74:75]
s_cmp_eq_u32 s27, 1
s_cbranch_scc1 L_V
s_cmp_ge_u32 s27, 4
s_cbranch_scc1 L_work
s_sub_u32 s18, s16, 64""")
    import k_head
    k_head.role_head(a)
    a(f"""s_sub_u32 s22, s16, 64
s_cmp_ge_u32 s22, 40
s_cbranch_scc1 L_T
s_and_b32 s18, s22, 3
s_mul_i32 s18, s18, 10
s_lshr_b32 s22, s22, 2
s_add_u32 s18, s18, s22
s_branch L_R""")
    a.label("L_exit")
    a("s_endpgm")
    a.label("L_work")
    a(f"""s_sub_u32 s27, s27, 4
s_cmp_eq_u32 s27, {ROLE_V}
s_cbranch_scc1 L_proj
s_mov_b64 s[8:9], s[70:71]
s_cmp_eq_u32 s27, {ROLE_K}
s_cbranch_scc1 L_proj
s_mov_b64 s[8:9], s[68:69]
s_cmp_eq_u32 s27, {ROLE_Q}
s_cbranch_scc1 L_proj
s_mov_b64 s[8:9], s[74:75]
s_branch L_ow""")
    import k_tail
    role_R(a); k_tail.role_attn(a); role_proj(a); k_tail.role_f1(a); k_tail.role_f2(a); role_oworker(a); role_V(a); role_A(a)
    a.label("L_codeend")
    return a.finish(), dict(vgpr=512, sgpr=100, acc=256)
```

```python
from asmgen import Asm
from layout import *

def srd(a, d, lo, nbytes):
    a(f"""s_mov_b32 s{d}, s{lo}
s_mov_b32 s{d+1}, s{lo+1}
s_mov_b32 s{d+2}, {nbytes}
s_mov_b32 s{d+3}, 0x20000""")

def round_bf16(a, v, t):
    a(f"v_cvt_pk_bf16_f32 v{t}, v{v}, v{v}\nv_lshlrev_b32 v{v}, 16, v{t}")

def gen_mod():
    a = Asm()
    a(f"""s_cmp_ge_u32 s2, 62
s_cbranch_scc1 Lm_end
s_load_dwordx4 s[4:7], s[0:1], {K_C}
s_load_dwordx2 s[8:9], s[0:1], {K_WS}
s_waitcnt lgkmcnt(0)""")
    srd(a, 12, 4, 1280); srd(a, 16, 6, 640 * 7680); srd(a, 20, 8, WS_BYTES)
    a(f"""s_cmp_eq_u32 s2, 60
s_cbranch_scc1 Lm_cal
s_cmp_eq_u32 s2, 61
s_cbranch_scc1 Lm_zero
v_lshrrev_b32 v1, 3, v0
v_and_b32 v2, 7, v0                     ; 16B piece
v_mul_u32_u24 v3, 7680, v1
v_lshl_add_u32 v3, v2, 4, v3
s_lshl_b32 s3, s2, 7
v_lshlrev_b32 v4, 1, v1""")
    for i in range(20):
        a(f"buffer_load_ushort v{8+i}, v4, s[12:15], 0 offen offset:{64*i}")
    for i in range(20):
        a(f"s_add_u32 s24, s3, {i*32*7680}\nbuffer_load_dwordx4 v[{32+4*i}:{35+4*i}], v3, s[16:19], s24 offen")
    for i in range(20):
        r = 8 + i
        a(f"""v_lshlrev_b32 v{r}, 16, v{r}
v_mul_f32 v5, 0xbfb8aa3b, v{r}
v_exp_f32 v5, v5
v_add_f32 v5, 1.0, v5
v_rcp_f32 v5, v5
v_mul_f32 v{r}, v{r}, v5""")
        round_bf16(a, r, 5)
    for j in range(8): a(f"v_mov_b32 v{112+j}, 0")
    for i in range(20):
        for j in range(4):
            w = 32 + 4 * i + j
            a(f"""v_lshlrev_b32 v5, 16, v{w}
v_and_b32 v6, 0xffff0000, v{w}
v_fmac_f32 v{112+2*j}, v5, v{8+i}
v_fmac_f32 v{113+2*j}, v6, v{8+i}""")
    a(f"""v_lshlrev_b32 v5, 5, v0
ds_write_b128 v5, v[112:115]
ds_write_b128 v5, v[116:119] offset:16
s_waitcnt lgkmcnt(0)
s_barrier
v_cmp_gt_u32 vcc, 64, v0
s_and_saveexec_b64 s[26:27], vcc
s_cbranch_execz Lm_end
v_lshlrev_b32 v5, 2, v0""")
    for i in range(32): a(f"ds_read_b32 v{32+i}, v5 offset:{256*i}")
    for st in (16, 8, 4, 2, 1):
        for i in range(st): a(f"v_add_f32 v{32+i}, v{32+i}, v{32+st+i}")
    round_bf16(a, 32, 6)
    a(f"""s_mov_b32 s24, 0
s_sub_u32 s25, s2, 10
s_cmp_lt_u32 s25, 10
s_cselect_b32 s24, 1.0, s24
s_sub_u32 s25, s2, 40
s_cmp_lt_u32 s25, 10
s_cselect_b32 s24, 1.0, s24
v_add_f32 v32, s24, v32""")
    round_bf16(a, 32, 6)
    a(f"""s_lshl_b32 s3, s2, 8
buffer_store_dword v32, v5, s[20:23], s3 offen offset:{MOD_OFF}
s_endpgm""")
    a.label("Lm_cal")
    a(f"""v_cmp_eq_u32 vcc, 0, v0
s_and_saveexec_b64 s[26:27], vcc
s_cbranch_execz Lm_end
v_mov_b32 v1, {MP_OFF}
v_mov_b32 v2, 0""")
    for i in range(6):
        for hf in range(2):
            a(f"s_mov_b32 s24, {hf*8192 + i*256}\nbuffer_load_dword v3, v1, s[20:23], s24 offen sc1")
    a("s_waitcnt vmcnt(0)")
    for i in range(6):
        for hf in range(2):
            a(f"s_mov_b32 s24, {hf*8192 + i*256}\nbuffer_store_dword v2, v1, s[20:23], s24 offen sc1")
    a("s_waitcnt vmcnt(0)\ns_mov_b32 s30, -1\ns_mov_b32 s31, -1")
    a("s_mov_b32 s36, 0")
    a.label("Lm_cl")
    for hf in range(2):
        a(f"""s_add_u32 s24, s36, {hf*8192}
s_memtime s[32:33]
s_waitcnt lgkmcnt(0)
buffer_load_dword v3, v1, s[20:23], s24 offen sc1
s_waitcnt vmcnt(0)
s_memtime s[34:35]
s_waitcnt lgkmcnt(0)
s_sub_u32 s34, s34, s32
s_min_u32 s{30+hf}, s{30+hf}, s34""")
    a("s_add_u32 s36, s36, 256\ns_cmp_lt_u32 s36, 1536\ns_cbranch_scc1 Lm_cl")
    a(f"""s_cmp_lt_u32 s30, s31
s_cselect_b32 s24, 0, 8192
s_getreg_b32 s25, hwreg(HW_REG_XCC_ID, 0, 4)
s_and_b32 s25, s25, 4
s_lshl_b32 s25, s25, 11
s_xor_b32 s24, s24, s25
v_mov_b32 v2, s24
v_mov_b32 v1, {PAR_OFF}
buffer_store_dword v2, v1, s[20:23], 0 offen
v_mov_b32 v3, s30
v_mov_b32 v4, s31
v_mov_b32 v5, s25
buffer_store_dword v3, v1, s[20:23], 0 offen offset:4
buffer_store_dword v4, v1, s[20:23], 0 offen offset:8
buffer_store_dword v5, v1, s[20:23], 0 offen offset:12
s_endpgm""")
    a.label("Lm_zero")
    a(f"""v_lshlrev_b32 v1, 4, v0
v_mov_b32 v4, 0
v_mov_b32 v5, 0
v_mov_b32 v6, 0
v_mov_b32 v7, 0""")
    for i in range(FLAG_BYTES // 4096):
        a(f"s_mov_b32 s24, {FLAG_OFF + 4096*i}\nbuffer_store_dwordx4 v[4:7], v1, s[20:23], s24 offen")
    a.label("Lm_end")
    a("s_endpgm")
    return a.finish(), dict(vgpr=128, sgpr=40)

def ln_body(a, pfx, src_srd, src_off, mod_shift, dst_off):
    a(f"""v_lshrrev_b32 v1, 4, v0
v_and_b32 v2, 15, v0                    ; j
v_mul_u32_u24 v3, 1280, v1
v_lshl_add_u32 v3, v2, 4, v3
s_mul_i32 s3, s2, {16*1280}
s_add_u32 s3, s3, {src_off}
v_lshlrev_b32 v4, 5, v2""")
    for i in range(5):
        a(f"buffer_load_dwordx4 v[{8+4*i}:{11+4*i}], v3, s[{src_srd}:{src_srd+3}], s3 offen offset:{256*i}")
    a(f"s_mov_b32 s24, {MOD_OFF + mod_shift*2560}\ns_mov_b32 s25, {MOD_OFF + (mod_shift+1)*2560}")
    for i in range(5):
        for hf in range(2):
            a(f"buffer_load_dwordx4 v[{72+8*i+4*hf}:{75+8*i+4*hf}], v4, s[20:23], s24 offen offset:{512*i+16*hf}")
            a(f"buffer_load_dwordx4 v[{112+8*i+4*hf}:{115+8*i+4*hf}], v4, s[20:23], s25 offen offset:{512*i+16*hf}")
    for i in range(20):
        a(f"v_lshlrev_b32 v{32+2*i}, 16, v{8+i}\nv_and_b32 v{33+2*i}, 0xffff0000, v{8+i}")
    def rowsum(v):
        for sh in (8, 4, 2, 1):
            a(f"v_add_f32_dpp v{v}, v{v}, v{v} row_ror:{sh} row_mask:0xf bank_mask:0xf")
    a("v_add_f32 v5, v32, v33")
    for i in range(34, 72, 2): a(f"v_add_f32 v6, v{i}, v{i+1}\nv_add_f32 v5, v5, v6")
    rowsum(5)
    a(f"v_mul_f32 v5, {hex(f2u(1.0/640))}, v5")
    for i in range(32, 72): a(f"v_sub_f32 v{i}, v{i}, v5")
    a("v_mul_f32 v6, v32, v32")
    for i in range(33, 72): a(f"v_fmac_f32 v6, v{i}, v{i}")
    rowsum(6)
    a(f"""v_mov_b32 v7, {hex(f2u(1e-5))}
v_fmac_f32 v7, {hex(f2u(1.0/640))}, v6
v_rsq_f32 v7, v7""")
    for i in range(40): a(f"v_mul_f32 v{32+i}, v{32+i}, v7")
    for i in range(40): a(f"v_fma_f32 v{32+i}, v{32+i}, v{112+i}, v{72+i}")
    for i in range(20): a(f"v_cvt_pk_bf16_f32 v{8+i}, v{32+2*i}, v{33+2*i}")
    a(f"""v_lshrrev_b32 v5, 2, v2
v_lshlrev_b32 v5, 10, v5                ; (j>>2)*1024
v_and_b32 v6, 3, v2
v_lshl_add_u32 v5, v6, 8, v5            ; + g*256
v_lshl_add_u32 v5, v1, 4, v5            ; + n*16
s_mul_i32 s3, s2, 20480
s_add_u32 s3, s3, {dst_off}""")
    for i in range(5):
        a(f"s_add_u32 s24, s3, {4096*i}\nbuffer_store_dwordx4 v[{8+4*i}:{11+4*i}], v5, s[20:23], s24 offen")
    a("s_endpgm")

import struct
def f2u(x): return struct.unpack('<I', struct.pack('<f', x))[0]

N_INIT = 64 * 11
def gen_ln1():
    a = Asm()
    a(f"""s_cmp_ge_u32 s2, {128 + N_INIT}
s_cbranch_scc1 L1_end
s_load_dwordx4 s[4:7], s[0:1], {K_X}
s_load_dwordx2 s[8:9], s[0:1], {K_WS}
s_waitcnt lgkmcnt(0)""")
    srd(a, 12, 4, 2048 * 1280); srd(a, 16, 6, 8 * 1280); srd(a, 20, 8, WS_BYTES)
    a("s_cmp_ge_u32 s2, 128\ns_cbranch_scc1 L1_init")
    ln_body(a, "L1", 12, 0, 0, HF_OFF)
    a.label("L1_init")
    a(f"""s_load_dword s28, s[8:9], {PAR_OFF}
s_sub_u32 s3, s2, 128
s_and_b32 s24, s3, 63                   ; step
s_lshr_b32 s25, s3, 6                   ; part
v_lshlrev_b32 v1, 4, v0
v_mov_b32 v4, {hex(SENT)}
v_mov_b32 v5, v4
v_mov_b32 v6, v4
v_mov_b32 v7, v4
s_lshl_b32 s26, s24, 20
s_lshl_b32 s27, s25, 16
s_add_u32 s26, s26, s27
s_add_u32 s26, s26, {Y_OFF}
s_lshl_b32 s27, s24, 16
s_add_u32 s27, s27, {MP_OFF}
s_cmp_eq_u32 s25, 10
s_cselect_b32 s26, s27, s26
s_waitcnt lgkmcnt(0)
s_and_b32 s28, s28, 8192
s_lshr_b32 s27, s26, 8
s_and_b32 s27, s27, 8192
s_xor_b32 s27, s27, s28
s_add_u32 s26, s26, s27
s_cmp_eq_u32 s3, {64*10}
s_cbranch_scc1 L1_mem0""")
    for i in range(8):
        a(f"s_add_u32 s27, s26, {(i>>1)*16384 + (i&1)*4096}\nbuffer_store_dwordx4 v[4:7], v1, s[20:23], s27 offen")
    a("s_endpgm")
    a.label("L1_mem0")
    for i in range(3):
        a(f"""v_add_u32 v8, {256*i}, v0
v_bfe_u32 v9, v8, 1, 3
v_mul_u32_u24 v9, 1280, v9
v_lshrrev_b32 v10, 4, v8
v_lshl_add_u32 v9, v10, 5, v9
v_and_b32 v10, 1, v8
v_lshl_add_u32 v9, v10, 4, v9
v_cmp_gt_u32 vcc, 640, v8
v_cndmask_b32 v9, -1, v9, vcc
buffer_load_dwordx4 v[{12+4*i}:{15+4*i}], v9, s[16:19], 0 offen""")
    a(f"v_mov_b32 v11, 0xffc0ffc0")
    for r in range(12, 24):
        a(f"v_cmp_eq_u32 vcc, v{r}, v4\nv_cndmask_b32 v{r}, v{r}, v11, vcc")
    a("v_cmp_gt_u32 vcc, 128, v0")
    for r in range(20, 24): a(f"v_cndmask_b32 v{r}, v4, v{r}, vcc")
    for i in range(8):
        src = f"v[{12+4*i}:{15+4*i}]" if i < 3 else "v[4:7]"
        a(f"s_add_u32 s27, s26, {(i>>1)*16384 + (i&1)*4096}\nbuffer_store_dwordx4 {src}, v1, s[20:23], s27 offen")
    a.label("L1_end")
    a("s_endpgm")
    return a.finish(), dict(vgpr=160, sgpr=40)

def gen_ln2():
    a = Asm()
    a(f"""s_cmp_ge_u32 s2, 128
s_cbranch_scc1 L2_end
s_load_dwordx2 s[8:9], s[0:1], {K_WS}
s_waitcnt lgkmcnt(0)""")
    srd(a, 20, 8, WS_BYTES)
    ln_body(a, "L2", 20, X1_OFF, 3, H2_OFF)
    a.label("L2_end")
    a("s_endpgm")
    return a.finish(), dict(vgpr=160, sgpr=40)
```

```python
from asmgen import Asm
from layout import *
from k_prep import srd, f2u
import k_main as km
from k_main import loader, w_stages, R, SLOT, spin_guard, span_off, xlane, check, stamp, stamp_flush
import math

BACKOFF = 4
def wait_flags(a, lbl, voff, base_s, need_s, cache_s=None, tmp=15):
    if cache_s is not None: a(f"s_cmp_eq_u32 s{cache_s}, 64\ns_cbranch_scc1 {lbl}_ok")
    a(f"s_branch {lbl}_in")
    a.label(lbl)
    a(f"s_sleep {BACKOFF}")
    a.label(lbl + "_in")
    a(f"buffer_load_dword v{tmp}, v{voff}, s[4:7], s{base_s} offen sc1")
    spin_guard(a, 39)
    a(f"s_waitcnt vmcnt(0)\nv_cmp_gt_u32 vcc, s{need_s}, v{tmp}\ns_cbranch_vccnz {lbl}")
    if cache_s is not None:
        a(f"v_cmp_gt_u32 vcc, 64, v{tmp}\ns_cbranch_vccnz {lbl}_ok\ns_mov_b32 s{cache_s}, 64")
        a.label(lbl + "_ok")

def put_flag(a, val_s, addr_s, vz, vt):
    a(f"v_mov_b32 v{vt}, s{val_s}\ns_waitcnt vmcnt(0)\ns_mov_b64 exec, 1\nbuffer_store_dword v{vt}, v{vz}, s[4:7], s{addr_s} offen sc1\ns_mov_b64 exec, -1")

def role_attn(a):
    a.label("L_T")
    a(f"""s_load_dwordx2 s[24:25], s[0:1], {K_X}
s_sub_u32 s18, s16, 104
s_and_b32 s22, s18, 3
s_mul_i32 s32, s22, 10
s_lshr_b32 s22, s18, 3                  ; part
s_lshl_b32 s23, s22, 2
s_min_u32 s23, s23, 6
s_add_u32 s32, s32, s23
s_bfe_u32 s20, s18, 0x10002
s_waitcnt lgkmcnt(0)""")
    srd(a, 8, 24, 2048 * 1280)
    a(f"""v_lshlrev_b32 v4, 4, v1
v_mov_b32 v5, 0
s_lshl_b32 s22, s17, 13
s_lshl_b32 s28, s32, 15
s_add_u32 s28, s28, s22
s_add_u32 s28, s28, {U_OFF}
s_add_u32 s29, s22, {PX_OFF}
s_lshl_b32 s22, s17, 11
s_add_u32 s30, s22, {PXM_OFF}            ; PXM
s_lshl_b32 s33, s32, 14
s_add_u32 s33, s33, s22
v_and_b32 v6, 31, v1
v_lshlrev_b32 v6, 6, v6
v_add_u32 v6, s22, v6
v_and_b32 v7, 7, v1
v_lshlrev_b32 v7, 8, v7
v_bfe_u32 v15, v1, 3, 1
v_lshl_add_u32 v7, v15, 6, v7
v_add_u32 v7, s22, v7
s_mov_b32 s34, {FLAG_OFF + ROLE_O*8192}
s_mov_b32 s35, {FLAG_OFF + ROLE_PX*8192 + 128}
s_lshl_b32 s36, s18, 8
s_lshl_b32 s22, s17, 6
s_add_u32 s36, s36, s22
s_add_u32 s36, s36, {FLAG_OFF + ROLE_X1*8192}
s_lshl_b32 s22, s17, 13
v_add_u32 v8, s22, v4
s_lshr_b32 s22, s17, 1
s_and_b32 s23, s17, 1
s_lshl_b32 s24, s22, 12
s_lshl_b32 s25, s23, 10
s_add_u32 s24, s24, s25
v_add_u32 v9, s24, v4
s_lshr_b32 s24, s32, 1
s_add_u32 s24, s24, s22                 ; kk
s_lshl_b32 s37, s24, 6
s_mul_i32 s25, s23, {16*1280}
s_add_u32 s38, s37, s25
v_mul_u32_u24 v10, 1280, v3
v_lshl_add_u32 v10, v2, 3, v10
s_mul_i32 s25, s23, 20
s_add_u32 s25, s25, s24
s_lshl_b32 s44, s25, 10
s_add_u32 s44, s44, {H2_OFF}
v_lshrrev_b32 v15, 1, v2
v_lshlrev_b32 v11, 8, v15
v_lshl_add_u32 v11, v3, 4, v11
v_and_b32 v15, 1, v2
v_lshl_add_u32 v11, v15, 3, v11
s_mul_i32 s45, s23, 2560
s_lshl_b32 s25, s24, 3
s_add_u32 s45, s45, s25
s_add_u32 s45, s45, {STAT_OFF}
v_mul_u32_u24 v12, 160, v3
v_lshlrev_b32 v15, 4, v2
s_lshl_b32 s22, s37, 1
s_add_u32 s23, s22, {MOD_OFF + 2*2560}
buffer_load_dwordx4 v[16:19], v15, s[4:7], s23 offen sc1
buffer_load_dwordx4 v[20:23], v15, s[4:7], s23 offen offset:64 sc1
s_add_u32 s23, s22, {MOD_OFF + 4*2560}
buffer_load_dwordx4 v[24:27], v15, s[4:7], s23 offen sc1
buffer_load_dwordx4 v[28:31], v15, s[4:7], s23 offen offset:64 sc1
s_mov_b32 s41, {hex(SENT)}
s_mov_b32 s39, 0
s_mov_b32 s46, 0
s_waitcnt vmcnt(0)""")
    ACC = 40; PB = 72; PM = 136; YB = 152; XR = 32
    a.label("L_T_loop")
    a("s_add_u32 s31, s20, 1")
    wait_flags(a, "L_T_wu", 6, 34, 31, cache_s=46)
    a(f"s_mul_i32 s23, s20, {40*32768}\ns_add_u32 s23, s23, s28")
    for ct in range(4):
        for k in range(8):
            if k % 4 == 0: a(f"s_add_u32 s22, s23, {ct*32768 + k*1024}")
            r = (k * 4 + ct) * 4
            a(f"buffer_load_dwordx4 a[{r}:{r+3}], v4, s[4:7], s22 offen offset:{(k%4)*1024} sc1")
    a(f"""s_mul_i32 s47, s20, {32*1280}
s_add_u32 s47, s47, s38
buffer_load_dwordx2 v[{XR}:{XR+1}], v10, s[8:11], s47 offen
buffer_load_dwordx2 v[{XR+2}:{XR+3}], v10, s[8:11], s47 offen offset:32""")
    span_off(a, 42, 20, 0, Y_OFF, 20)
    a(f"""s_add_u32 s42, s42, s33
s_lshl_b32 s40, s20, 16
s_add_u32 s40, s40, s29
s_lshl_b32 s43, s20, 14
s_add_u32 s43, s43, s30""")
    wait_flags(a, "L_T_wp", 7, 35, 31)
    stamp(a, 0)
    for k in range(8):
        for qt in range(2):
            if k % 4 == 0: a(f"s_add_u32 s{22+qt}, s40, {qt*32768 + k*1024}")
            a(f"buffer_load_dwordx4 v[{PB+8*k+4*qt}:{PB+8*k+4*qt+3}], v4, s[4:7], s{22+qt} offen offset:{(k%4)*1024} sc1")
    for qt in range(2):
        a(f"s_add_u32 s22, s43, {qt*8192}")
        for k in range(2): a(f"buffer_load_dwordx4 v[{PM+8*k+4*qt}:{PM+8*k+4*qt+3}], v4, s[4:7], s22 offen offset:{k*1024} sc1")
    def yloads():
        for ct in range(4):
            a(f"s_add_u32 s22, s42, {ct*16384}")
            for k in range(2): a(f"buffer_load_dwordx4 v[{YB+16*k+4*ct}:{YB+16*k+4*ct+3}], v4, s[4:7], s22 offen offset:{k*1024} sc1")
    yloads()
    for k in range(8):
        for ct in range(4):
            for qt in range(2):
                acc = ACC + 8 * ct + 4 * qt; r = (k * 4 + ct) * 4
                c = "0" if k == 0 else f"v[{acc}:{acc+3}]"
                a(f"v_mfma_f32_16x16x32_bf16 v[{acc}:{acc+3}], a[{r}:{r+3}], v[{PB+8*k+4*qt}:{PB+8*k+4*qt+3}], {c}")
    a("s_waitcnt vmcnt(0)")
    a.label("L_T_y")
    check(a, range(YB, YB + 32), 15)
    a("v_cmp_eq_u32 vcc, s41, v15\ns_cbranch_vccz L_T_yok")
    yloads()
    spin_guard(a, 39)
    a("s_waitcnt vmcnt(0)\ns_branch L_T_y")
    a.label("L_T_yok")
    for k in range(2):
        for ct in range(4):
            for qt in range(2):
                acc = ACC + 8 * ct + 4 * qt
                a(f"v_mfma_f32_16x16x32_bf16 v[{acc}:{acc+3}], v[{YB+16*k+4*ct}:{YB+16*k+4*ct+3}], v[{PM+8*k+4*qt}:{PM+8*k+4*qt+3}], v[{acc}:{acc+3}]")
    for j in range(8): a(f"ds_write_b128 v8, v[{ACC+4*j}:{ACC+4*j+3}] offset:{1024*j}")
    a("s_waitcnt lgkmcnt(0)\ns_barrier")
    T = 72
    for w in range(4):
        for u in range(2): a(f"ds_read_b128 v[{T+8*w+4*u}:{T+8*w+4*u+3}], v9 offset:{8192*w + 2048*u}")
    for j in range(0, 8, 2): a(f"v_pk_add_f32 v[{T+j}:{T+j+1}], v[{T+j}:{T+j+1}], v[{T+8+j}:{T+9+j}]")
    for j in range(0, 8, 2): a(f"v_pk_add_f32 v[{T+16+j}:{T+17+j}], v[{T+16+j}:{T+17+j}], v[{T+24+j}:{T+25+j}]")
    for j in range(0, 8, 2): a(f"v_pk_add_f32 v[{T+j}:{T+j+1}], v[{T+j}:{T+j+1}], v[{T+16+j}:{T+17+j}]")
    X = T + 8
    for j in range(4): a(f"v_lshlrev_b32 v{X+2*j}, 16, v{XR+j}\nv_and_b32 v{X+2*j+1}, 0xffff0000, v{XR+j}")
    for j in range(0, 8, 2): a(f"v_pk_fma_f32 v[{X+j}:{X+j+1}], v[{T+j}:{T+j+1}], v[{16+j}:{17+j}], v[{X+j}:{X+j+1}]")
    O = T + 16
    for j in range(4): a(f"v_cvt_pk_bf16_f32 v{O+j}, v{X+2*j}, v{X+2*j+1}")
    a(f"""s_add_u32 s22, s47, {X1_OFF}
buffer_store_dwordx2 v[{O}:{O+1}], v10, s[4:7], s22 offen sc1
buffer_store_dwordx2 v[{O+2}:{O+3}], v10, s[4:7], s22 offen offset:32 sc1""")
    for j in range(4): a(f"v_lshlrev_b32 v{X+2*j}, 16, v{O+j}\nv_and_b32 v{X+2*j+1}, 0xffff0000, v{O+j}")
    for j in range(0, 8, 2): a(f"v_pk_mul_f32 v[{T+j}:{T+j+1}], v[{X+j}:{X+j+1}], v[{24+j}:{25+j}]")
    for j in range(4): a(f"v_cvt_pk_bf16_f32 v{O+4+j}, v{T+2*j}, v{T+2*j+1}")
    a(f"""s_mul_i32 s22, s20, 40960
s_add_u32 s22, s22, s44
buffer_store_dwordx2 v[{O+4}:{O+5}], v11, s[4:7], s22 offen sc1
buffer_store_dwordx2 v[{O+6}:{O+7}], v11, s[4:7], s22 offen offset:512 sc1""")
    S = O + 8
    a(f"v_add_f32 v{S}, v{X}, v{X+1}\nv_mul_f32 v{S+1}, v{X}, v{X}")
    for j in range(2, 8): a(f"v_add_f32 v{S}, v{S}, v{X+j}")
    for j in range(1, 8): a(f"v_fmac_f32 v{S+1}, v{X+j}, v{X+j}")
    xlane(a, "v_add_f32", S, S + 2, False); xlane(a, "v_add_f32", S + 1, S + 3, False)
    a(f"""s_mul_i32 s22, s20, 5120
s_add_u32 s22, s22, s45
s_mov_b64 exec, 0xffff
buffer_store_dwordx2 v[{S}:{S+1}], v12, s[4:7], s22 offen sc1
s_mov_b64 exec, -1
v_xor_b32 v8, 32768, v8
v_xor_b32 v9, 32768, v9""")
    put_flag(a, 31, 36, 5, 15)
    stamp(a, 1); stamp_flush(a, 2, row_s=20)
    a(f"""s_add_u32 s20, s20, 2
s_cmp_lt_u32 s20, 64
s_cbranch_scc1 L_T_loop
s_endpgm""")

def role_f1(a):
    a.label("L_F1")
    a(f"""s_load_dwordx4 s[28:31], s[0:1], {K_W1}      ; w1, b1
s_lshr_b32 s20, s18, 3
s_and_b32 s33, s18, 7
s_mul_i32 s32, s33, 384
s_waitcnt lgkmcnt(0)""")
    srd(a, 8, 28, 640 * 3072); srd(a, 12, 30, 3072)
    loader(a, w_stages(8, 3072, 32, 'nat', lambda c, t, q: ('a', ((2*c + (q >> 1)) * 3 + t) * 4 + 2 * (q & 1))), 0, 16)
    C = 104
    a(f"""s_mul_i32 s22, s17, 96
s_add_u32 s22, s22, s32
v_lshlrev_b32 v4, 3, v2""")
    for t in range(3): a(f"buffer_load_dwordx2 v[{96+2*t}:{97+2*t}], v4, s[12:15], s22 offen offset:{32*t}")
    a(f"v_lshlrev_b32 v4, 5, v2\ns_mov_b32 s22, {MOD_OFF + 4*2560}\ns_mov_b32 s23, {MOD_OFF + 3*2560}")
    for half in range(4):
        for k5 in range(5):
            kk = 5 * half + k5
            for tt in range(2):
                for hh in range(2):
                    r = 128 + 16 * k5 + 8 * tt + 4 * hh
                    a(f"buffer_load_dwordx4 v[{r}:{r+3}], v4, s[4:7], s{22+tt} offen offset:{kk*128 + 16*hh} sc1")
        for k5 in range(5):
            kk = 5 * half + k5
            for tt in range(2):
                r = 128 + 16 * k5 + 8 * tt; o = 16 + 8 * k5 + 4 * tt
                for j in range(4): a(f"v_cvt_pk_bf16_f32 v{o+j}, v{r+2*j}, v{r+2*j+1}")
                for t in range(3):
                    acc = C + 8 * t + 4 * tt
                    c = "0" if kk == 0 else f"v[{acc}:{acc+3}]"
                    a(f"v_mfma_f32_16x16x32_bf16 v[{acc}:{acc+3}], a[{(kk*3+t)*4}:{(kk*3+t)*4+3}], v[{o}:{o+3}], {c}")
    for t in range(3):
        a(f"""v_lshlrev_b32 v8, 16, v{96+2*t}
v_and_b32 v9, 0xffff0000, v{96+2*t}
v_lshlrev_b32 v10, 16, v{97+2*t}
v_and_b32 v11, 0xffff0000, v{97+2*t}""")
        for r in range(4): a(f"v_add_f32 v{C+8*t+4+r}, v{C+8*t+4+r}, v{8+r}")
    a(f"""v_lshlrev_b32 v4, 4, v1
s_mul_i32 s42, s17, 10240
v_add_u32 v5, s42, v4
v_mov_b32 v6, 0
v_mov_b32 v7, v4
v_and_b32 v8, 3, v1
v_min_u32 v15, 2, v2
v_lshl_add_u32 v8, v15, 3, v8
v_lshlrev_b32 v8, 8, v8
v_bfe_u32 v15, v1, 2, 2
v_lshl_add_u32 v8, v15, 6, v8
s_and_b32 s22, s20, 1
s_lshl_b32 s35, s22, 10
s_add_u32 s35, s35, {FLAG_OFF + ROLE_X1*8192}
v_mul_u32_u24 v9, 160, v3
v_mul_u32_u24 v15, 40, v2
v_add_u32 v9, v9, v15
s_mul_i32 s36, s33, 12288
s_mul_i32 s22, s17, 3072
s_add_u32 s36, s36, s22
s_add_u32 s36, s36, {G_OFF}
s_lshl_b32 s34, s18, 8
s_lshl_b32 s22, s17, 6
s_add_u32 s34, s34, s22
s_add_u32 s34, s34, {FLAG_OFF + ROLE_G*8192}
s_mov_b32 s28, 0
s_mov_b32 s44, {hex(f2u(-2.0 * math.sqrt(2.0 / math.pi) * math.log2(math.e)))}
s_mov_b32 s45, {hex(f2u(-2.0 * math.sqrt(2.0 / math.pi) * math.log2(math.e) * 0.044715))}
s_mov_b32 s46, {hex(f2u(1.0 / 640))}
s_mov_b32 s39, 0""")
    B = 16; ACC = 48; ST = 128
    a.label("L_F1_loop")
    a("s_add_u32 s31, s20, 1")
    wait_flags(a, "L_F1_w", 8, 35, 31)
    stamp(a, 0)
    a(f"s_mul_i32 s23, s20, 40960\ns_add_u32 s23, s23, {H2_OFF}\ns_add_u32 s22, s42, s28")
    for i in range(10):
        if i % 4 == 0: a(f"s_add_u32 m0, s22, {i*1024}\ns_add_u32 s26, s23, {i*1024}")
        a(f"buffer_load_dwordx4 v5, s[4:7], s26 offen offset:{(i%4)*1024} sc1 lds")
    a(f"s_mul_i32 s23, s20, 5120\ns_add_u32 s23, s23, {STAT_OFF}")
    for tt in range(2):
        r = ST + 12 * tt
        a(f"""buffer_load_dwordx4 v[{r}:{r+3}], v9, s[4:7], s23 offen offset:{2560*tt} sc1
buffer_load_dwordx4 v[{r+4}:{r+7}], v9, s[4:7], s23 offen offset:{2560*tt+16} sc1
buffer_load_dwordx2 v[{r+8}:{r+9}], v9, s[4:7], s23 offen offset:{2560*tt+32} sc1""")
    a("s_waitcnt vmcnt(6)\ns_barrier")
    def rd(kk):
        b = B + 8 * (kk % 4)
        return [f"ds_read_b128 v[{b}:{b+3}], v7 offset:{kk*1024}", f"ds_read_b128 v[{b+4}:{b+7}], v7 offset:{(20+kk)*1024}"]
    for x in rd(0) + rd(1): a(x)
    slots = []
    for kk in range(20):
        b = B + 8 * (kk % 4)
        for tt in range(2):
            for t in range(3):
                d = ACC + 8 * t + 4 * tt
                c = "0" if kk == 0 else f"v[{d}:{d+3}]"
                slots.append([f"v_mfma_f32_16x16x32_bf16 v[{d}:{d+3}], a[{(kk*3+t)*4}:{(kk*3+t)*4+3}], v[{b+4*tt}:{b+4*tt+3}], {c}", []])
    for kk in range(18):
        r = rd(kk + 2); slots[6*kk][1].append(r[0]); slots[6*kk + 1][1].append(r[1])
    sops = []
    for tt in range(2):
        r = ST + 12 * tt
        for j in (2, 4, 6, 8): sops += [f"v_add_f32 v{r}, v{r}, v{r+j}", f"v_add_f32 v{r+1}, v{r+1}, v{r+j+1}"]
        for sw in ("v_permlane16_swap_b32", "v_permlane32_swap_b32"):
            sops += [f"v_mov_b32 v{r+2}, v{r}", f"v_mov_b32 v{r+3}, v{r+1}", f"{sw} v{r+2}, v{r}", f"{sw} v{r+3}, v{r+1}",
                     f"v_add_f32 v{r}, v{r}, v{r+2}", f"v_add_f32 v{r+1}, v{r+1}, v{r+3}"]
        sops += [f"v_mul_f32 v{r}, s46, v{r}", f"v_mul_f32 v{r+2}, v{r}, v{r}", f"v_fma_f32 v{r+1}, v{r+1}, s46, -v{r+2}",
                 f"v_max_f32 v{r+1}, 0, v{r+1}", f"v_add_f32 v{r+1}, {hex(f2u(1e-5))}, v{r+1}", f"v_rsq_f32 v{r+1}, v{r+1}"]
    for j, x in enumerate(sops): slots[20 + (j * 3) // 2][1].append(x)
    km.emit_stream(a, slots)
    a("v_mov_b32 v92, s44")
    a(f"s_mul_i32 s23, s20, {8*12288}\ns_add_u32 s23, s23, s36")
    for t in range(3):
        for tt in range(2):
            b = ACC + 8 * t + 4 * tt; mu = ST + 12 * tt
            for r in range(4): a(f"v_fma_f32 v{b+r}, -v{mu}, v{C+8*t+r}, v{b+r}")
            for r in range(4): a(f"v_fma_f32 v{b+r}, v{b+r}, v{mu+1}, v{C+8*t+4+r}")
            for r in (0, 2): a(f"v_pk_mul_f32 v[{88+r}:{89+r}], v[{b+r}:{b+r+1}], v[{b+r}:{b+r+1}]")
            for r in range(4): a(f"v_fma_f32 v{88+r}, v{88+r}, s45, v92")
            for r in (0, 2): a(f"v_pk_mul_f32 v[{88+r}:{89+r}], v[{88+r}:{89+r}], v[{b+r}:{b+r+1}]")
            for r in range(4): a(f"v_exp_f32 v{88+r}, v{88+r}")
            for r in (0, 2): a(f"v_pk_add_f32 v[{88+r}:{89+r}], v[{88+r}:{89+r}], 1.0 op_sel_hi:[1,0]")
            for r in range(4): a(f"v_rcp_f32 v{88+r}, v{88+r}")
            for r in (0, 2): a(f"v_pk_mul_f32 v[{b+r}:{b+r+1}], v[{b+r}:{b+r+1}], v[{88+r}:{89+r}]")
        o = 72 + 4 * t; acc = ACC + 8 * t
        for j in range(4): a(f"v_cvt_pk_bf16_f32 v{o+j}, v{acc+2*j}, v{acc+2*j+1}")
        a(f"buffer_store_dwordx4 v[{o}:{o+3}], v4, s[4:7], s23 offen offset:{t*1024} sc1")
    a("s_xor_b32 s28, s28, 65536\nv_xor_b32 v7, 0x10000, v7")
    put_flag(a, 31, 34, 6, 15)
    stamp(a, 1); stamp_flush(a, 2, row_s=20)
    a(f"""s_add_u32 s20, s20, 8
s_cmp_lt_u32 s20, 64
s_cbranch_scc1 L_F1_loop
s_endpgm""")

def role_f2(a):
    a.label("L_F2")
    a(f"""s_load_dwordx4 s[28:31], s[0:1], {K_W2}      ; w2, b2
s_load_dwordx2 s[34:35], s[0:1], {K_OUT}
s_mul_i32 s20, s18, 6554
s_lshr_b32 s20, s20, 16
s_mul_i32 s3, s20, 10
s_sub_u32 s18, s18, s3
s_waitcnt lgkmcnt(0)""")
    srd(a, 8, 28, 1536 * 1280); srd(a, 12, 30, 1280); srd(a, 48, 34, 2048 * 1280)
    a(f"""v_lshrrev_b32 v8, 3, v1                 ; rho
v_and_b32 v9, 7, v1
v_lshrrev_b32 v10, 1, v9
v_lshrrev_b32 v11, 1, v8
v_xor_b32 v10, v10, v11
v_lshlrev_b32 v10, 5, v10
v_and_b32 v9, 1, v9
v_lshl_add_u32 v10, v9, 4, v10
v_mul_u32_u24 v8, 1280, v8
v_add_u32 v8, v8, v10
s_mul_i32 s32, s17, {384*1280}
s_lshl_b32 s22, s18, 7
s_add_u32 s32, s32, s22
s_mul_i32 s33, s17, 32768
v_bfe_u32 v9, v1, 2, 3
v_and_b32 v10, 3, v1
v_lshlrev_b32 v10, 3, v10
v_lshl_add_u32 v10, v9, 7, v10
v_lshrrev_b32 v9, 1, v9
v_lshrrev_b32 v11, 5, v1
v_lshl_add_u32 v10, v11, 10, v10
v_add_u32 v10, s33, v10
s_waitcnt vmcnt(0)""")
    for t in range(4): a(f"v_xor_b32 v11, {t}, v9\nv_lshl_add_u32 v{12+t}, v11, 5, v10")
    def piece(u):
        a(f"s_add_u32 m0, s33, {(u % 32)*1024}\ns_add_u32 s26, s32, {u*8*1280}\nbuffer_load_dwordx4 v8, s[8:11], s26 offen lds")
    for u in range(32): piece(u)
    issued = 32
    for q in range(24):
        a(f"s_waitcnt vmcnt({issued - 2*q - 2})")
        for t in range(4):
            r = ((q >> 1) * 4 + t) * 4 + 2 * (q & 1)
            a(f"ds_read_b64_tr_b16 a[{r}:{r+1}], v{12+t} offset:{((2*q) % 32)*1024}")
        if issued < 48:
            a("s_waitcnt lgkmcnt(0)")
            piece(issued); piece(issued + 1); issued += 2
    a("s_waitcnt lgkmcnt(0)\ns_barrier")
    a(f"""v_lshlrev_b32 v4, 4, v1
s_lshl_b32 s22, s18, 7
s_lshl_b32 s23, s17, 5
s_add_u32 s40, s22, s23
v_lshlrev_b32 v7, 3, v2
buffer_load_dwordx2 v[8:9], v7, s[12:15], s40 offen
v_lshlrev_b32 v7, 4, v2
s_lshl_b32 s22, s40, 1
s_add_u32 s22, s22, {MOD_OFF + 5*2560}
buffer_load_dwordx4 v[160:163], v7, s[4:7], s22 offen sc1
v_mul_u32_u24 v6, 1280, v3
v_lshl_add_u32 v6, v2, 3, v6
v_lshlrev_b32 v16, 16, v8
v_and_b32 v17, 0xffff0000, v8
v_lshlrev_b32 v18, 16, v9
v_and_b32 v19, 0xffff0000, v9
s_lshl_b32 s22, s17, 13
v_add_u32 v5, s22, v4
s_lshl_b32 s22, s17, 11
v_add_u32 v10, s22, v4
s_mul_i32 s41, s17, 24576
s_add_u32 s41, s41, {G_OFF}
v_and_b32 v11, 7, v1
v_lshlrev_b32 v11, 6, v11
s_lshl_b32 s22, s17, 9
v_add_u32 v11, s22, v11
s_mov_b32 s39, 0
s_waitcnt vmcnt(0)""")
    GB = 64; ACC = 24
    a.label("L_F2_loop")
    a(f"""s_add_u32 s31, s20, 1
s_and_b32 s35, s20, 7
s_lshl_b32 s35, s35, 11
s_add_u32 s35, s35, {FLAG_OFF + ROLE_G*8192}""")
    wait_flags(a, "L_F2_w", 11, 35, 31)
    stamp(a, 0)
    a(f"s_mul_i32 s23, s20, {8*12288}\ns_add_u32 s23, s23, s41")
    for T in range(24):
        if T % 4 == 0: a(f"s_add_u32 s22, s23, {T*1024}")
        a(f"buffer_load_dwordx4 v[{GB+4*T}:{GB+4*T+3}], v4, s[4:7], s22 offen offset:{(T%4)*1024} sc1")
    a(f"""s_mul_i32 s23, s20, {32*1280}
s_add_u32 s42, s23, s40
s_add_u32 s43, s42, {16*1280}
s_add_u32 s22, s42, {X1_OFF}
buffer_load_dwordx2 v[20:21], v6, s[4:7], s22 offen sc1
s_add_u32 s22, s43, {X1_OFF}
buffer_load_dwordx2 v[22:23], v6, s[4:7], s22 offen sc1""")
    for p in range(12):
        b = GB + 8 * p
        a(f"v_swap_b32 v{b+2}, v{b+4}\nv_swap_b32 v{b+3}, v{b+5}")
        for t in range(4):
            for tt in range(2):
                acc = ACC + 8 * t + 4 * tt
                c = "0" if p == 0 else f"v[{acc}:{acc+3}]"
                a(f"v_mfma_f32_16x16x32_bf16 v[{acc}:{acc+3}], a[{(p*4+t)*4}:{(p*4+t)*4+3}], v[{b+4*tt}:{b+4*tt+3}], {c}")
    for j in range(8): a(f"ds_write_b128 v5, v[{ACC+4*j}:{ACC+4*j+3}] offset:{1024*j}")
    a("s_waitcnt lgkmcnt(0)\ns_barrier")
    for w in range(4):
        for tt in range(2): a(f"ds_read_b128 v[{64+8*w+4*tt}:{67+8*w+4*tt}], v10 offset:{8192*w + 1024*tt}")
    for j in range(0, 8, 2): a(f"v_pk_add_f32 v[{64+j}:{65+j}], v[{64+j}:{65+j}], v[{72+j}:{73+j}]\nv_pk_add_f32 v[{80+j}:{81+j}], v[{80+j}:{81+j}], v[{88+j}:{89+j}]")
    for j in range(0, 8, 2): a(f"v_pk_add_f32 v[{64+j}:{65+j}], v[{64+j}:{65+j}], v[{80+j}:{81+j}]")
    for tt in range(2):
        o = 64 + 4 * tt; x = 20 + 2 * tt
        for j in range(4): a(f"v_add_f32 v{o+j}, v{o+j}, v{16+j}")
        a(f"""v_lshlrev_b32 v72, 16, v{x}
v_and_b32 v73, 0xffff0000, v{x}
v_lshlrev_b32 v74, 16, v{x+1}
v_and_b32 v75, 0xffff0000, v{x+1}""")
        for j in range(4): a(f"v_fmac_f32 v{72+j}, v{o+j}, v{160+j}")
        a(f"""v_cvt_pk_bf16_f32 v{56+2*tt}, v72, v73
v_cvt_pk_bf16_f32 v{57+2*tt}, v74, v75
buffer_store_dwordx2 v[{56+2*tt}:{57+2*tt}], v6, s[48:51], s{42+tt} offen""")
    stamp(a, 1); stamp_flush(a, 2, row_s=20)
    a(f"""v_xor_b32 v5, 32768, v5
v_xor_b32 v10, 32768, v10
s_add_u32 s20, s20, 6
s_cmp_lt_u32 s20, 64
s_cbranch_scc1 L_F2_loop
s_endpgm""")
```

```python
import sys
sys.path.insert(0, 'gen')
import k_prep, k_main, k_post
NAME = "adaLN_cond__memory_aug_recurrent_mem_tr__dense_activation_gelu__prompt"
ref = open(f"cdna_kernels/{NAME}.s.ref").read()
head = [l for l in ref.split('\n') if l.startswith(';') and '@launch' not in l and 'Override launch' not in l and 'grid=ceil' not in l]
KD = """.amdhsa_kernel {name}
  .amdhsa_next_free_vgpr {vgpr}
  .amdhsa_next_free_sgpr {sgpr}
  .amdhsa_accum_offset {acc}
  .amdhsa_group_segment_fixed_size 0
  .amdhsa_kernarg_size 136
  .amdhsa_user_sgpr_count 2
  .amdhsa_user_sgpr_kernarg_segment_ptr 1
  .amdhsa_system_sgpr_workgroup_id_x 1
  .amdhsa_float_denorm_mode_32 3
.end_amdhsa_kernel
"""
import os
LIST = bool(os.environ.get('LIST'))
def build(kernels, path):
    out = list(head)
    for (name, fn, grid, lds) in kernels:
        out.append(f"; @launch kernel={name} grid=({grid},1,1) block=(256,1,1) lds={lds}" if (len(kernels) > 1 or LIST) else f"; @launch grid=({grid},1,1) block=(256,1,1) lds={lds}")
    out.append('.amdgcn_target "amdgcn-amd-amdhsa--gfx950"\n.text')
    kds = []; seen = set()
    for (name, fn, grid, lds) in kernels:
        if name in seen: continue
        seen.add(name)
        body, info = fn()
        out.append(f".globl {name}\n.p2align 8\n.type {name},@function\n{name}:")
        out.append(body)
        acc = info.get('acc', (info['vgpr'] + 3) // 4 * 4)
        kds.append(".p2align 6\n" + KD.format(name=name, vgpr=info['vgpr'], sgpr=info['sgpr'], acc=acc))
    out.append('.section .rodata,"a"')
    out += kds
    open(path, 'w').write('\n'.join(out))
KERNELS = [
    (NAME + "_kernel", k_main.gen_main, 256, 163840),
]
if __name__ == "__main__":
    build(KERNELS, sys.argv[1] if len(sys.argv) > 1 else f"cdna_kernels/{NAME}.s")
```

```python
from asmgen import Asm
from layout import *
from k_prep import srd, f2u
import math

import os
STAMP = bool(os.environ.get('STAMP'))
ST_OFF = 244 * MB
def stamp(a, i):
    if STAMP: a(f"{'s_memtime' if os.environ.get('STAMP') == '2' else 's_memrealtime'} s[{76+2*i}:{77+2*i}]")
def stamp_flush(a, n, row_s=None, row=None, tmp=15):
    if not STAMP: return
    a("s_waitcnt lgkmcnt(0)\ns_lshl_b32 s92, s16, 2\ns_add_u32 s92, s92, s17\ns_mul_i32 s92, s92, 66")
    a(f"s_add_u32 s92, s92, s{row_s}" if row_s is not None else f"s_add_u32 s92, s92, {row}")
    a(f"s_lshl_b32 s92, s92, 5\ns_add_u32 s92, s92, {ST_OFF}\ns_mov_b64 exec, 1")
    for i in range(n): a(f"v_mov_b32 v{tmp}, s{76+2*i}\nbuffer_store_dword v{tmp}, off, s[4:7], s92 offset:{4*i}")
    a("s_mov_b64 exec, -1")
SLOT = 24576
NCAL = 8
DIAG = os.environ.get('DIAG')
PW = os.environ.get('PW', ''); PA = os.environ.get('PA', ''); PH = os.environ.get('PH', '')
DW = int(os.environ.get('DW', 5)); DA = int(os.environ.get('DA', 5))
SPIN_MAX = 200000

def R(kind, i, n=1):
    return f"{kind}{i}" if n == 1 else f"{kind}[{i}:{i+n-1}]"

def lane_decomp(a):
    a("""v_and_b32 v1, 63, v0
v_lshrrev_b32 v2, 4, v1
v_and_b32 v3, 15, v1""")

def loader(a, stages, shift, tmp, stampload=False, depth=5, pol=''):
    vW = {}; need = {(s['kind'], s['style'], s['stride']) for s in stages}
    t = tmp
    rho, pi, swz, x, y = t, t + 1, t + 2, t + 3, t + 4
    a(f"""v_lshrrev_b32 v{rho}, 3, v1
v_and_b32 v{pi}, 7, v1
v_lshrrev_b32 v{x}, 1, v{pi}
v_lshrrev_b32 v{y}, 1, v{rho}
v_xor_b32 v{x}, v{x}, v{y}
v_lshlrev_b32 v{swz}, 5, v{x}
v_and_b32 v{x}, 1, v{pi}
v_lshl_add_u32 v{swz}, v{x}, 4, v{swz}""")
    nxt = t + 5
    for key in sorted(need):
        kind, style, stride = key
        v = nxt; nxt += 1; vW[key] = v
        if style == 'nat':
            a(f"v_lshrrev_b32 v{x}, 2, v{rho}\nv_and_b32 v{y}, 3, v{rho}\nv_lshl_add_u32 v{v}, v{x}, 3, v{y}")
        elif style == 'sp':
            a(f"v_bfe_u32 v{x}, v{rho}, 1, 1\nv_lshlrev_b32 v{v}, 3, v{x}\nv_lshrrev_b32 v{x}, 2, v{rho}\nv_lshl_add_u32 v{v}, v{x}, 2, v{v}\nv_and_b32 v{x}, 1, v{rho}\nv_add_u32 v{v}, v{v}, v{x}")
        else:
            a(f"v_mov_b32 v{v}, v{rho}")
        if kind == 'W':
            if style == 'lin':
                a(f"s_lshl_b32 s22, s17, 4")
            else:
                a(f"s_lshr_b32 s22, s17, 1\ns_lshl_b32 s22, s22, 5\ns_and_b32 s23, s17, 1\ns_lshl_b32 s23, s23, {2 if style == 'nat' else 1}\ns_add_u32 s22, s22, s23")
            a(f"v_add_u32 v{v}, s22, v{v}\ns_mov_b32 s22, {stride}\nv_mul_lo_u32 v{v}, v{v}, s22\nv_add_u32 v{v}, v{v}, v{swz}")
        else:
            a(f"s_and_b32 s22, s17, 1\ns_lshl_b32 s22, s22, {3 if style == 'lin' else 4}\nv_add_u32 v{v}, s22, v{v}\ns_mov_b32 s22, {stride}\nv_mul_lo_u32 v{v}, v{v}, s22\nv_add_u32 v{v}, v{v}, v{swz}")
            a(f"s_lshr_b32 s22, s17, 1\ns_mul_i32 s22, s22, 640\nv_add_u32 v{v}, s22, v{v}")
    a("s_mul_i32 s24, s17, 6144\ns_and_b32 s25, s17, 1\ns_mul_i32 s25, s25, 10240\ns_lshr_b32 s22, s17, 1\ns_mul_i32 s22, s22, 5120\ns_add_u32 s25, s25, s22")
    kinds = {s['kind'] for s in stages}
    aW = aO = None
    rr, cc = rho, pi
    a(f"""v_bfe_u32 v{rr}, v1, 2, 3               ; 4*(g&1) + r
v_and_b32 v{cc}, 3, v1
v_lshlrev_b32 v{cc}, 3, v{cc}
v_lshl_add_u32 v{cc}, v{rr}, 7, v{cc}      ; rho*128 + c*8
v_lshrrev_b32 v{rr}, 1, v{rr}              ; rho>>1
v_lshrrev_b32 v{y}, 5, v1                 ; gh""")
    def tile_addrs(n, ghmul):
        nonlocal nxt
        base = nxt; nxt += n
        for tt in range(n):
            a(f"""s_mul_i32 s22, s17, {n}
s_add_u32 s22, s22, {tt}
s_and_b32 s23, s22, 3
s_lshr_b32 s22, s22, 2
s_lshl_b32 s22, s22, 10
v_xor_b32 v{x}, s23, v{rr}
v_lshl_add_u32 v{base+tt}, v{x}, 5, v{cc}
v_add_u32 v{base+tt}, s22, v{base+tt}
v_mul_u32_u24 v{x}, {ghmul}, v{y}
v_add_u32 v{base+tt}, v{base+tt}, v{x}""")
        return base
    if 'W' in kinds: aW = tile_addrs(3, 3072)
    if 'O' in kinds: aO = tile_addrs(10, 10240)
    cur = nxt; nxt += 10
    assert nxt <= tmp + 34, nxt - tmp
    cnt = [6 if s['kind'] == 'W' else 5 for s in stages]
    def issue(n):
        s = stages[n]; slot = ((n + shift) % 6) * SLOT
        v = vW[(s['kind'], s['style'], s['stride'])]
        for i in range(cnt[n]):
            if s['kind'] == 'W':
                gh, cb = divmod(i, 3)
                rows = s['row0'] + (8 if s['style'] == 'lin' else 16) * gh
                off = rows * s['stride'] + cb * 128
                a(f"s_add_u32 m0, s24, {slot + i*1024}")
            else:
                off = s['row0'] * s['stride'] + i * 128
                a(f"s_add_u32 m0, s25, {slot + i*1024}")
            a(f"s_add_u32 s26, s{s['col']}, {off}\nbuffer_load_dwordx4 v{v}, s[{s['srd']}:{s['srd']+3}], s26 offen {pol} lds")
    N = len(stages)
    for n in range(min(depth, N)): issue(n)
    for n in range(N):
        s = stages[n]
        if s['dests'] is None and all(x['dests'] is None for x in stages[n:]) and n + depth >= N:
            break
        later = sum(cnt[n+1:min(n+depth, N)])
        a(f"s_waitcnt vmcnt({later})\ns_barrier")
        if n + depth < N: issue(n + depth)
        if s['dests'] is None: continue
        slot = ((n + shift) % 6) * SLOT
        nt = 3 if s['kind'] == 'W' else 10
        base = aW if s['kind'] == 'W' else aO
        for tt in range(nt): a(f"v_add_u32 v{cur+tt}, {slot}, v{base+tt}")
        for tt in range(nt):
            for q in range(4 if s['kind'] == 'W' else 1):
                k, r = s['dests'](tt, q)
                a(f"ds_read_b64_tr_b16 {R(k, r, 2)}, v{cur+tt} offset:{q*6144}")
        a("s_waitcnt lgkmcnt(0)")
    a("s_waitcnt vmcnt(0)\ns_barrier")
    res = [n for n in range(N) if stages[n]['dests'] is None]
    if res:
        fb = tmp + 36
        a(f"s_mul_i32 s22, s17, 6144\nv_lshlrev_b32 v{x}, 4, v1\nv_add_u32 v{x}, s22, v{x}")
        for n in res:
            slot = ((n + shift) % 6) * SLOT
            for tt in range(3): a(f"v_add_u32 v{cur+tt}, {slot}, v{aW+tt}")
            a(f"v_add_u32 v{cur+3}, {slot}, v{x}")
            for tt in range(3):
                for q in range(4): a(f"ds_read_b64_tr_b16 v[{fb+8*tt+2*q}:{fb+8*tt+2*q+1}], v{cur+tt} offset:{q*6144}")
            a("s_waitcnt lgkmcnt(0)\ns_barrier")
            for j in range(6): a(f"ds_write_b128 v{cur+3}, v[{fb+4*j}:{fb+4*j+3}] offset:{j*1024}")
            a("s_waitcnt lgkmcnt(0)")
    if STAMP and stampload:
        stamp(a, 1); a("s_memtime s[80:81]"); stamp_flush(a, 3, row=64, tmp=tmp); a("s_waitcnt vmcnt(0)")
    if stampload:
        import k_head
        loader.n = getattr(loader, 'n', 0) + 1
        k_head.wait_head(a, f"L_wh{loader.n}", tmp)
    return aW

def spin_guard(a, s):
    a(f"s_add_u32 s{s}, s{s}, 1\ns_cmp_gt_u32 s{s}, {SPIN_MAX}\ns_cbranch_scc1 L_exit")

def flag_addr(a, dst_s, role, head_s, wave_s=None):
    a(f"s_lshl_b32 s{dst_s}, s{head_s}, 8\ns_add_u32 s{dst_s}, s{dst_s}, {FLAG_OFF + role*32*256}")
    if wave_s is not None:
        a(f"s_lshl_b32 s22, s{wave_s}, 6\ns_add_u32 s{dst_s}, s{dst_s}, s22")

def proj_loop(a, pfx, src_off, seg0_s, nseg, out_base_s, sc, epilogue, flag_s=None, segstride=32*12288):
    HS = 40960
    a(f"""v_lshlrev_b32 v4, 4, v1                 ; lane*16
s_mul_i32 s22, s17, 10240
v_add_u32 v5, s22, v4
v_mov_b32 v6, 0
s_mov_b32 s28, 0
s_mov_b32 s29, {HS}                     ; next
s_mov_b32 s30, {2*HS}                   ; next-next""")
    def dma(seg_s, slot_s):
        a(f"s_min_u32 s23, s{seg_s}, 63\ns_mul_i32 s23, s23, {HS}\ns_add_u32 s23, s23, {src_off}\ns_mul_i32 s22, s17, 10240\ns_add_u32 s22, s22, s{slot_s}")
        for i in range(10):
            if i % 4 == 0:
                a(f"s_add_u32 m0, s22, {i*1024}\ns_add_u32 s26, s23, {i*1024}")
            a(f"buffer_load_dwordx4 v5, s[4:7], s26 offen offset:{(i%4)*1024} lds")
    dma(20, 28)
    a("s_add_u32 s31, s20, 1"); dma(31, 29)
    a("s_waitcnt vmcnt(10)")
    a.label(pfx + "_loop")
    a("s_barrier\ns_add_u32 s31, s20, 2")
    dma(31, 30)
    a("v_add_u32 v7, s28, v4")
    B = 16; ACC = 48
    def rd(kk):
        b = B + 8 * (kk % 3)
        a(f"ds_read_b128 v[{b}:{b+3}], v7 offset:{kk*1024}\nds_read_b128 v[{b+4}:{b+7}], v7 offset:{(20+kk)*1024}")
    rd(0); rd(1)
    for kk in range(20):
        if kk + 2 < 20: rd(kk + 2)
        b = B + 8 * (kk % 3)
        for tt in range(2):
            for t in range(3):
                acc = ACC + 8 * t + 4 * tt
                c = "0" if kk == 0 else f"v[{acc}:{acc+3}]"
                a(f"v_mfma_f32_16x16x32_bf16 v[{acc}:{acc+3}], a[{(kk*3+t)*4}:{(kk*3+t)*4+3}], v[{b+4*tt}:{b+4*tt+3}], {c}")
        if kk == 10:
            a("s_waitcnt vmcnt(10)")
            if flag_s is not None:
                a(f"v_mov_b32 v8, s20\ns_mov_b64 exec, 1\nbuffer_store_dword v8, v6, s[4:7], s{flag_s} offen sc1\ns_mov_b64 exec, -1")
    epilogue(a, ACC)
    a(f"s_mul_i32 s23, s20, {segstride}\ns_add_u32 s23, s23, s{out_base_s}")
    for t in range(3):
        o = 72 + 4 * t; acc = ACC + 8 * t
        for j in range(4): a(f"v_cvt_pk_bf16_f32 v{o+j}, v{acc+2*j}, v{acc+2*j+1}")
        a(f"buffer_store_dwordx4 v[{o}:{o+3}], v4, s[4:7], s23 offen offset:{t*1024} {sc}")
    a(f"""s_mov_b32 s22, s28
s_mov_b32 s28, s29
s_mov_b32 s29, s30
s_mov_b32 s30, s22
s_add_u32 s20, s20, 1
s_cmp_lt_u32 s20, s21
s_cbranch_scc1 {pfx}_loop
s_waitcnt vmcnt(0)""")
    if flag_s is not None:
        a(f"v_mov_b32 v8, s20\ns_mov_b64 exec, 1\nbuffer_store_dword v8, v6, s[4:7], s{flag_s} offen sc1\ns_mov_b64 exec, -1")

def proj_stream(a, pfx, src_off, out_base_s, flag_s):
    HS = 40960
    a(f"""v_lshlrev_b32 v4, 4, v1                 ; lane*16
s_mul_i32 s42, s17, 10240
v_add_u32 v5, s42, v4
v_mov_b32 v6, 0""")
    def dma_ops(seg_s, slot_s):
        ops = [[f"s_min_u32 s23, s{seg_s}, 63", f"s_mul_i32 s23, s23, {HS}", f"s_add_u32 s23, s23, {src_off}", f"s_add_u32 s22, s42, s{slot_s}"]]
        for i in range(10):
            o = []
            if i % 4 == 0: o += [f"s_add_u32 m0, s22, {i*1024}", f"s_add_u32 s26, s23, {i*1024}"]
            o.append(f"buffer_load_dwordx4 v5, s[4:7], s26 offen offset:{(i%4)*1024} sc1 lds")
            ops.append(o)
        return ops
    for j in range(3):
        a(f"s_mov_b32 s31, {j}\ns_mov_b32 s30, {j*HS}")
        for o in dma_ops(31, 30):
            for x in o: a(x)
    B = 16; ACCS = (48, 72); O = 96
    def rd(kk, ad):
        b = B + 8 * (kk % 4)
        return [f"ds_read_b128 v[{b}:{b+3}], v{ad} offset:{(kk%20)*1024}", f"ds_read_b128 v[{b+4}:{b+7}], v{ad} offset:{(20+kk%20)*1024}"]
    a(f"""s_mov_b32 s28, 0
s_mov_b32 s43, s{out_base_s}
v_mov_b32 v7, v4
s_waitcnt vmcnt(20)
s_barrier""")
    for x in rd(0, 7) + rd(1, 7): a(x)
    a("s_waitcnt lgkmcnt(0)")
    def epi_ops(acc):
        ops = []
        for t in range(3):
            o = O + 4 * t
            for j in range(4): ops.append(f"v_cvt_pk_bf16_f32 v{o+j}, v{acc+8*t+2*j}, v{acc+8*t+2*j+1}")
            ops.append(f"buffer_store_dwordx4 v[{o}:{o+3}], v4, s[4:7], s43 offen offset:{t*1024} sc1")
        return ops
    def body(par, first):
        acc = ACCS[par]; cur = 7 + par; nxt = 8 - par
        slots = []
        for kk in range(20):
            b = B + 8 * (kk % 4)
            for tt in range(2):
                for t in range(3):
                    d = acc + 8 * t + 4 * tt
                    c = "0" if kk == 0 else f"v[{d}:{d+3}]"
                    slots.append([f"v_mfma_f32_16x16x32_bf16 v[{d}:{d+3}], a[{(kk*3+t)*4}:{(kk*3+t)*4+3}], v[{b+4*tt}:{b+4*tt+3}], {c}", []])
        for kk in range(20):
            r = rd(kk + 2, cur if kk + 2 < 20 else nxt)
            slots[6*kk][1].append(r[0]); slots[6*kk + 1][1].append(r[1])
        if not first:
            for j, x in enumerate(epi_ops(ACCS[1 - par])): slots[3 + 2*j][1].append(x)
            slots[32][1].append(f"s_add_u32 s43, s43, {32*12288}")
        nst = 0 if first else 3
        slots[33][1] += [f"s_add_u32 s29, s28, {HS}", f"s_cmp_eq_u32 s29, {4*HS}", "s_cselect_b32 s29, 0, s29"]
        slots[34][1] += [f"v_add_u32 v{nxt}, s29, v4", "v_mov_b32 v9, s20"]
        slots[35][1] += [f"s_waitcnt vmcnt({10 + nst})", "s_barrier"]
        slots[38][1] += [f"s_add_u32 s30, s28, {3*HS}", f"s_sub_u32 s31, s30, {4*HS}", f"s_cmp_ge_u32 s30, {4*HS}"]
        slots[39][1] += ["s_cselect_b32 s30, s31, s30", "s_add_u32 s31, s20, 3"]
        ops = dma_ops(31, 30)
        slots[40][1] += ops[0][:2]; slots[41][1] += ops[0][2:]
        for i in range(10): slots[(44, 47, 51, 56, 59, 63, 68, 71, 75, 80)[i]][1] += ops[1 + i]
        return slots
    def flag(n):
        return [f"s_waitcnt vmcnt({n})", "s_mov_b64 exec, 1", f"buffer_store_dword v9, v6, s[4:7], s{flag_s} offen sc1", "s_mov_b64 exec, -1"]
    def emit(par, first):
        sl = body(par, first)
        if not first: sl[93][1] += flag(10)
        for mf, fl in sl:
            a(mf)
            fl = sorted(fl, key=lambda x: 1 if x.startswith('v_') else 0)
            for f in fl: a(f)
        a("s_mov_b32 s28, s29\ns_add_u32 s20, s20, 1")
    emit(0, True)
    a("s_waitcnt lgkmcnt(0)")
    a.label(pfx + "_loop")
    emit(1, False)
    a(f"s_cmp_eq_u32 s20, 64\ns_cbranch_scc1 {pfx}_fin")
    emit(0, False)
    a(f"s_waitcnt lgkmcnt(0)\ns_branch {pfx}_loop")
    a.label(pfx + "_fin")
    for x in epi_ops(ACCS[1]): a(x)
    a("v_mov_b32 v9, s20")
    for x in flag(0): a(x)
    a("s_waitcnt vmcnt(0) lgkmcnt(0)\ns_barrier")

def w_stages(srd_, stride, col, style, dest_fn, n=10, resident=()):
    st = []
    for c in range(n):
        st.append(dict(kind='W', srd=srd_, stride=stride, col=col, style=style, row0=64 * c,
                       dests=None if c in resident else (lambda t, q, c=c: dest_fn(c, t, q))))
    return st

def role_proj(a):
    a.label("L_proj")
    a("s_mul_i32 s32, s18, 384")
    loader(a, w_stages(8, 12288, 32, 'nat', lambda c, t, q: ('a', ((2*c + (q >> 1)) * 3 + t) * 4 + 2 * (q & 1))), 0, 16, True, depth=DW, pol=PW)
    a(f"""s_mov_b32 s33, {KX_OFF}
s_cmp_eq_u32 s27, {ROLE_V}
s_cselect_b32 s33, {VX_OFF}, s33
s_cmp_eq_u32 s27, {ROLE_Q}
s_cselect_b32 s33, {QX_OFF}, s33
s_mul_i32 s22, s18, 12288
s_add_u32 s33, s33, s22
s_mul_i32 s22, s17, 3072
s_add_u32 s33, s33, s22
s_lshl_b32 s34, s27, 13
s_lshl_b32 s22, s18, 8
s_add_u32 s34, s34, s22
s_lshl_b32 s22, s17, 6
s_add_u32 s34, s34, s22
s_add_u32 s34, s34, {FLAG_OFF}
s_mov_b32 s20, 0
s_mov_b32 s21, 64""")
    proj_stream(a, "L_proj", HF_OFF, 33, 34)
    stamp(a, 0)
    if STAMP: a("s_memtime s[78:79]")
    stamp_flush(a, 2, row=65)
    if STAMP: a("s_waitcnt vmcnt(0)")
    a(f"""s_cmp_eq_u32 s27, {ROLE_K}
s_cbranch_scc1 L_F1
s_add_u32 s18, s18, 32
s_cmp_eq_u32 s27, {ROLE_V}
s_cbranch_scc1 L_F1
s_sub_u32 s18, s18, 32
s_cmp_lt_u32 s18, 30
s_cbranch_scc1 L_F2
s_endpgm""")

def role_oworker(a):
    a.label("L_ow")
    a("s_mul_i32 s32, s18, 245760")
    st = [dict(kind='O', srd=8, stride=1280, col=32, style='lin', row0=16 * q,
               dests=(lambda t, qq, q=q: ('a', (t * 6 + (q >> 1)) * 4 + 2 * (q & 1)))) for q in range(12)]
    loader(a, st, 0, 16, True, depth=DW, pol=PW)
    flag_addr(a, 34, ROLE_O, 18, 17)
    flag_addr(a, 35, ROLE_V, 18)
    a(f"""v_lshlrev_b32 v4, 4, v1                 ; lane*16
v_and_b32 v5, 3, v1
v_lshlrev_b32 v5, 6, v5
v_mov_b32 v6, 0
s_mul_i32 s36, s18, 12288
s_mul_i32 s22, s17, 3072
s_add_u32 s36, s36, s22
s_add_u32 s36, s36, {VX_OFF}
s_lshl_b32 s37, s18, 10
s_mul_i32 s22, s17, {10*32768}
s_add_u32 s37, s37, s22
s_add_u32 s37, s37, {U_OFF}
s_mul_i32 s38, s17, 3072
s_mov_b32 s28, 0
s_mov_b32 s29, 12288
s_mov_b32 s20, 0
s_mov_b32 s39, 0""")
    def waitflag(lbl, need_s):
        a.label(lbl)
        a(f"buffer_load_dword v9, v5, s[4:7], s35 offen sc1")
        spin_guard(a, 39)
        a(f"s_waitcnt vmcnt(0)\nv_cmp_gt_u32 vcc, s{need_s}, v9\ns_cbranch_vccnz {lbl}")
    def dma(seg_s, slot_s):
        a(f"s_min_u32 s23, s{seg_s}, 63\ns_mul_i32 s23, s23, {32*12288}\ns_add_u32 s23, s23, s36\ns_add_u32 m0, s38, s{slot_s}")
        for i in range(3): a(f"buffer_load_dwordx4 v4, s[4:7], s23 offen offset:{i*1024} sc1 lds")
    a("s_mov_b32 s31, 1")
    waitflag("L_ow_w0", 31)
    a("s_mov_b32 s31, 0\ns_mov_b32 s30, 0"); dma(31, 30)
    a("s_waitcnt vmcnt(0)\ns_barrier")
    AS = (16, 64)
    ACC = 112; OB = 128
    def aread(A0, ad):
        return [f"ds_read2_b64 v[{A0+8*p+4*tt}:{A0+8*p+4*tt+3}], v{ad+p} offset0:{tt} offset1:{128+tt}" for p in range(6) for tt in range(2)]
    AD = 140
    for p in range(6): a(f"v_add_u32 v{AD+p}, {2048*p}, v4")
    for x in aread(AS[0], AD): a(x)
    a("s_mov_b32 s31, 2")
    waitflag("L_ow_w1", 31)
    a("s_mov_b32 s31, 1\ns_mov_b32 s30, 12288"); dma(31, 30)
    a(f"s_mov_b32 s28, 12288\ns_mov_b32 s43, s37\ns_waitcnt lgkmcnt(0)")
    def epi(t):
        acc = ACC + 8 * (t % 2); o = OB + 4 * (t % 2)
        return [f"v_cvt_pk_bf16_f32 v{o}, v{acc}, v{acc+1}", f"v_cvt_pk_bf16_f32 v{o+1}, v{acc+4}, v{acc+5}",
                f"v_cvt_pk_bf16_f32 v{o+2}, v{acc+2}, v{acc+3}", f"v_cvt_pk_bf16_f32 v{o+3}, v{acc+6}, v{acc+7}",
                f"buffer_store_dwordx4 v[{o}:{o+3}], v4, s[4:7], s43 offen sc1", "s_add_u32 s43, s43, 32768"]
    def emit(par, first):
        A0 = AS[par]
        slots = []
        for t in range(10):
            acc = ACC + 8 * (t % 2)
            for p in range(6):
                for tt in range(2):
                    c = "0" if p == 0 else f"v[{acc+4*tt}:{acc+4*tt+3}]"
                    slots.append([f"v_mfma_f32_16x16x32_bf16 v[{acc+4*tt}:{acc+4*tt+3}], v[{A0+8*p+4*tt}:{A0+8*p+4*tt+3}], a[{(t*6+p)*4}:{(t*6+p)*4+3}], {c}", []])
        for t in range(10):
            if t == 0 and first: continue
            e = epi((t - 1) % 10)
            for jj in range(4): slots[12*t + 2 + jj][1].append(e[jj])
            slots[12*t + 7][1].append(e[4]); slots[12*t + 8][1].append(e[5])
        if not first: slots[9][1].append(f"s_add_u32 s43, s43, {30*32768}")
        slots[10][1] += ["buffer_load_dword v9, v5, s[4:7], s35 offen sc1", "s_add_u32 s31, s20, 3", "s_min_u32 s31, s31, 64"]
        slots[58][1] += ["v_mov_b32 v8, s20"]
        for p in range(6): slots[48 + p][1].append(f"v_add_u32 v{AD+p}, s{46+p}, v4")
        for p in range(6): slots[36 + p][1].append(f"s_add_u32 s{46+p}, s28, {2048*p}")
        lbl = f"L_ow_x{par}{int(first)}"
        def out(lo, hi):
            for mf, fl in slots[lo:hi]:
                a(mf)
                for f in sorted(fl, key=lambda x: 1 if x.startswith('v_') else 0): a(f)
        out(0, 60)
        a("s_waitcnt vmcnt(4)\ns_barrier")
        if not first: a("s_mov_b64 exec, 1\nbuffer_store_dword v8, v6, s[4:7], s34 offen sc1\ns_mov_b64 exec, -1")
        a(f"v_cmp_gt_u32 vcc, s31, v9\ns_cbranch_vccz {lbl}_go")
        waitflag(lbl, 31)
        a.label(lbl + "_go")
        a("s_add_u32 s30, s28, 12288\ns_cmp_eq_u32 s30, 36864\ns_cselect_b32 s30, 0, s30\ns_add_u32 s31, s20, 2")
        for k, x in enumerate(aread(AS[1 - par], AD)): slots[72 + 3*k][1].insert(0, x)
        d = [f"s_min_u32 s23, s31, 63", f"s_mul_i32 s23, s23, {32*12288}", "s_add_u32 s23, s23, s36", "s_add_u32 m0, s38, s30"]
        slots[60][1] += d[:2]; slots[61][1] += d[2:]
        for i in range(3): slots[(66, 69, 70)[i]][1].append(f"buffer_load_dwordx4 v4, s[4:7], s23 offen offset:{i*1024} sc1 lds")
        out(60, 120)
        a("s_mov_b32 s28, s30\ns_add_u32 s20, s20, 1\ns_waitcnt lgkmcnt(0)")
    emit(0, True)
    a.label("L_ow_loop")
    emit(1, False)
    a("s_cmp_eq_u32 s20, 64\ns_cbranch_scc1 L_ow_fin")
    emit(0, False)
    a("s_branch L_ow_loop")
    a.label("L_ow_fin")
    for x in epi(9): a(x)
    a("""s_waitcnt vmcnt(0)
v_mov_b32 v8, s20
s_mov_b64 exec, 1
buffer_store_dword v8, v6, s[4:7], s34 offen sc1
s_mov_b64 exec, -1
s_barrier""")
    stamp(a, 0)
    if STAMP: a("s_memtime s[78:79]")
    stamp_flush(a, 2, row=65)
    a("""s_add_u32 s18, s18, 30
s_cmp_lt_u32 s18, 60
s_cbranch_scc1 L_F2
s_endpgm""")

def remap(a, v, t):
    a(f"v_lshrrev_b32 v{t}, 13, v{v}\nv_and_b32 v{v}, 8191, v{v}\nv_lshl_add_u32 v{v}, v{t}, 14, v{v}")

def span_off(a, dst, step_s, plus, base, shift):
    a(f"s_add_u32 s{dst}, s{step_s}, {plus}\ns_lshl_b32 s{dst}, s{dst}, {shift}\ns_add_u32 s{dst}, s{dst}, {base}\ns_lshr_b32 s22, s{dst}, 8\ns_and_b32 s22, s22, 8192\ns_xor_b32 s22, s22, s19\ns_add_u32 s{dst}, s{dst}, s22")

def idx_reg(a, v):
    a(f"v_and_b32 v{v}, 1, v1\nv_cmp_eq_u32 vcc, 0, v{v}\nv_mov_b32 v{v}, 0xeeee\nv_mov_b32 v{v+1}, 0x4444\nv_cndmask_b32 v{v}, v{v}, v{v+1}, vcc")

def check(a, regs, acc):
    regs = list(regs)
    first = True
    while regs:
        if first:
            x = regs[:3]; regs = regs[3:]; a(f"v_max3_u32 v{acc}, v{x[0]}, v{x[1]}, v{x[2]}"); first = False
        elif len(regs) >= 2:
            x = regs[:2]; regs = regs[2:]; a(f"v_max3_u32 v{acc}, v{acc}, v{x[0]}, v{x[1]}")
        else:
            a(f"v_max_u32 v{acc}, v{acc}, v{regs[0]}"); regs = []

MEMLDS = 6 * SLOT
def mem_poll_setup(a, vA):
    a(f"""s_mul_i32 s22, s17, 2560
v_lshlrev_b32 v{vA}, 4, v1
v_add_u32 v{vA}, s22, v{vA}
v_add_u32 v{vA+3}, {MEMLDS}, v{vA}
v_add_u32 v{vA+1}, 1024, v{vA}
v_and_b32 v{vA+2}, 31, v1
v_lshlrev_b32 v{vA+2}, 4, v{vA+2}
v_add_u32 v{vA+2}, s22, v{vA+2}
v_add_u32 v{vA+2}, 2048, v{vA+2}
v_add_u32 v{vA+4}, {MEMLDS}, v{vA+2}""")
    for i in range(3): remap(a, vA + i, 15)

def mem_poll(a, lbl, vA, P, T):
    stamp(a, 0)
    if STAMP: a("s_waitcnt lgkmcnt(0)")
    a.label(lbl)
    for i in range(3): a(f"buffer_load_dwordx4 v[{P+4*i}:{P+4*i+3}], v{vA+i}, s[4:7], s40 offen sc1")
    spin_guard(a, 39)
    a(f"""ds_write_b128 v{vA+3}, v[{P}:{P+3}]
v_max3_u32 v{T}, v{P}, v{P+1}, v{P+2}
ds_write_b128 v{vA+3}, v[{P+4}:{P+7}] offset:1024
v_max3_u32 v{T}, v{T}, v{P+3}, v{P+4}
v_max3_u32 v{T}, v{T}, v{P+5}, v{P+6}
ds_write_b128 v{vA+4}, v[{P+8}:{P+11}]
v_max3_u32 v{T}, v{T}, v{P+7}, v{P+8}
v_max3_u32 v{T}, v{T}, v{P+9}, v{P+10}
v_max_u32 v{T}, v{T}, v{P+11}
v_cmp_eq_u32 vcc, s41, v{T}""")
    a(f"s_cbranch_vccnz {lbl}")
    stamp(a, 1)
    a("s_waitcnt lgkmcnt(0)\ns_barrier")

def emit_stream(a, slots):
    for mf, fl in slots:
        a(mf)
        fl = sorted(fl, key=lambda x: 1 if x.startswith('v_') else 0)
        for f in fl: a(f)

def role_R(a):
    a.label("L_R")
    a(f"""s_lshl_b32 s22, s17, 3
s_mul_i32 s23, s22, 640
s_add_u32 s23, s23, 10240
v_lshrrev_b32 v14, 5, v1
v_mul_u32_u24 v14, 640, v14
v_and_b32 v15, 31, v1
v_lshl_add_u32 v14, v15, 4, v14
v_add_u32 v4, s23, v14
v_add_u32 v5, 1280, v4
v_add_u32 v6, 2560, v4
v_add_u32 v7, 3840, v4
v_mul_u32_u24 v14, 1280, v2
v_lshl_add_u32 v14, v3, 3, v14
v_add_u32 v14, 512, v14
v_add_u32 v8, s23, v14
v_add_u32 v9, 640, v8""")
    for v in range(4, 10): remap(a, v, 15)
    a(f"""s_lshl_b32 s23, s18, 14
s_lshl_b32 s24, s17, 11
s_add_u32 s23, s23, s24
v_lshlrev_b32 v11, 4, v1
v_add_u32 v10, s23, v11
s_lshl_b32 s36, s18, 15
s_lshl_b32 s24, s17, 13
s_add_u32 s36, s36, s24
s_add_u32 s36, s36, {U_OFF}
s_mul_i32 s24, s18, 6554
s_lshr_b32 s24, s24, 16
s_lshl_b32 s24, s24, 6
v_and_b32 v12, 7, v1
v_add_u32 v12, s22, v12
v_lshlrev_b32 v12, 8, v12
v_add_u32 v12, s24, v12
s_mov_b32 s35, {FLAG_OFF + ROLE_O*32*256}
s_mov_b32 s41, {hex(SENT)}
s_mov_b32 s39, 0
s_mov_b32 s20, 0""")
    idx_reg(a, 16)
    a(f"""v_lshlrev_b32 v14, 7, v2
v_lshl_add_u32 v14, v3, 2, v14
s_lshl_b32 s22, s17, 9
v_add_u32 v18, s22, v14
v_lshlrev_b32 v19, 3, v1
v_lshlrev_b32 v14, 2, v1
s_lshl_b32 s22, s18, 8
v_add_u32 v20, s22, v14""")
    remap(a, 20, 15)
    UB = 64; YB = 56; PB = 32; PM = 48; D = 24
    a.label("L_R_loop")
    a("s_add_u32 s31, s20, 1")
    a.label("L_R_fl")
    a("buffer_load_dword v13, v12, s[4:7], s35 offen sc1")
    spin_guard(a, 39)
    a(f"s_waitcnt vmcnt(0)\nv_cmp_gt_u32 vcc, s31, v13\ns_cbranch_vccnz L_R_fl")
    a(f"s_mul_i32 s23, s20, {40*32768}\ns_add_u32 s23, s23, s36\ns_add_u32 s24, s23, 4096")
    for i in range(8):
        a(f"buffer_load_dwordx4 v[{UB+4*i}:{UB+4*i+3}], v11, s[4:7], s{23 + i//4} offen offset:{(i%4)*1024} sc1")
    span_off(a, 40, 20, 0, MP_OFF, 16)
    span_off(a, 42, 20, 0, Y_OFF, 20)
    span_off(a, 43, 20, 1, MP_OFF, 16)
    a("s_waitcnt vmcnt(0)")
    stamp(a, 0)
    if STAMP: a("s_waitcnt lgkmcnt(0)")
    a.label("L_R_pollY")
    for i in range(2): a(f"buffer_load_dwordx4 v[{YB+4*i}:{YB+4*i+3}], v10, s[4:7], s42 offen offset:{i*1024} sc1")
    spin_guard(a, 39)
    check(a, range(YB, YB + 8), 14)
    a("v_cmp_eq_u32 vcc, s41, v14\ns_cbranch_vccnz L_R_pollY")
    stamp(a, 1)
    if STAMP: a("s_waitcnt lgkmcnt(0)")
    a.label("L_R_pollP")
    for i in range(2): a(f"buffer_load_dwordx2 v[{PM+2*i}:{PM+2*i+1}], v{8+i}, s[4:7], s40 offen sc1")
    for i in range(4): a(f"buffer_load_dwordx4 v[{PB+4*i}:{PB+4*i+3}], v{4+i}, s[4:7], s40 offen sc1")
    spin_guard(a, 39)
    a(f"v_mov_b64 v[{D}:{D+1}], 0\nv_mov_b64 v[{D+2}:{D+3}], 0")
    a(f"v_smfmac_f32_16x16x64_bf16 v[{D}:{D+3}], v[{PM}:{PM+3}], v[{YB}:{YB+7}], v16")
    a(f"v_max3_u32 v14, v{PM}, v{PM+1}, v{PM+2}\nv_max_u32 v14, v14, v{PM+3}")
    for m in range(4):
        a(f"v_smfmac_f32_16x16x64_bf16 v[{D}:{D+3}], v[{PB+4*m}:{PB+4*m+3}], v[{UB+8*m}:{UB+8*m+7}], v16")
        a(f"v_max3_u32 v14, v14, v{PB+4*m}, v{PB+4*m+1}\nv_max3_u32 v14, v14, v{PB+4*m+2}, v{PB+4*m+3}")
    a("v_cmp_eq_u32 vcc, s41, v14\ns_cbranch_vccnz L_R_pollP")
    stamp(a, 2)
    a(f"""v_add_f32 v{D}, v{D}, v{D+1}
v_add_f32 v{D+2}, v{D+2}, v{D+3}
ds_write2_b32 v18, v{D}, v{D+2} offset0:0 offset1:16
s_waitcnt lgkmcnt(0)
s_barrier
s_cmp_lg_u32 s17, 0
s_cbranch_scc1 L_R_next
ds_read2_b64 v[32:35], v19 offset0:0 offset1:64
ds_read2_b64 v[36:39], v19 offset0:128 offset1:192
v_pk_add_f32 v[32:33], v[32:33], v[34:35]
v_pk_add_f32 v[36:37], v[36:37], v[38:39]
v_pk_add_f32 v[32:33], v[32:33], v[36:37]
v_cvt_pk_bf16_f32 v32, v32, v33
buffer_store_dword v32, v20, s[4:7], s43 offen sc1""")
    a.label("L_R_next")
    stamp(a, 3); stamp_flush(a, 4, row_s=20)
    a(f"""v_xor_b32 v18, 2048, v18
v_xor_b32 v19, 2048, v19
s_add_u32 s20, s20, 1
s_cmp_lt_u32 s20, 63
s_cbranch_scc1 L_R_loop
s_endpgm""")

def role_V(a):
    a.label("L_V")
    def wv(c, t):
        f = c * 3 + t
        return ('a', 240 + 8 * f) if f < 2 else ('v', 128 + 8 * (f - 2))
    a("s_mul_i32 s32, s18, 384\ns_mul_i32 s33, s18, 245760")
    st = [dict(kind='O', srd=12, stride=1280, col=33, style='nat', row0=64 * (q >> 2) + 32 * ((q >> 1) & 1) + 4 * (q & 1),
               dests=(lambda t, qq, q=q: ('a', (t * 3 + (q >> 2)) * 8 + 2 * (q & 3)))) for q in range(12)]
    st += w_stages(8, 12288, 32, 'sp', lambda c, t, q: (wv(c, t)[0], wv(c, t)[1] + 2 * q), resident=(6, 7, 8, 9))
    aW = loader(a, st, 0, 40, True, depth=DA, pol=PA)
    a("s_mul_i32 s22, s17, 6144\nv_lshlrev_b32 v4, 4, v1\nv_add_u32 v4, s22, v4\nv_add_u32 v5, 49152, v4")
    mem_poll_setup(a, 10)
    idx_reg(a, 16)
    VIMG = 4 * SLOT
    a(f"""v_lshlrev_b32 v18, 4, v1
v_add_u32 v18, {MEMLDS}, v18
s_mul_i32 s22, s17, 768
v_lshlrev_b32 v19, 6, v2                ; rows 2g (+32B: 2g+1)
v_bfe_u32 v15, v1, 1, 1
v_lshl_add_u32 v19, v15, 4, v19
v_bfe_u32 v15, v1, 2, 2
v_lshl_add_u32 v19, v15, 2, v19
v_and_b32 v15, 1, v1
v_lshl_add_u32 v19, v15, 1, v19
v_add_u32 v19, s22, v19
v_add_u32 v19, {VIMG}, v19
v_lshlrev_b32 v20, 4, v1
v_add_u32 v20, {VIMG}, v20
v_mov_b32 v15, v2
s_mul_i32 s22, s17, 10
v_add_u32 v15, s22, v15
v_lshlrev_b32 v21, 14, v15              ; ct*16K
s_lshl_b32 s22, s18, 8
v_add_u32 v21, s22, v21
v_lshl_add_u32 v21, v3, 4, v21
s_mov_b32 s41, {hex(SENT)}
s_mov_b32 s39, 0
s_mov_b32 s20, 0""")
    M = 24; ACC = 64; WIN = 80; VA = 80; P = 24; YA = 24
    for j in range(4): a(f"v_mov_b32 v{124+j}, s41")
    def winread(c, t, w):
        off = (c - 6) * SLOT + t * 2048
        base = 4
        if off >= 49152: base = 5; off -= 49152
        return [f"ds_read_b128 v[{WIN+8*w+4*hh}:{WIN+8*w+4*hh+3}], v{base} offset:{off + hh*1024}" for hh in range(2)]
    a.label("L_V_loop")
    span_off(a, 40, 20, 0, MP_OFF, 16)
    span_off(a, 42, 20, 0, Y_OFF, 20)
    for j in range(4):
        for x in winread(6 + j, 0, j): a(x)
    for j in range(0, 12, 2): a(f"v_mov_b64 v[{ACC+j}:{ACC+j+1}], 0")
    a("s_waitcnt lgkmcnt(0)")
    mem_poll(a, "L_V_poll", 10, P, 15)
    order = [6, 0, 7, 1, 2, 8, 3, 9, 4, 5]
    for c in order: a(f"ds_read_b128 v[{M+4*c}:{M+4*c+3}], v18 offset:{c*1024}")
    def post_v(t):
        d = ACC + 4 * t
        return [f"v_add_f32 v{d}, v{d}, v{d+1}", f"v_add_f32 v{d+2}, v{d+2}, v{d+3}", f"v_cvt_pk_bf16_f32 v{d}, v{d}, v{d+2}",
                f"ds_write_b16 v19, v{d} offset:{t*256}", f"ds_write_b16_d16_hi v19, v{d} offset:{t*256+32}"]
    slots = []
    for t in range(3):
        d = ACC + 4 * t
        for n, c in enumerate(order):
            if c >= 6: src = f"v[{WIN+8*(c-6)}:{WIN+8*(c-6)+7}]"
            else: src = R(*wv(c, t), 8)
            slots.append((f"v_smfmac_f32_16x16x64_bf16 v[{d}:{d+3}], v[{M+4*c}:{M+4*c+3}], {src}, v16", []))
    for t in range(2):
        for n, c in enumerate(order):
            if c >= 6:
                r = winread(c, t + 1, c - 6)
                slots[10*t + n][1].append(r[0]); slots[10*t + n + 1][1].append(r[1])
    for t in (1, 2):
        for j, x in enumerate(post_v(t - 1)): slots[10*t + (2, 3, 5, 9, 9)[j]][1].append(x)
    emit_stream(a, slots)
    for j in range(0, 8, 2): a(f"v_mov_b64 v[{YA+j}:{YA+j+1}], 0")
    for x in post_v(2): a(x)
    for j in range(8, 40, 2): a(f"v_mov_b64 v[{YA+j}:{YA+j+1}], 0")
    stamp(a, 2)
    a("s_waitcnt lgkmcnt(0)\ns_barrier")
    for c in range(3): a(f"ds_read_b128 v[{VA+4*c}:{VA+4*c+3}], v20 offset:{c*1024}")
    YO = 112
    def post_y(t):
        d = YA + 4 * t
        return [f"v_add_f32 v{d}, v{d}, v{d+1}", f"v_add_f32 v{d+2}, v{d+2}, v{d+3}", f"v_cvt_pk_bf16_f32 v{YO+t}, v{d}, v{d+2}"]
    def xpose(gp):
        o = YO + 4 * gp
        return [f"v_permlane32_swap_b32 v{o}, v{o+2}", f"v_permlane32_swap_b32 v{o+1}, v{o+3}",
                f"v_permlane16_swap_b32 v{o}, v{o+1}", f"v_permlane16_swap_b32 v{o+2}, v{o+3}"]
    def store_y(gp):
        o = YO + 4 * gp
        return [f"s_add_u32 s26, s42, {gp*65536}", f"buffer_store_dwordx4 v[{o}:{o+3}], v21, s[4:7], s26 offen sc1"]
    slots = []
    for t in range(10):
        d = YA + 4 * t
        for c in range(3):
            slots.append((f"v_smfmac_f32_16x16x64_bf16 v[{d}:{d+3}], v[{VA+4*c}:{VA+4*c+3}], a[{(t*3+c)*8}:{(t*3+c)*8+7}], v16", []))
    for t in range(8):
        for j, x in enumerate(post_y(t)): slots[3*t + 4 + j][1].append(x)
    for j, x in enumerate(xpose(0)): slots[17 + j][1].append(x)
    slots[21][1].extend(store_y(0))
    p8 = post_y(8)
    slots[28][1].append(p8[0]); slots[29][1].append(p8[1])
    emit_stream(a, slots)
    for x in [p8[2]] + xpose(1) + store_y(1) + post_y(9) + xpose(2): a(x)
    st2 = store_y(2)
    for x in [st2[0], "s_mov_b32 exec_hi, 0", st2[1], "s_mov_b32 exec_hi, -1"]: a(x)
    stamp(a, 3)
    a("s_cmp_ge_u32 s20, 62\ns_cbranch_scc1 L_V_noarm")
    span_off(a, 42, 20, 2, Y_OFF, 20)
    a("""buffer_store_dwordx4 v[124:127], v21, s[4:7], s42 offen sc1
s_add_u32 s26, s42, 65536
buffer_store_dwordx4 v[124:127], v21, s[4:7], s26 offen sc1
s_add_u32 s26, s42, 131072
s_mov_b32 exec_hi, 0
buffer_store_dwordx4 v[124:127], v21, s[4:7], s26 offen sc1
s_mov_b32 exec_hi, -1""")
    a.label("L_V_noarm")
    stamp_flush(a, 4, row_s=20)
    a(f"""s_add_u32 s20, s20, 1
s_cmp_lt_u32 s20, 64
s_cbranch_scc1 L_V_loop
s_endpgm""")

SCL = (192 ** -0.5) * math.log2(math.e)
def xlane(a, op, v, t, ror8):
    if ror8: a(f"{op}_dpp v{v}, v{v}, v{v} row_ror:8 row_mask:0xf bank_mask:0xf")
    a(f"v_mov_b32 v{t}, v{v}\nv_permlane16_swap_b32 v{t}, v{v}\n{op} v{v}, v{v}, v{t}")
    a(f"v_mov_b32 v{t}, v{v}\nv_permlane32_swap_b32 v{t}, v{v}\n{op} v{v}, v{v}, v{t}")

def dpp8(a, op, v):
    for m in ("quad_perm:[1,0,3,2]", "quad_perm:[2,3,0,1]", "row_half_mirror"):
        a(f"{op}_dpp v{v}, v{v}, v{v} {m} row_mask:0xf bank_mask:0xf")

def role_A(a):
    a.label("L_A")
    def fr(m, c, t):
        f = (c * 3 + t) if m == 0 else (24 + c * 3 + t)
        return ('a', 8 * f) if f < 32 else ('v', 152 + 8 * (f - 32))
    a("s_mul_i32 s32, s18, 384")
    sq = w_stages(8, 12288, 32, 'sp', lambda c, t, q: (fr(0, c, t)[0], fr(0, c, t)[1] + 2 * q), resident=(8, 9))
    sk = w_stages(12, 12288, 32, 'sp', lambda c, t, q: (fr(1, c, t)[0], fr(1, c, t)[1] + 2 * q), resident=(7, 8, 9))
    st = sq[:8] + sk[:7] + [sq[8], sq[9], sk[7], sk[8], sk[9]]
    resid = {(0, 8): 0, (0, 9): 1, (1, 7): 2, (1, 8): 3, (1, 9): 4}
    aW = loader(a, st, 3, 40, True, depth=DA, pol=PA)
    a("s_mul_i32 s22, s17, 6144\nv_lshlrev_b32 v4, 4, v1\nv_add_u32 v4, s22, v4\nv_add_u32 v5, 61440, v4")
    mem_poll_setup(a, 10)
    idx_reg(a, 16)
    SP = MEMLDS + 10240
    SROW = 176; SWV = 8 * SROW
    XP = 5 * SLOT
    a(f"""v_lshlrev_b32 v30, 4, v1                ; lane*16
v_add_u32 v18, {MEMLDS}, v30
v_mul_u32_u24 v19, {SROW}, v3
v_lshl_add_u32 v19, v2, 4, v19
s_mul_i32 s22, s17, {SWV}
s_add_u32 s22, s22, {SP}
v_add_u32 v19, s22, v19
v_lshrrev_b32 v31, 3, v1                ; i
v_mul_u32_u24 v21, {SROW}, v31
v_add_u32 v21, {SP}, v21
v_and_b32 v15, 1, v1
v_lshl_add_u32 v21, v15, 4, v21
v_bfe_u32 v15, v1, 1, 1                 ; hf
v_lshl_add_u32 v20, v15, 6, v21
v_lshl_add_u32 v21, v15, 3, v21
v_add_u32 v21, 128, v21
v_bfe_u32 v15, v1, 2, 1
v_lshl_add_u32 v20, v15, 5, v20
s_mul_i32 s22, s18, 640
s_add_u32 s22, s22, 10240
v_lshlrev_b32 v22, 8, v15
v_lshl_add_u32 v22, v31, 5, v22
v_and_b32 v15, 3, v1
v_lshl_add_u32 v22, v15, 3, v22
v_add_u32 v22, s22, v22
v_lshlrev_b32 v23, 4, v31
v_lshl_add_u32 v23, v15, 2, v23
v_add_u32 v23, s22, v23
v_add_u32 v23, 512, v23""")
    remap(a, 22, 15); remap(a, 23, 15)
    SEL = 6
    a(f"""v_lshlrev_b32 v15, 1, v2
v_sub_u32 v15, v3, v15                  ; n - 2g
v_mov_b32 v26, 0x3f80
v_mov_b32 v27, 0x3f800000""")
    for j in range(2):
        base = (0, 8)[j]
        a(f"""v_mov_b32 v{SEL+j}, 0
v_cmp_eq_u32 vcc, {base}, v15
v_cndmask_b32 v{SEL+j}, v{SEL+j}, v26, vcc
v_cmp_eq_u32 vcc, {base+1}, v15
v_cndmask_b32 v{SEL+j}, v{SEL+j}, v27, vcc""")
    a("v_lshlrev_b32 v15, 2, v2\nv_sub_u32 v15, v3, v15")
    for r in range(4): a(f"v_cmp_le_i32 s[{44+2*r}:{45+2*r}], {r}, v15")
    a("s_nop 4\ns_and_b32 s22, s17, 1\ns_cmp_eq_u32 s22, 1")
    for r in range(4):
        a(f"s_cselect_b64 s[{52+2*r}:{53+2*r}], s[{44+2*r}:{45+2*r}], 0\ns_cselect_b64 s[{44+2*r}:{45+2*r}], -1, s[{44+2*r}:{45+2*r}]")
    a(f"""s_mov_b32 s60, 0
s_mov_b32 s61, -1
s_mul_i32 s22, s17, 5120
s_add_u32 s22, s22, {XP}
v_add_u32 v17, s22, v30
s_and_b32 s22, s17, 1
s_lshl_b32 s22, s22, 11
s_add_u32 s22, s22, {XP}
v_add_u32 v0, s22, v30
s_mul_i32 s36, s18, 12288
s_mul_i32 s22, s17, 3072
s_add_u32 s36, s36, s22
s_and_b32 s22, s17, 1
s_lshl_b32 s37, s22, 15
s_lshl_b32 s23, s18, 10
s_add_u32 s37, s37, s23
s_add_u32 s37, s37, {PX_OFF}
s_lshl_b32 s38, s22, 13
s_lshl_b32 s23, s18, 8
s_add_u32 s38, s38, s23
s_add_u32 s38, s38, {PXM_OFF}
v_and_b32 v15, 1, v2
v_lshlrev_b32 v3, 4, v3
v_lshl_add_u32 v3, v15, 3, v3
v_and_b32 v2, 1, v1
v_mul_u32_u24 v2, {(ROLE_Q - ROLE_K) * 32 * 256}, v2
v_mov_b32 v1, v30
s_mov_b32 s62, {hex(f2u(SCL))}
s_mov_b32 s63, {hex(f2u(SCL))}
s_mov_b32 s64, 0xff800000
s_mov_b32 s65, {hex(f2u(-1e9 / (192 ** -0.5)))}
s_mov_b32 s66, 0x00ff00ff
s_mov_b32 s67, 0x00ff00ff
s_mov_b32 s68, 0x0f0f0f0f
s_mov_b32 s69, 0x0f0f0f0f
s_mov_b32 s70, 0
s_mov_b32 s41, {hex(SENT)}
s_mov_b32 s39, 0
s_mov_b32 s20, 0""")
    flag_addr(a, 35, ROLE_K, 18, 17)
    a(f"s_add_u32 s72, s35, {(ROLE_PX - ROLE_K) * 8192}")
    X = 24; M = 32; ACC = 72; WIN = 88; KX = 104; KN = 116; QX = 128; S = 140
    P = M
    kxsrc = [0, 1, 4, 5, 2, 3, 6, 7, 8, 9, 10, 11]
    def winread(m, c, t, w):
        off = resid[(m, c)] * SLOT + t * 2048; base = 4
        if off + 1024 > 65535: base = 5; off -= 61440
        return [f"ds_read_b128 v[{WIN+8*w+4*hh}:{WIN+8*w+4*hh+3}], v{base} offset:{off + hh*1024}" for hh in range(2)]
    regs_ = []
    for c in range(6): regs_ += [(0, c), (1, c)]
    regs_ += [(1, 6), (0, 6), (0, 7)]
    lds_ = [(0, 8), (1, 8), (0, 9), (1, 9), (1, 7)]
    seq = []
    for i in range(5): seq += [lds_[i]] + regs_[3*i:3*i+3]
    ldsfr = [(m, c, t) for t in range(3) for (m, c) in lds_]
    def waitflags(lbl):
        a(f"s_cmp_ge_u32 s70, s31\ns_cbranch_scc1 {lbl}_ok")
        a.label(lbl)
        a("buffer_load_dword v15, v2, s[4:7], s35 offen sc1")
        spin_guard(a, 39)
        a(f"s_waitcnt vmcnt(0)\nv_readlane_b32 s70, v15, 0\nv_readlane_b32 s71, v15, 1\ns_nop 0\ns_min_u32 s70, s70, s71\ns_cmp_lt_u32 s70, s31\ns_cbranch_scc1 {lbl}")
        a.label(lbl + "_ok")
    if DIAG: a("s_memrealtime s[82:83]\ns_waitcnt lgkmcnt(0)")
    a("s_mov_b32 s31, 1")
    waitflags("L_A_f0")
    a(f"s_add_u32 s23, s36, {KX_OFF}")
    for t in range(3): a(f"buffer_load_dwordx4 v[{KN+4*t}:{KN+4*t+3}], v1, s[4:7], s23 offen offset:{t*1024} sc1")
    a("s_waitcnt vmcnt(0)")
    a.label("L_A_loop")
    a("s_add_u32 s31, s20, 2\ns_min_u32 s31, s31, 64")
    waitflags("L_A_fl")
    for j in range(0, 12, 2): a(f"v_mov_b64 v[{KX+j}:{KX+j+1}], v[{KN+kxsrc[j]}:{KN+kxsrc[j]+1}]")
    span_off(a, 40, 20, 0, MP_OFF, 16)
    a(f"""s_add_u32 s23, s20, 1
s_min_u32 s23, s23, 63
s_mul_i32 s23, s23, {32*12288}
s_add_u32 s23, s23, s36
s_add_u32 s42, s23, {KX_OFF}
s_mul_i32 s23, s20, {32*12288}
s_add_u32 s23, s23, s36
s_add_u32 s43, s23, {QX_OFF}""")
    for x in winread(*ldsfr[0], 0) + winread(*ldsfr[1], 1): a(x)
    for j in range(0, 16, 2): a(f"v_mov_b64 v[{ACC+j}:{ACC+j+1}], 0")
    a("s_waitcnt lgkmcnt(0)")
    mem_poll(a, "L_A_poll", 10, P, 15)
    corder = []
    for (m, c) in seq:
        if c not in corder: corder.append(c)
    mread = lambda c: f"ds_read_b128 v[{M+4*c}:{M+4*c+3}], v18 offset:{c*1024}"
    stamp(a, 5)
    if DIAG: a("s_cmp_lg_u32 s20, 1\ns_cbranch_scc1 L_dg1\ns_memrealtime s[78:79]\ns_waitcnt lgkmcnt(0)\nL_dg1:")
    for c in corder[:6]: a(mread(c))
    slots = []
    for t in range(3):
        dq = ACC + 8 * (t % 2)
        for n, (m, c) in enumerate(seq):
            d = dq + 4 * m
            if (m, c) in resid:
                k = 5 * t + n // 4; w = k % 2
                src = f"v[{WIN+8*w}:{WIN+8*w+7}]"
            else: src = R(*fr(m, c, t), 8)
            slots.append([f"v_smfmac_f32_16x16x64_bf16 v[{d}:{d+3}], v[{M+4*c}:{M+4*c+3}], {src}, v16", []])
    for k in range(13):
        r = winread(*ldsfr[k + 2], k % 2)
        slots[4*k][1].append(r[0]); slots[4*k + 1][1].append(r[1])
        slots[4*k + 7][1].append(f"@touch v[{WIN+8*(k%2)}:{WIN+8*(k%2)+7}]")
    for j, c in enumerate(corder[6:]): slots[(2, 3, 6, 10)[j]][1].insert(0, mread(c))
    for t in range(3):
        slots[(14, 18, 22)[t]][1].append(f"buffer_load_dwordx4 v[{QX+4*t}:{QX+4*t+3}], v1, s[4:7], s43 offen offset:{t*1024} sc1")
        slots[(26, 30, 34)[t]][1].append(f"buffer_load_dwordx4 v[{KN+4*t}:{KN+4*t+3}], v1, s[4:7], s42 offen offset:{t*1024} sc1")
    slots[36][1].append("v_mov_b32 v15, s20")
    slots[38][1] += ["s_mov_b64 exec, 1", "buffer_store_dword v15, v1, s[4:7], s72 offen sc1", "s_mov_b64 exec, -1"]
    def cvts(t):
        dq = ACC + 8 * (t % 2); dk = dq + 4
        return [f"v_add_f32 v{dk}, v{dk}, v{dk+1}", f"v_add_f32 v{dk+2}, v{dk+2}, v{dk+3}", f"v_cvt_pk_bf16_f32 v{dk+1}, v{dk}, v{dk+2}",
                f"v_add_f32 v{dq}, v{dq}, v{dq+1}", f"v_add_f32 v{dq+2}, v{dq+2}, v{dq+3}", f"v_cvt_pk_bf16_f32 v{dk}, v{dq}, v{dq+2}"]
    def tmf(t):
        dq = ACC + 8 * (t % 2); dk = dq + 4
        return f"v_mfma_f32_16x16x16_bf16 v[{dq}:{dq+3}], v[{dk}:{dk+1}], v[{SEL}:{SEL+1}], 0"
    def xcv(t):
        dq = ACC + 8 * (t % 2); x = X + 2 * t
        return [f"v_cvt_pk_bf16_f32 v{x}, v{dq}, v{dq+1}", f"v_cvt_pk_bf16_f32 v{x+1}, v{dq+2}, v{dq+3}"]
    extra = {}
    for t in (0, 1):
        b = 20 * (t + 1)
        for j, x in enumerate(cvts(t)): slots[b + j][1].append(x)
        extra[b + 6] = [tmf(t)]
        for j, x in enumerate(xcv(t)): slots[b + 9 + j][1].append(x)
    for j in range(4): slots[31 + j][1].append(f"v_mov_b64 v[{ACC+2*j}:{ACC+2*j+1}], 0")
    sc32 = [f"v_mfma_f32_16x16x32_bf16 v[{S+4*j}:{S+4*j+3}], v[{src}:{src+3}], v[{X}:{X+3}], 0" for j, src in enumerate((X, KX, KX + 4))]
    full = []
    for i, (mf, fl) in enumerate(slots):
        full.append((mf, fl))
        for e in extra.get(i, []): full.append((e, []))
    emit_stream(a, full)
    stamp(a, 6)
    cv = cvts(2)
    for x in (cv[0], sc32[0], cv[1], cv[2], sc32[1], cv[3], cv[4], cv[5], tmf(2), sc32[2]): a(x)
    for x in xcv(2): a(x)
    for j, src in enumerate((X + 4, KX + 8, KX + 10)):
        a(f"v_mfma_f32_16x16x16_bf16 v[{S+4*j}:{S+4*j+3}], v[{src}:{src+1}], v[{X+4}:{X+5}], v[{S+4*j}:{S+4*j+3}]")
    a("s_mov_b64 exec, s[66:67]")
    for j in range(3): a(f"ds_write_b128 v19, v[{S+4*j}:{S+4*j+3}] offset:{(96, 0, 64)[j]}")
    stamp(a, 2)
    a("s_mov_b64 exec, -1\ns_cmp_lg_u32 s17, 0\ns_waitcnt lgkmcnt(0)\ns_barrier\ns_cbranch_scc1 L_A_x")
    stamp(a, 7)
    T = M
    a(f"""ds_read_b128 v[{T}:{T+3}], v20
ds_read_b128 v[{T+8}:{T+11}], v20 offset:{SWV}
ds_read2_b64 v[{T+4}:{T+7}], v21 offset0:0 offset1:{SWV//8}
v_add_u32 v15, {2*SWV}, v21
ds_read_b128 v[{T+12}:{T+15}], v20 offset:{2*SWV}
ds_read_b128 v[{T+16}:{T+19}], v20 offset:{3*SWV}
ds_read2_b64 v[{T+20}:{T+23}], v15 offset0:0 offset1:{SWV//8}
v_pk_add_f32 v[{T}:{T+1}], v[{T}:{T+1}], v[{T+8}:{T+9}]
v_pk_add_f32 v[{T+2}:{T+3}], v[{T+2}:{T+3}], v[{T+10}:{T+11}]
v_pk_add_f32 v[{T+4}:{T+5}], v[{T+4}:{T+5}], v[{T+6}:{T+7}]
v_pk_add_f32 v[{T}:{T+1}], v[{T}:{T+1}], v[{T+12}:{T+13}]
v_pk_add_f32 v[{T+2}:{T+3}], v[{T+2}:{T+3}], v[{T+14}:{T+15}]
v_pk_add_f32 v[{T}:{T+1}], v[{T}:{T+1}], v[{T+16}:{T+17}]
v_pk_add_f32 v[{T+2}:{T+3}], v[{T+2}:{T+3}], v[{T+18}:{T+19}]
v_pk_add_f32 v[{T+4}:{T+5}], v[{T+4}:{T+5}], v[{T+20}:{T+21}]
v_max3_f32 v{T+8}, v{T}, v{T+1}, v{T+2}
v_pk_add_f32 v[{T+4}:{T+5}], v[{T+4}:{T+5}], v[{T+22}:{T+23}]
v_max_f32 v{T+8}, v{T+8}, v{T+3}
v_max3_f32 v{T+8}, v{T+8}, v{T+4}, v{T+5}""")
    mx = T + 8
    dpp8(a, "v_max_f32", mx)
    a(f"v_mul_f32 v{mx}, s62, v{mx}")
    for j in (0, 2, 4): a(f"v_pk_fma_f32 v[{T+j}:{T+j+1}], v[{T+j}:{T+j+1}], s[62:63], v[{mx}:{mx+1}] op_sel_hi:[1,1,0] neg_lo:[0,0,1] neg_hi:[0,0,1]")
    for j in range(6): a(f"v_exp_f32 v{T+j}, v{T+j}")
    a(f"""v_pk_add_f32 v[{mx}:{mx+1}], v[{T}:{T+1}], v[{T+2}:{T+3}]
v_pk_fma_f32 v[{mx}:{mx+1}], v[{T+4}:{T+5}], 0.5, v[{mx}:{mx+1}] op_sel_hi:[1,0,1]
v_add_f32 v{mx}, v{mx}, v{mx+1}""")
    dpp8(a, "v_add_f32", mx)
    a(f"v_rcp_f32 v{mx}, v{mx}")
    a(f"""v_pk_mul_f32 v[{T}:{T+1}], v[{T}:{T+1}], v[{mx}:{mx+1}] op_sel_hi:[1,0]
v_pk_mul_f32 v[{T+2}:{T+3}], v[{T+2}:{T+3}], v[{mx}:{mx+1}] op_sel_hi:[1,0]
v_pk_mul_f32 v[{T+4}:{T+5}], v[{T+4}:{T+5}], v[{mx}:{mx+1}] op_sel_hi:[1,0]
v_cvt_pk_bf16_f32 v{T}, v{T}, v{T+1}
v_cvt_pk_bf16_f32 v{T+1}, v{T+2}, v{T+3}
buffer_store_dwordx2 v[{T}:{T+1}], v22, s[4:7], s40 offen sc1
v_cvt_pk_bf16_f32 v{T+2}, v{T+4}, v{T+5}
s_mov_b64 exec, s[68:69]
buffer_store_dword v{T+2}, v23, s[4:7], s40 offen sc1
s_mov_b64 exec, -1""")
    stamp(a, 3)
    if STAMP: a("s_waitcnt lgkmcnt(0)")
    a("s_waitcnt vmcnt(2)\ns_branch L_A_x1")
    a.label("L_A_x")
    XS = M + 12
    a("s_waitcnt vmcnt(0)")
    a.label("L_A_x1")
    a(f"v_swap_b32 v{QX+2}, v{QX+4}\nv_swap_b32 v{QX+3}, v{QX+5}")
    tl = ((0, 0), (1, 0), (0, 1), (1, 1), (2, 1))
    for j, (kt, qt) in enumerate(tl):
        src = (X, KX, KX + 4)[kt]
        a(f"v_mfma_f32_16x16x32_bf16 v[{XS+4*j}:{XS+4*j+3}], v[{src}:{src+3}], v[{QX+4*qt}:{QX+4*qt+3}], 0")
    for j, (kt, qt) in enumerate(tl):
        src = (X + 4, KX + 8, KX + 10)[kt]
        a(f"v_mfma_f32_16x16x16_bf16 v[{XS+4*j}:{XS+4*j+3}], v[{src}:{src+1}], v[{QX+8+2*qt}:{QX+9+2*qt}], v[{XS+4*j}:{XS+4*j+3}]")
    for j in range(5): a(f"ds_write_b128 v17, v[{XS+4*j}:{XS+4*j+3}] offset:{1024*j}")
    a("s_waitcnt lgkmcnt(0)\ns_barrier\ns_cmp_lt_u32 s17, 2\ns_cbranch_scc1 L_A_next")
    for w in range(3):
        for j in range(3): a(f"ds_read_b128 v[{T+12*w+4*j}:{T+12*w+4*j+3}], v0 offset:{5120*w + 1024*j}")
    for j in range(0, 12, 2): a(f"v_pk_add_f32 v[{T+j}:{T+j+1}], v[{T+j}:{T+j+1}], v[{T+12+j}:{T+13+j}]")
    for j in range(3): a(f"ds_read_b128 v[{T+12+4*j}:{T+12+4*j+3}], v0 offset:{5120*3 + 1024*j}")
    for j in range(0, 12, 2): a(f"v_pk_add_f32 v[{T+j}:{T+j+1}], v[{T+j}:{T+j+1}], v[{T+24+j}:{T+25+j}]")
    for j in range(0, 12, 2): a(f"v_pk_add_f32 v[{T+j}:{T+j+1}], v[{T+j}:{T+j+1}], v[{T+12+j}:{T+13+j}]")
    a(f"v_mov_b32 v{T+12}, s65\nv_mov_b32 v{T+13}, s64")
    for r in range(4):
        a(f"v_cndmask_b32 v{T+r}, v{T+13}, v{T+r}, s[60:61]")
        a(f"v_cndmask_b32 v{T+4+r}, v{T+12}, v{T+4+r}, s[{44+2*r}:{45+2*r}]")
        a(f"v_cndmask_b32 v{T+8+r}, v{T+12}, v{T+8+r}, s[{52+2*r}:{53+2*r}]")
    mx = T + 12; tm = T + 13
    a(f"v_max3_f32 v{mx}, v{T}, v{T+1}, v{T+2}")
    for j in range(3, 11, 2): a(f"v_max3_f32 v{mx}, v{mx}, v{T+j}, v{T+j+1}")
    a(f"v_max_f32 v{mx}, v{mx}, v{T+11}")
    xlane(a, "v_max_f32", mx, tm, False)
    a(f"v_mul_f32 v{mx}, s62, v{mx}")
    for j in range(0, 12, 2): a(f"v_pk_fma_f32 v[{T+j}:{T+j+1}], v[{T+j}:{T+j+1}], s[62:63], v[{mx}:{mx+1}] op_sel_hi:[1,1,0] neg_lo:[0,0,1] neg_hi:[0,0,1]")
    for j in range(12): a(f"v_exp_f32 v{T+j}, v{T+j}")
    a(f"v_pk_add_f32 v[{mx}:{mx+1}], v[{T}:{T+1}], v[{T+2}:{T+3}]")
    for j in range(4, 12, 2): a(f"v_pk_add_f32 v[{mx}:{mx+1}], v[{mx}:{mx+1}], v[{T+j}:{T+j+1}]")
    a(f"v_add_f32 v{mx}, v{mx}, v{mx+1}")
    xlane(a, "v_add_f32", mx, tm, False)
    a(f"v_rcp_f32 v{mx}, v{mx}")
    for j in range(0, 12, 2): a(f"v_pk_mul_f32 v[{T+j}:{T+j+1}], v[{T+j}:{T+j+1}], v[{mx}:{mx+1}] op_sel_hi:[1,0]")
    O = T + 16
    a(f"""v_cvt_pk_bf16_f32 v{O}, v{T+4}, v{T+5}
v_cvt_pk_bf16_f32 v{O+1}, v{T+8}, v{T+9}
v_cvt_pk_bf16_f32 v{O+2}, v{T+6}, v{T+7}
v_cvt_pk_bf16_f32 v{O+3}, v{T+10}, v{T+11}
v_cvt_pk_bf16_f32 v{O+4}, v{T}, v{T+1}
v_cvt_pk_bf16_f32 v{O+5}, v{T+2}, v{T+3}
s_lshl_b32 s23, s20, 16
s_add_u32 s23, s23, s37
buffer_store_dwordx4 v[{O}:{O+3}], v1, s[4:7], s23 offen sc1
s_lshl_b32 s23, s20, 14
s_add_u32 s23, s23, s38
s_mov_b32 exec_lo, 0
buffer_store_dwordx2 v[{O+4}:{O+5}], v3, s[4:7], s23 offen sc1
s_mov_b32 exec_lo, -1""")
    a.label("L_A_next")
    stamp(a, 4); stamp_flush(a, 8, row_s=20)
    a(f"""s_add_u32 s20, s20, 1
s_cmp_lt_u32 s20, 64
s_cbranch_scc1 L_A_loop
v_mov_b32 v15, s20
s_waitcnt vmcnt(0)
s_mov_b64 exec, 1
buffer_store_dword v15, v1, s[4:7], s72 offen sc1
s_mov_b64 exec, -1""")
    if DIAG:
        x = {'0': 76, '1': 78, '2': 80, '3': 82}[DIAG]
        a(f"""s_memrealtime s[80:81]
s_waitcnt lgkmcnt(0)
s_cmp_lg_u32 s16, 0
s_cbranch_scc1 L_exit
s_sub_u32 s84, s{x}, s76
s_lshl_b32 s84, s84, 2
s_add_u32 s84, s84, 30000
s_add_u32 s84, s84, s76
L_dg2:
s_memrealtime s[86:87]
s_waitcnt lgkmcnt(0)
s_sub_u32 s85, s86, s84
s_cmp_lt_i32 s85, 0
s_cbranch_scc1 L_dg2""")
    stamp(a, 0)
    if STAMP: a("s_memtime s[78:79]")
    stamp_flush(a, 2, row=65)
    a("s_endpgm")

def gen_main():
    a = Asm()
    a(f"""s_cmp_ge_u32 s2, 256
s_cbranch_scc1 L_exit""")
    if os.environ.get('NOPF') is None:
        a("""s_getpc_b64 s[8:9]
L_pc:
s_mov_b32 s10, L_codeend-L_pc
s_mov_b32 s11, 0x20000
s_lshr_b32 s3, s2, 3
s_lshl_b32 s3, s3, 12
v_lshlrev_b32 v1, 4, v0
buffer_load_dwordx4 v[248:251], v1, s[8:11], s3 offen""")
    a(f"""s_load_dwordx2 s[24:25], s[0:1], {K_WS}
s_load_dwordx2 s[96:97], s[0:1], {K_DBG}
s_load_dwordx8 s[68:75], s[0:1], {K_WQ}
""")
    if os.environ.get('MAP', '0') == '0':
        a("""s_lshr_b32 s16, s2, 3
s_lshl_b32 s16, s16, 2
s_and_b32 s3, s2, 3
s_or_b32 s16, s16, s3
s_and_b32 s3, s2, 4
s_lshl_b32 s3, s3, 5
s_or_b32 s16, s16, s3                   ; position: dies 0..3 first (speed only)""")
    else:
        a("""s_lshr_b32 s16, s2, 3
s_and_b32 s3, s2, 7
s_cmp_lt_u32 s3, 2
s_cbranch_scc0 L_map2
""" + ("""s_lshl_b32 s3, s3, 5
s_or_b32 s16, s16, s3""" if os.environ.get('MAP') == '1' else """s_lshl_b32 s16, s16, 1
s_or_b32 s16, s16, s3""") + """
s_branch L_mapd
L_map2:
s_cmp_lt_u32 s3, 4
s_cbranch_scc0 L_map4
s_lshl_b32 s16, s16, 1
s_and_b32 s3, s3, 1
s_or_b32 s16, s16, s3
s_add_u32 s16, s16, 64
s_branch L_mapd
L_map4:
s_lshl_b32 s16, s16, 2
s_and_b32 s3, s3, 3
s_or_b32 s16, s16, s3
s_add_u32 s16, s16, 128
L_mapd:""")
    a(f"""v_lshrrev_b32 v1, 6, v0
s_nop 0
v_readfirstlane_b32 s17, v1
s_waitcnt lgkmcnt(0)
s_mov_b32 s98, 256
s_mov_b32 s99, 0x20000
s_mov_b32 s39, 0""")
    stamp(a, 0)
    if DIAG: a("s_memrealtime s[76:77]\ns_waitcnt lgkmcnt(0)")
    srd(a, 4, 24, WS_BYTES)
    lane_decomp(a)
    WB = 640 * 6144 * 2
    a(f"""s_and_b32 s18, s16, 31
s_lshr_b32 s27, s16, 5                  ; 0 A, 1 V, 2-3 R/idle, 4 K, 5 V, 6 O, 7 Q
s_mov_b32 s10, {WB}
s_mov_b32 s11, 0x20000
s_mov_b32 s14, {WB}
s_mov_b32 s15, 0x20000
s_mov_b64 s[8:9], s[68:69]
s_mov_b64 s[12:13], s[70:71]
s_cmp_eq_u32 s27, 0
s_cbranch_scc1 L_A
s_mov_b64 s[8:9], s[72:73]
s_mov_b64 s[12:13], s[74:75]
s_cmp_eq_u32 s27, 1
s_cbranch_scc1 L_V
s_cmp_ge_u32 s27, 4
s_cbranch_scc1 L_work
s_sub_u32 s18, s16, 64""")
    import k_head
    k_head.role_head(a)
    a(f"""s_sub_u32 s22, s16, 64
s_cmp_ge_u32 s22, 40
s_cbranch_scc1 L_T
s_and_b32 s18, s22, 3
s_mul_i32 s18, s18, 10
s_lshr_b32 s22, s22, 2
s_add_u32 s18, s18, s22
s_branch L_R""")
    a.label("L_exit")
    a("s_endpgm")
    a.label("L_work")
    a(f"""s_sub_u32 s27, s27, 4
s_cmp_eq_u32 s27, {ROLE_V}
s_cbranch_scc1 L_proj
s_mov_b64 s[8:9], s[70:71]
s_cmp_eq_u32 s27, {ROLE_K}
s_cbranch_scc1 L_proj
s_mov_b64 s[8:9], s[68:69]
s_cmp_eq_u32 s27, {ROLE_Q}
s_cbranch_scc1 L_proj
s_mov_b64 s[8:9], s[74:75]
s_branch L_ow""")
    import k_tail
    role_R(a); k_tail.role_attn(a); role_proj(a); k_tail.role_f1(a); k_tail.role_f2(a); role_oworker(a); role_V(a); role_A(a)
    a.label("L_codeend")
    return a.finish(), dict(vgpr=512, sgpr=100, acc=256)
```

```python
import re

REG_RE = re.compile(r'^(-|abs\()?\s*([vas])(\d+)\)?$')
RANGE_RE = re.compile(r'^(-)?([vas])\[(\d+):(\d+)\]$')

def regs_of(op):
    op = op.strip()
    m = RANGE_RE.match(op)
    if m:
        return {(m.group(2), i) for i in range(int(m.group(3)), int(m.group(4)) + 1)}
    m = REG_RE.match(op)
    if m:
        return {(m.group(2), int(m.group(3)))}
    if op == 'vcc': return {('s', 'vcc')}
    if op in ('vcc_lo', 'vcc_hi'): return {('s', 'vcc')}
    if op in ('exec', 'exec_lo', 'exec_hi'): return {('s', 'exec')}
    if op == 'm0': return {('s', 'm0')}
    return set()

TRANS = ('v_exp_f32', 'v_log_f32', 'v_rcp_f32', 'v_rsq_f32', 'v_sqrt_f32', 'v_sin_f32', 'v_cos_f32', 'v_rcp_iflag_f32')

class Ins:
    def __init__(self, text):
        self.text = text
        t = text.split(';')[0].strip()
        self.label = None; self.mn = None; self.ops = []; self.mods = ''
        self.kind = 'other'; self.w = set(); self.r = set()
        if not t: self.kind = 'blank'; return
        if t.endswith(':'): self.kind = 'label'; self.label = t[:-1]; return
        if t.startswith('.'): self.kind = 'directive'; return
        if t.startswith('@touch'):
            self.kind = 'touch'
            for o in t.split(None, 1)[1].split(','): self.r |= regs_of(o)
            return
        parts = t.split(None, 1)
        self.mn = parts[0]
        rest = parts[1] if len(parts) > 1 else ''
        ops = []; depth = 0; cur = ''
        for ch in rest:
            if ch in '([': depth += 1
            if ch in ')]': depth -= 1
            if ch == ',' and depth == 0: ops.append(cur.strip()); cur = ''
            else: cur += ch
        if cur.strip(): ops.append(cur.strip())
        if ops:
            last = ops[-1].split(None, 1)
            if len(last) > 1 and not ops[-1].startswith('abs(') :
                ops[-1] = last[0]; self.mods = last[1]
        self.ops = ops
        self.classify()

    def classify(self):
        mn = self.mn; ops = self.ops; R = [regs_of(o) for o in ops]
        U = lambda l: set().union(*l) if l else set()
        self.srcC = set(); self.passes = 0; self.ab = set()
        if mn.startswith('v_mfma'):
            self.kind = 'mfma'; self.w = R[0]; self.ab = R[1] | R[2]; self.srcC = R[3]; self.r = self.ab | self.srcC
            self.passes = 8 if '32x32' in mn else 4
        elif mn.startswith('v_smfmac'):
            self.kind = 'mfma'; self.w = R[0]; self.ab = R[1] | R[2] | R[3]; self.srcC = R[0]; self.r = self.ab | self.srcC
            self.passes = 8 if '32x32' in mn else 4
        elif mn.startswith('v_'):
            self.kind = 'valu'
            base = mn.replace('_e32', '').replace('_e64', '').replace('_dpp', '').replace('_sdwa', '')
            self.base = base
            if base.startswith('v_permlane') and 'swap' in base:
                self.w = R[0] | R[1]; self.r = R[0] | R[1]
            elif base.startswith('v_cmp'):
                self.w = R[0]; self.r = U(R[1:])
            elif base in ('v_add_co_u32', 'v_sub_co_u32', 'v_addc_co_u32', 'v_subb_co_u32', 'v_subrev_co_u32', 'v_div_scale_f32', 'v_mad_u64_u32'):
                self.w = R[0] | R[1]; self.r = U(R[2:])
            else:
                self.w = R[0]; self.r = U(R[1:])
                if base == 'v_swap_b32':
                    self.w = R[0] | R[1]; self.r = R[0] | R[1]
                if base in ('v_fmac_f32', 'v_writelane_b32', 'v_dot2c_f32_bf16', 'v_pk_fmac_f16') or mn.endswith('_dpp') or mn.endswith('_sdwa'):
                    self.r |= R[0]
                if base == 'v_cndmask_b32' and len(ops) == 3: self.r |= {('s', 'vcc')}
            self.dpp = mn.endswith('_dpp')
            self.trans = base in TRANS
        elif mn.startswith('ds_'):
            self.kind = 'ds'
            if mn.startswith('ds_read') or mn.startswith('ds_bpermute') or mn.startswith('ds_permute') or mn.startswith('ds_swizzle') or '_rtn' in mn:
                self.w = R[0]; self.r = U(R[1:])
            else:
                self.r = U(R)
        elif mn.startswith('buffer_') or mn.startswith('global_'):
            self.kind = 'vmem'
            lds = ('lds' in self.mods.split()) or ('load_lds' in mn)
            self.lds = lds
            if mn in ('buffer_inv', 'buffer_wbl2'):
                pass
            elif '_load' in mn and not lds:
                self.w = R[0]; self.r = U(R[1:])
            elif '_load' in mn:
                self.r = U(R) | {('s', 'm0')}
            elif 'atomic' in mn and 'sc0' in self.mods.split():
                if mn.startswith('buffer_'): self.w = R[0]; self.r = U(R)
                else: self.w = R[0]; self.r = U(R[1:])
            else:
                self.r = U(R)
            self.widestore = set()
            if '_store_dwordx4' in mn or '_store_dwordx3' in mn:
                self.widestore = R[0] if mn.startswith('buffer_') else R[1]
        elif mn.startswith('s_load') or mn.startswith('s_buffer_load') or mn in ('s_memtime', 's_memrealtime') or mn.startswith('s_atomic'):
            self.kind = 'smem'; self.w = R[0]; self.r = U(R[1:])
        elif mn == 's_waitcnt': self.kind = 'wait'
        elif mn == 's_nop': self.kind = 'nop'
        elif mn.startswith('s_cbranch') or mn == 's_branch': self.kind = 'branch'
        elif mn in ('s_barrier', 's_endpgm', 's_sleep', 's_setprio'): self.kind = 'salu0'
        elif mn.startswith('s_cmp') or mn.startswith('s_bitcmp'): self.kind = 'salu'; self.r = U(R)
        elif mn.startswith('s_'):
            self.kind = 'salu'; self.w = R[0] if R else set(); self.r = U(R[1:])
            if 'saveexec' in mn: self.w |= {('s', 'exec')}
        else:
            raise ValueError("unknown instruction: " + self.text)

    def states(self):
        if self.kind in ('label', 'blank', 'directive'): return 0
        if self.kind == 'nop': return int(self.ops[0], 0) + 1
        return 1

def vreg(s): return {x for x in s if x[0] in 'va'}
def sreg(s): return {x for x in s if x[0] == 's'}

def need(p, c):
    n = 0
    if p.kind == 'valu':
        pw = vreg(p.w); ps = sreg(p.w)
        if c.kind == 'mfma' and pw & c.r: n = max(n, 2)
        if c.kind == 'valu':
            if c.base.startswith('v_permlane') and pw & c.r: n = max(n, 2)
            if c.dpp and pw & c.r: n = max(n, 2)
            if c.base in ('v_readlane_b32', 'v_readfirstlane_b32') and pw & c.r: n = max(n, 1)
            if p.trans and not c.trans and pw & c.r: n = max(n, 1)
            if p.mn.endswith('_sdwa') and pw & (c.r | c.w): n = max(n, 1)
            if ps & c.r:
                n = max(n, 4 if c.base in ('v_readlane_b32', 'v_writelane_b32') else 2)
        if c.kind == 'vmem' and ps & c.r: n = max(n, 5)
        if p.trans and c.kind in ('ds', 'vmem', 'mfma') and pw & c.r: n = max(n, 2 if c.kind == 'mfma' else 1)
    if p.kind == 'mfma':
        P = p.passes
        if c.kind == 'mfma':
            if p.w & c.ab: n = max(n, P + 4)
            if p.w & c.srcC:
                if not (c.srcC == p.w and c.passes == P): n = max(n, P + 2)
            elif p.w & c.w: n = max(n, P + 4)
        elif c.kind in ('valu', 'ds', 'vmem'):
            if p.w & (c.r | c.w): n = max(n, P + 4)
        if c.kind == 'valu' and p.srcC & c.w: n = max(n, P - 1)
        if c.kind in ('ds', 'vmem') and p.srcC & c.w: n = max(n, P - 1)
    if p.kind == 'salu' and ('s', 'm0') in p.w:
        if (c.kind == 'vmem' and getattr(c, 'lds', False)) or (c.kind == 'valu' and ('s', 'm0') in c.r): n = max(n, 1)
    if p.kind == 'vmem' and p.widestore:
        if c.kind == 'valu' and p.widestore & c.w: n = max(n, 2)
        elif c.kind in ('ds', 'vmem', 'mfma') and p.widestore & c.w: n = max(n, 1)
    return n

def pad_needed(prev, c):
    real = [p for p in prev if p.kind not in ('label', 'blank', 'directive')][-24:]
    worst = 0
    for i, p in enumerate(real):
        n = need(p, c)
        if n <= 0: continue
        t = 0; lastm = (0, p.passes) if p.kind == 'mfma' else None
        cur = p
        for x in real[i+1:] + [c]:
            t += cur.states()
            tplain = t
            if x.kind == 'mfma':
                if lastm is not None: t = max(t, lastm[0] + lastm[1])
                lastm = (t, x.passes)
            cur = x
        if t < n + 1: worst = max(worst, n + 1 - tplain)
    return worst

def nops(n):
    out = []
    while n > 0:
        k = min(n, 16); out.append(Ins(f"  s_nop {k-1}")); n -= k
    return out

class Asm:
    def __init__(self):
        self.lines = []
    def __call__(self, text):
        for l in text.split('\n'):
            if l.strip(): self.lines.append(l if l.startswith(' ') or l.rstrip().endswith(':') or l.startswith('.') or l.startswith(';') else '  ' + l)
    def label(self, name): self.lines.append(name + ':')

    def dup_begin(self): self._dup = len(self.lines)
    def dup_end(self, entry):
        blk = self.lines[self._dup:]; del self.lines[self._dup:]
        labels = [l.strip()[:-1] for l in blk if l.strip().endswith(':') and not l.strip().startswith(';')]
        self.lines += [l.replace(' @loc', '') for l in blk if '@only2' not in l]
        self.lines.append(entry + ':')
        for l in blk:
            l = l.replace(' @loc', ' sc1').replace(' @only2', '')
            for lb in labels: l = re.sub(r'\b' + re.escape(lb) + r'\b', lb + '_s', l)
            self.lines.append(l)

    def finish(self):
        ins = [Ins(l) for l in self.lines]
        ins = self.autowait(ins)
        ins = self.hazards(ins)
        return '\n'.join(i.text for i in ins) + '\n'

    @staticmethod
    def autowait(ins):
        out = []; vm = []; lg = []
        smem = False
        for c in ins:
            if c.kind == 'label':
                vm = [(d, True) for d, f in vm]; lg = [(d, True) for d, f in lg]
                out.append(c); continue
            if c.kind == 'wait':
                m = re.search(r'vmcnt\((\d+)\)', c.text)
                if m:
                    n = int(m.group(1)); vm = vm[len(vm) - n:] if n < len(vm) else vm
                    if n == 0: vm = []
                m = re.search(r'lgkmcnt\((\d+)\)', c.text)
                if m:
                    n = int(m.group(1)); lg = lg[len(lg) - n:] if n < len(lg) else lg
                    if n == 0: lg = []; smem = False
                out.append(c); continue
            touch = c.r | c.w
            wv = wl = None
            for q, name in ((vm, 'vm'), (lg, 'lg')):
                idx = -1
                for i, (d, f) in enumerate(q):
                    if d & touch: idx = i
                if idx >= 0:
                    if q[idx][1]:
                        raise ValueError("dependence on a load issued before a label needs a manual wait: " + c.text)
                    n = len(q) - 1 - idx
                    if name == 'vm': wv = min(n, 63)
                    else: wl = 0 if smem else min(n, 15)
            if wv is not None or wl is not None:
                t = "  s_waitcnt" + (f" vmcnt({wv})" if wv is not None else "") + (f" lgkmcnt({wl})" if wl is not None else "")
                out.append(Ins(t))
                if wv is not None: vm = vm[len(vm) - wv:] if wv else []
                if wl is not None:
                    lg = lg[len(lg) - wl:] if wl else []
                    if wl == 0: smem = False
            if c.kind == 'touch': continue
            if c.kind == 'vmem': vm.append((set(c.w), False))
            elif c.kind == 'ds': lg.append((set(c.w), False))
            elif c.kind == 'smem': lg.append((set(c.w), False)); smem = True
            if c.kind == 'branch' and c.mn == 's_branch' or c.mn == 's_endpgm':
                vm = []; lg = []; smem = False
            out.append(c)
        return out

    @staticmethod
    def hazards(ins):
        out = []
        for c in ins:
            if c.kind not in ('label', 'blank', 'directive'):
                hist = []
                for p in reversed(out[-60:]):
                    if p.mn in ('s_branch', 's_endpgm'): break
                    hist.append(p)
                hist.reverse()
                k = pad_needed(hist, c)
                if k > 0: out += nops(k)
            out.append(c)
        changed = True
        while changed:
            changed = False
            pos = {c.label: i for i, c in enumerate(out) if c.kind == 'label'}
            for i, c in enumerate(out):
                if c.kind == 'branch' and c.ops[0] in pos:
                    hist = []
                    for p in reversed(out[max(0, i - 60):i]):
                        if p.mn in ('s_branch', 's_endpgm'): break
                        hist.append(p)
                    hist.reverse(); hist.append(c)
                    j = pos[c.ops[0]]; worst = 0; d = 0
                    seq = list(hist)
                    while j < len(out) and d < 20:
                        x = out[j]
                        if x.kind not in ('label', 'blank', 'directive'):
                            worst = max(worst, pad_needed(seq, x)); d += x.states()
                        seq.append(x)
                        if x.mn in ('s_branch', 's_endpgm'): break
                        j += 1
                    if worst > 0:
                        out[i:i] = nops(worst); changed = True; break
        return out
```

```python
from asmgen import Asm
from layout import *
from k_prep import srd, f2u, round_bf16
from k_main import spin_guard, stamp, stamp_flush
import k_main as km
import os

CAL_OFF = 0xA0000
DBG = 96
CNT_MOD, CNT_MOD2, CNT_HEAD, CNT_GRP = 0, 64, 128, 192

def head_load(a, vt):
    a(f"buffer_load_dword v{vt}, off, s[{DBG}:{DBG+3}], 0 offset:{CNT_HEAD} sc1\nbuffer_load_dword v{vt+1}, off, s[{DBG}:{DBG+3}], s94 sc1")

def wait_head(a, lbl, vt, preloaded=False):
    a(f"v_mov_b32 v{vt+2}, {163840 - 16}\ns_cmp_lg_u32 s17, 0\ns_cbranch_scc1 {lbl}_b\ns_branch {lbl}_{'t' if preloaded else 'in'}")
    a.label(lbl)
    a("s_sleep 8")
    a.label(lbl + "_in")
    head_load(a, vt)
    spin_guard(a, 39)
    a("s_waitcnt vmcnt(0)")
    a.label(lbl + "_t")
    a(f"""v_readfirstlane_b32 s19, v{vt}
v_readfirstlane_b32 s74, v{vt+1}
s_nop 0
s_and_b32 s22, s19, 255
s_cmp_lt_u32 s22, 64
s_cbranch_scc1 {lbl}
s_and_b32 s22, s74, 255
s_cmp_lt_u32 s22, 26
s_cbranch_scc1 {lbl}
ds_write_b64 v{vt+2}, v[{vt}:{vt+1}]
s_waitcnt lgkmcnt(0)""")
    a.label(lbl + "_b")
    a(f"""s_barrier
ds_read_b64 v[{vt}:{vt+1}], v{vt+2}
v_readfirstlane_b32 s19, v{vt}
v_readfirstlane_b32 s74, v{vt+1}
s_nop 0
s_and_b32 s19, s19, 256
s_lshl_b32 s19, s19, 5
s_mul_i32 s22, s95, 26
s_sub_u32 s74, s74, s22""")
    if os.environ.get('SAFE'): a("s_mov_b32 s74, 1")

def wait_count(a, lbl, vt, off, n):
    a(f"s_branch {lbl}_in")
    a.label(lbl)
    a("s_sleep 4")
    a.label(lbl + "_in")
    a(f"buffer_load_dword v{vt}, off, s[{DBG}:{DBG+3}], 0 offset:{off} sc1")
    spin_guard(a, 39)
    a(f"s_waitcnt vmcnt(0)\nv_cmp_gt_u32 vcc, {n}, v{vt}\ns_cbranch_vccnz {lbl}")

def gemv_loads(a, npass, col_s, row_s):
    a(f"""v_lshrrev_b32 v6, 3, v0
v_add_u32 v6, s{row_s}, v6
v_and_b32 v7, 7, v0
v_mul_u32_u24 v28, 7680, v6
v_lshl_add_u32 v28, v7, 4, v28
v_lshlrev_b32 v29, 1, v6""")
    for i in range(npass):
        a(f"s_add_u32 s24, s{col_s}, {i*32*7680}\nbuffer_load_dwordx4 v[{32+4*i}:{35+4*i}], v28, s[48:51], s24 offen {km.PH}")
    for i in range(npass):
        a(f"buffer_load_ushort v{8+i}, v29, s[44:47], 0 offen offset:{64*i}")

def gemv_math(a, npass, skip_lbl):
    for i in range(npass):
        r = 8 + i
        a(f"""v_lshlrev_b32 v{r}, 16, v{r}
v_mul_f32 v30, 0xbfb8aa3b, v{r}
v_exp_f32 v30, v30
v_add_f32 v30, 1.0, v30
v_rcp_f32 v30, v30
v_mul_f32 v{r}, v{r}, v30""")
        round_bf16(a, r, 30)
    stamp(a, 3)
    for j in range(8): a(f"v_mov_b32 v{112+j}, 0")
    for i in range(npass):
        for j in range(4):
            w = 32 + 4 * i + j
            a(f"""v_lshlrev_b32 v30, 16, v{w}
v_and_b32 v31, 0xffff0000, v{w}
v_fmac_f32 v{112+2*j}, v30, v{8+i}
v_fmac_f32 v{113+2*j}, v31, v{8+i}""")
    a(f"""v_lshlrev_b32 v30, 5, v0
ds_write_b128 v30, v[112:115]
ds_write_b128 v30, v[116:119] offset:16
s_waitcnt lgkmcnt(0)
s_barrier
s_cmp_lg_u32 s17, 0
s_cbranch_scc1 {skip_lbl}
v_lshlrev_b32 v30, 2, v0""")
    for i in range(32): a(f"ds_read_b32 v{32+i}, v30 offset:{256*i}")
    for st in (16, 8, 4, 2):
        for i in range(0, st, 2): a(f"v_pk_add_f32 v[{32+i}:{33+i}], v[{32+i}:{33+i}], v[{32+st+i}:{33+st+i}]")
    a("v_add_f32 v32, v32, v33")

def mod_rest(a):
    a("s_sub_u32 s36, s18, 40\ns_cmp_ge_u32 s36, 20\ns_cbranch_scc1 L_M_done\ns_add_u32 s36, s36, 20\ns_mov_b32 s37, 0")
    a.label("L_M_loop")
    a("s_lshl_b32 s3, s36, 7")
    gemv_loads(a, 20, 3, 37)
    gemv_math(a, 20, "L_M_next")
    round_bf16(a, 32, 31)
    a(f"""s_sub_u32 s25, s36, 40
s_cmp_lt_u32 s25, 10
s_cselect_b32 s24, 1.0, 0
v_add_f32 v32, s24, v32""")
    round_bf16(a, 32, 31)
    a(f"""s_lshl_b32 s3, s36, 8
buffer_store_dword v32, v30, s[4:7], s3 offen offset:{MOD_OFF} sc1
v_mov_b32 v31, 1
s_waitcnt vmcnt(0)
s_mov_b64 exec, 1
buffer_atomic_add v31, off, s[{DBG}:{DBG+3}], 0 offset:{CNT_MOD2}
s_mov_b64 exec, -1""")
    a.label("L_M_next")
    a("s_barrier\ns_add_u32 s36, s36, 20\ns_cmp_lt_u32 s36, 60\ns_cbranch_scc1 L_M_loop")
    a.label("L_M_done")
    wait_count(a, "L_M_w", 28, CNT_MOD2, 40)

def role_head(a):
    a.label("L_H")
    a(f"""s_load_dwordx4 s[28:31], s[0:1], {K_X}       ; x, mem0
s_load_dwordx4 s[32:35], s[0:1], {K_C}       ; c, w_mod
s_mov_b32 s39, 0
s_mov_b32 s43, 1
s_waitcnt lgkmcnt(0)""")
    srd(a, 8, 28, 2048 * 1280); srd(a, 12, 30, 8 * 1280); srd(a, 44, 32, 1280); srd(a, 48, 34, 640 * 7680)
    RAW = 200
    a(f"""v_lshrrev_b32 v4, 4, v0
v_mul_u32_u24 v5, 1280, v4
v_lshl_add_u32 v5, v3, 4, v5
s_mul_i32 s36, s18, {32*1280}
s_add_u32 s37, s36, {16*1280}
s_cmp_ge_u32 s18, 60
s_cbranch_scc1 L_H_nomod
s_mul_i32 s38, s18, 3277
s_lshr_b32 s38, s38, 16
s_mul_i32 s3, s38, 20
s_sub_u32 s3, s18, s3
s_lshl_b32 s3, s3, 7
s_mul_i32 s38, s38, 224""")
    gemv_loads(a, 7, 3, 38)
    def xloads():
        for tt in range(2):
            for i in range(5):
                a(f"buffer_load_dwordx4 v[{RAW+20*tt+4*i}:{RAW+20*tt+4*i+3}], v5, s[8:11], s{36+tt} offen offset:{256*i}")
    xloads()
    gemv_math(a, 7, "L_H_init")
    a(f"""s_lshl_b32 s3, s18, 8
s_add_u32 s3, s3, {MODP_OFF}
buffer_store_dword v32, v30, s[4:7], s3 offen sc1
v_mov_b32 v31, 1
s_waitcnt vmcnt(0)
s_mov_b64 exec, 1
buffer_atomic_add v31, off, s[{DBG}:{DBG+3}], 0 offset:{CNT_MOD}
s_mov_b64 exec, -1
s_branch L_H_init""")
    a.label("L_H_nomod")
    a(f"""s_cmp_lg_u32 s18, 63
s_cbranch_scc1 L_H_nocal
v_and_b32 v6, 3, v0
v_lshlrev_b32 v6, 8, v6
v_bfe_u32 v7, v0, 2, 1
v_lshl_add_u32 v6, v7, 13, v6
s_lshl_b32 s42, s17, 10
s_add_u32 s42, s42, {CAL_OFF}
buffer_load_dword v7, v6, s[4:7], s42 offen sc1
s_waitcnt vmcnt(0)
buffer_store_dword v7, v6, s[4:7], s42 offen sc1
s_waitcnt vmcnt(0)
s_mov_b32 s40, -1
s_mov_b32 s41, -1
s_add_u32 s38, s42, {km.NCAL*256}
s_mov_b64 exec, 1""")
    a.label("L_H_cal")
    for hf in range(2):
        a(f"""s_add_u32 s24, s42, {hf*8192}
s_memtime s[52:53]
s_waitcnt lgkmcnt(0)
buffer_load_dword v7, off, s[4:7], s24 sc1
s_waitcnt vmcnt(0)
s_memtime s[54:55]
s_waitcnt lgkmcnt(0)
s_sub_u32 s54, s54, s52
s_min_u32 s{40+hf}, s{40+hf}, s54""")
    a(f"""s_add_u32 s42, s42, 256
s_cmp_lt_u32 s42, s38
s_cbranch_scc1 L_H_cal
v_mov_b32 v6, s40
v_mov_b32 v7, s41
s_lshl_b32 s24, s17, 3
v_mov_b32 v8, s24
ds_write_b64 v8, v[6:7]
s_waitcnt lgkmcnt(0)
s_mov_b64 exec, -1""")
    a.label("L_H_nocal")
    a(f"""v_lshlrev_b32 v6, 4, v0
v_mov_b32 v8, {hex(SENT)}
s_sub_u32 s24, s18, 60
s_lshl_b32 s24, s24, 19
s_add_u32 s24, s24, {RING_OFF}""")
    for i in range(3):
        a(f"""v_add_u32 v13, {256*i}, v0
v_bfe_u32 v14, v13, 1, 3
v_mul_u32_u24 v14, 1280, v14
v_lshrrev_b32 v15, 4, v13
v_lshl_add_u32 v14, v15, 5, v14
v_and_b32 v15, 1, v13
v_lshl_add_u32 v14, v15, 4, v14
v_cmp_gt_u32 vcc, 640, v13
v_cndmask_b32 v14, -1, v14, vcc
buffer_load_dwordx4 v[{16+4*i}:{19+4*i}], v14, s[12:15], 0 offen""")
    a("v_mov_b32 v13, 0xffc0ffc0")
    for r in range(16, 28): a(f"v_cmp_eq_u32 vcc, v{r}, v8\nv_cndmask_b32 v{r}, v{r}, v13, vcc")
    a("v_cmp_gt_u32 vcc, 128, v0")
    for r in range(24, 28): a(f"v_cndmask_b32 v{r}, v8, v{r}, vcc")
    for i in range(3): a(f"s_add_u32 s25, s24, {4096*i}\nbuffer_store_dwordx4 v[{16+4*i}:{19+4*i}], v6, s[4:7], s25 offen sc1")
    a.label("L_H_armed")
    xloads()
    a.label("L_H_init")
    stamp(a, 4)
    a(f"""v_lshlrev_b32 v7, 3, v0
v_mov_b32 v12, 0
v_mov_b32 v13, 0
s_lshl_b32 s24, s18, 11
s_add_u32 s24, s24, {FLAG_OFF}
buffer_store_dwordx2 v[12:13], v7, s[4:7], s24 offen sc1
v_lshlrev_b32 v7, 2, v0
s_lshl_b32 s24, s18, 10
s_add_u32 s24, s24, {X1F_OFF}
buffer_store_dword v12, v7, s[4:7], s24 offen sc1
s_waitcnt vmcnt(2)""")
    for tt in range(2):
        X = 32 + 40 * tt
        for i in range(20): a(f"v_lshlrev_b32 v{X+2*i}, 16, v{RAW+20*tt+i}\nv_and_b32 v{X+2*i+1}, 0xffff0000, v{RAW+20*tt+i}")
        def rowsum(v):
            for sh in (8, 4, 2, 1): a(f"v_add_f32_dpp v{v}, v{v}, v{v} row_ror:{sh} row_mask:0xf bank_mask:0xf")
        a(f"v_pk_add_f32 v[28:29], v[{X}:{X+1}], v[{X+2}:{X+3}]")
        for i in range(4, 40, 2): a(f"v_pk_add_f32 v[28:29], v[28:29], v[{X+i}:{X+i+1}]")
        a("v_add_f32 v28, v28, v29")
        rowsum(28)
        a(f"v_mul_f32 v28, {hex(f2u(-1.0/640))}, v28")
        for i in range(0, 40, 2): a(f"v_pk_add_f32 v[{X+i}:{X+i+1}], v[{X+i}:{X+i+1}], v[28:29] op_sel_hi:[1,0]")
        a(f"v_pk_mul_f32 v[28:29], v[{X}:{X+1}], v[{X}:{X+1}]")
        for i in range(2, 40, 2): a(f"v_pk_fma_f32 v[28:29], v[{X+i}:{X+i+1}], v[{X+i}:{X+i+1}], v[28:29]")
        a("v_add_f32 v28, v28, v29")
        rowsum(28)
        a(f"""v_mov_b32 v30, {hex(f2u(1e-5))}
v_fmac_f32 v30, {hex(f2u(1.0/640))}, v28
v_rsq_f32 v30, v30""")
        for i in range(0, 40, 2): a(f"v_pk_mul_f32 v[{X+i}:{X+i+1}], v[{X+i}:{X+i+1}], v[30:31] op_sel_hi:[1,0]")
    stamp(a, 5)
    a("s_cmp_lg_u32 s17, 0\ns_cbranch_scc1 L_H_wm_b")
    wait_count(a, "L_H_wm", 28, CNT_MOD, 60)
    a.label("L_H_wm_b")
    a(f"s_barrier\nv_lshlrev_b32 v28, 2, v0")
    stamp(a, 6)
    for p in range(3):
        a(f"s_mov_b32 s24, {MODP_OFF + p*5120}")
        for i in range(4): a(f"buffer_load_dword v{112+5*p+i}, v28, s[4:7], s24 offen offset:{1024*i} sc1")
        a(f"s_mov_b32 s24, {MODP_OFF + p*5120 + 4096}\nbuffer_load_dword v{112+5*p+4}, v28, s[4:7], s24 offen sc1")
    a(f"""v_lshlrev_b32 v6, 4, v0
v_mov_b32 v8, {hex(SENT)}
v_mov_b32 v9, v8
v_mov_b32 v10, v8
v_mov_b32 v11, v8
s_lshl_b32 s24, s18, 13
s_add_u32 s24, s24, {PART_OFF}
buffer_store_dwordx4 v[8:11], v6, s[4:7], s24 offen sc1
s_add_u32 s24, s24, 4096
buffer_store_dwordx4 v[8:11], v6, s[4:7], s24 offen sc1
s_lshr_b32 s24, s18, 4
s_lshl_b32 s24, s24, 19
s_bfe_u32 s25, s18, 0x10003
s_lshl_b32 s25, s25, 17
s_add_u32 s24, s24, s25
s_and_b32 s25, s18, 7
s_mul_i32 s25, s25, 12288
s_add_u32 s24, s24, s25
s_add_u32 s24, s24, {RING_OFF}
s_and_b32 s25, s18, 15
s_cmp_eq_u32 s25, 0
s_cselect_b32 s24, {PART_OFF}, s24""")
    for i in range(3): a(f"s_add_u32 s25, s24, {4096*i}\nbuffer_store_dwordx4 v[8:11], v6, s[4:7], s25 offen sc1")
    a("v_cmp_le_u32 vcc, 128, v0\nv_cndmask_b32 v130, 0, 1.0, vcc")
    for i in range(5):
        a(f"v_add_f32 v{112+i}, v{112+i}, v{117+i}\nv_add_f32 v{112+i}, v{112+i}, v{122+i}")
        round_bf16(a, 112 + i, 29)
        if i >= 2:
            a(f"v_add_f32 v{112+i}, {'v130' if i == 2 else '1.0'}, v{112+i}")
            round_bf16(a, 112 + i, 29)
        a(f"ds_write_b32 v28, v{112+i} offset:{8192 + 1024*i}")
    a("s_waitcnt lgkmcnt(0)\ns_barrier\nv_lshlrev_b32 v28, 5, v3")
    for i in range(5):
        for hf in range(2):
            a(f"ds_read_b128 v[{112+8*i+4*hf}:{115+8*i+4*hf}], v28 offset:{8192 + 512*i+16*hf}")
            a(f"ds_read_b128 v[{152+8*i+4*hf}:{155+8*i+4*hf}], v28 offset:{8192 + 2560 + 512*i+16*hf}")
    a(f"""v_lshrrev_b32 v6, 2, v3
v_lshlrev_b32 v6, 10, v6
v_and_b32 v7, 3, v3
v_lshl_add_u32 v6, v7, 8, v6
v_xor_b32 v7, v4, v3
v_lshl_add_u32 v6, v7, 4, v6
v_lshrrev_b32 v8, 4, v0
v_xor_b32 v8, v8, v0
v_and_b32 v8, 15, v8
v_and_b32 v9, 0xf0, v0
v_or_b32 v8, v8, v9
v_lshlrev_b32 v8, 4, v8
v_lshlrev_b32 v7, 4, v0
s_mul_i32 s3, s18, 40960
s_add_u32 s3, s3, {HF_OFF}""")
    for i in range(5):
        for tt in range(2):
            X = 32 + 40 * tt + 8 * i; O = RAW + 20 * tt + 4 * i
            for j in range(0, 8, 2): a(f"v_pk_fma_f32 v[{X+j}:{X+j+1}], v[{X+j}:{X+j+1}], v[{152+8*i+j}:{153+8*i+j}], v[{112+8*i+j}:{113+8*i+j}]")
            for j in range(4): a(f"v_cvt_pk_bf16_f32 v{O+j}, v{X+2*j}, v{X+2*j+1}")
            a(f"ds_write_b128 v6, v[{O}:{O+3}] offset:{16384 + 20480*tt + 4096*i}")
    a("s_waitcnt lgkmcnt(0)\ns_barrier")
    for i in range(10): a(f"ds_read_b128 v[{32+4*i}:{35+4*i}], v8 offset:{16384 + 4096*i}")
    for i in range(10): a(f"s_add_u32 s24, s3, {4096*i}\nbuffer_store_dwordx4 v[{32+4*i}:{35+4*i}], v7, s[4:7], s24 offen sc1")
    stamp(a, 7)
    a(f"""s_cmp_lg_u32 s18, 63
s_cbranch_scc1 L_H_fin
v_mov_b32 v6, 0
ds_read_b128 v[8:11], v6
ds_read_b128 v[12:15], v6 offset:16
v_min3_u32 v8, v8, v10, v12
v_min3_u32 v9, v9, v11, v13
v_min_u32 v8, v8, v14
v_min_u32 v9, v9, v15
v_readfirstlane_b32 s40, v8
v_readfirstlane_b32 s41, v9
s_nop 0
s_cmp_lt_u32 s40, s41
s_cselect_b32 s24, 0, 256
s_getreg_b32 s25, hwreg(HW_REG_XCC_ID, 0, 4)
s_and_b32 s25, s25, 4
s_lshl_b32 s25, s25, 6
s_xor_b32 s24, s24, s25
s_add_u32 s43, s24, 1""")
    if km.STAMP:
        a(f"s_mov_b32 s24, {PAR_OFF}\nbuffer_store_dwordx2 v[8:9], off, s[4:7], s24 offset:4")
    a.label("L_H_fin")
    a(f"""v_mov_b32 v31, s43
s_waitcnt vmcnt(0)
s_barrier
s_cmp_lg_u32 s17, 0
s_cbranch_scc1 L_H_done
s_mov_b64 exec, 1
buffer_atomic_add v31, off, s[{DBG}:{DBG+3}], 0 offset:{CNT_HEAD}
s_mov_b64 exec, -1""")
    a.label("L_H_done")
    stamp(a, 1)
    a("s_cmp_lt_u32 s18, 40\ns_cbranch_scc1 L_H_r")
    mod_rest(a)
    a.label("L_H_r")
    wait_head(a, "L_H_wh", 28)
    stamp(a, 2); stamp_flush(a, 8, row=64)
```

```python
from asmgen import Asm
from layout import *
from k_prep import srd, f2u
import math

import os
STAMP = bool(os.environ.get('STAMP'))
ST_OFF = 244 * MB
def stamp(a, i):
    if STAMP: a(f"{'s_memtime' if os.environ.get('STAMP') == '2' else 's_memrealtime'} s[{76+2*i}:{77+2*i}]")
def stamp_flush(a, n, row_s=None, row=None, tmp=15):
    if not STAMP: return
    a("s_waitcnt lgkmcnt(0)\ns_lshl_b32 s92, s16, 2\ns_add_u32 s92, s92, s17\ns_mul_i32 s92, s92, 66")
    a(f"s_add_u32 s92, s92, s{row_s}" if row_s is not None else f"s_add_u32 s92, s92, {row}")
    a(f"s_lshl_b32 s92, s92, 5\ns_add_u32 s92, s92, {ST_OFF}\ns_mov_b64 exec, 1")
    for i in range(n): a(f"v_mov_b32 v{tmp}, s{76+2*i}\nbuffer_store_dword v{tmp}, off, s[4:7], s92 offset:{4*i}")
    a("s_mov_b64 exec, -1")
SLOT = 24576
NCAL = 3
SCHED = int(os.environ.get('SCHED', 0))
DP = int(os.environ.get('DP', 100)); DYL = int(os.environ.get('DYL', 12)); DM = int(os.environ.get('DM', 165)); DH = int(os.environ.get('DH', 60)); HSTR = int(os.environ.get('HSTR', 8))
RAMP = int(os.environ.get('RAMP', 1))
DIAG = os.environ.get('DIAG')
PW = os.environ.get('PW', ''); PA = os.environ.get('PA', ''); PH = os.environ.get('PH', '')
DW = int(os.environ.get('DW', 5)); DA = int(os.environ.get('DA', 5))
SPIN_MAX = 200000

def R(kind, i, n=1):
    return f"{kind}{i}" if n == 1 else f"{kind}[{i}:{i+n-1}]"

def lane_decomp(a):
    a("""v_and_b32 v1, 63, v0
v_lshrrev_b32 v2, 4, v1
v_and_b32 v3, 15, v1""")

def loader(a, stages, shift, tmp, stampload=False, depth=5, pol='', needpar=False):
    vW = {}; need = {(s['kind'], s['style'], s['stride']) for s in stages}
    t = tmp
    rho, pi, swz, x, y = t, t + 1, t + 2, t + 3, t + 4
    a(f"""v_lshrrev_b32 v{rho}, 3, v1
v_and_b32 v{pi}, 7, v1
v_lshrrev_b32 v{x}, 1, v{pi}
v_lshrrev_b32 v{y}, 1, v{rho}
v_xor_b32 v{x}, v{x}, v{y}
v_lshlrev_b32 v{swz}, 5, v{x}
v_and_b32 v{x}, 1, v{pi}
v_lshl_add_u32 v{swz}, v{x}, 4, v{swz}""")
    nxt = t + 5
    for key in sorted(need):
        kind, style, stride = key
        v = nxt; nxt += 1; vW[key] = v
        if style == 'nat':
            a(f"v_lshrrev_b32 v{x}, 2, v{rho}\nv_and_b32 v{y}, 3, v{rho}\nv_lshl_add_u32 v{v}, v{x}, 3, v{y}")
        elif style == 'sp':
            a(f"v_bfe_u32 v{x}, v{rho}, 1, 1\nv_lshlrev_b32 v{v}, 3, v{x}\nv_lshrrev_b32 v{x}, 2, v{rho}\nv_lshl_add_u32 v{v}, v{x}, 2, v{v}\nv_and_b32 v{x}, 1, v{rho}\nv_add_u32 v{v}, v{v}, v{x}")
        else:
            a(f"v_mov_b32 v{v}, v{rho}")
        if kind == 'W':
            if style == 'lin':
                a(f"s_lshl_b32 s22, s17, 4")
            else:
                a(f"s_lshr_b32 s22, s17, 1\ns_lshl_b32 s22, s22, 5\ns_and_b32 s23, s17, 1\ns_lshl_b32 s23, s23, {2 if style == 'nat' else 1}\ns_add_u32 s22, s22, s23")
            a(f"v_add_u32 v{v}, s22, v{v}\ns_mov_b32 s22, {stride}\nv_mul_lo_u32 v{v}, v{v}, s22\nv_add_u32 v{v}, v{v}, v{swz}")
        else:
            a(f"s_and_b32 s22, s17, 1\ns_lshl_b32 s22, s22, {3 if style == 'lin' else 4}\nv_add_u32 v{v}, s22, v{v}\ns_mov_b32 s22, {stride}\nv_mul_lo_u32 v{v}, v{v}, s22\nv_add_u32 v{v}, v{v}, v{swz}")
            a(f"s_lshr_b32 s22, s17, 1\ns_mul_i32 s22, s22, 640\nv_add_u32 v{v}, s22, v{v}")
    a("s_mul_i32 s24, s17, 6144\ns_and_b32 s25, s17, 1\ns_mul_i32 s25, s25, 10240\ns_lshr_b32 s22, s17, 1\ns_mul_i32 s22, s22, 5120\ns_add_u32 s25, s25, s22")
    kinds = {s['kind'] for s in stages}
    aW = aO = None
    rr, cc = rho, pi
    a(f"""v_bfe_u32 v{rr}, v1, 2, 3               ; 4*(g&1) + r
v_and_b32 v{cc}, 3, v1
v_lshlrev_b32 v{cc}, 3, v{cc}
v_lshl_add_u32 v{cc}, v{rr}, 7, v{cc}      ; rho*128 + c*8
v_lshrrev_b32 v{rr}, 1, v{rr}              ; rho>>1
v_lshrrev_b32 v{y}, 5, v1                 ; gh""")
    def tile_addrs(n, ghmul):
        nonlocal nxt
        base = nxt; nxt += n
        for tt in range(n):
            a(f"""s_mul_i32 s22, s17, {n}
s_add_u32 s22, s22, {tt}
s_and_b32 s23, s22, 3
s_lshr_b32 s22, s22, 2
s_lshl_b32 s22, s22, 10
v_xor_b32 v{x}, s23, v{rr}
v_lshl_add_u32 v{base+tt}, v{x}, 5, v{cc}
v_add_u32 v{base+tt}, s22, v{base+tt}
v_mul_u32_u24 v{x}, {ghmul}, v{y}
v_add_u32 v{base+tt}, v{base+tt}, v{x}""")
        return base
    if 'W' in kinds: aW = tile_addrs(3, 3072)
    if 'O' in kinds: aO = tile_addrs(10, 10240)
    cur = nxt; nxt += 10
    assert nxt <= tmp + 32, nxt - tmp
    cnt = [6 if s['kind'] == 'W' else 5 for s in stages]
    def issue(n):
        s = stages[n]; slot = ((n + shift) % 6) * SLOT
        v = vW[(s['kind'], s['style'], s['stride'])]
        for i in range(cnt[n]):
            if s['kind'] == 'W':
                gh, cb = divmod(i, 3)
                rows = s['row0'] + (8 if s['style'] == 'lin' else 16) * gh
                off = rows * s['stride'] + cb * 128
                a(f"s_add_u32 m0, s24, {slot + i*1024}")
            else:
                off = s['row0'] * s['stride'] + i * 128
                a(f"s_add_u32 m0, s25, {slot + i*1024}")
            a(f"s_add_u32 s26, s{s['col']}, {off}\nbuffer_load_dwordx4 v{v}, s[{s['srd']}:{s['srd']+3}], s26 offen {pol} lds")
    N = len(stages)
    ramp = RAMP if stampload else depth
    issued = min(ramp, N)
    for n in range(issued): issue(n)
    fb = tmp + 36; extra = 0
    if any(x['dests'] is None for x in stages):
        a(f"s_mul_i32 s22, s17, 6144\nv_lshlrev_b32 v{x}, 4, v1\nv_add_u32 v{x}, s22, v{x}")
    for n in range(N):
        s = stages[n]
        later = sum(cnt[n+1:issued]) + extra
        a(f"s_waitcnt vmcnt({later})\ns_barrier")
        while issued < min(n + depth + 1, N): issue(issued); issued += 1
        if stampload and n == N - 2:
            import k_head
            k_head.head_load(a, tmp + 34 - 2); extra = 2
        slot = ((n + shift) % 6) * SLOT
        nt = 3 if s['kind'] == 'W' else 10
        base = aW if s['kind'] == 'W' else aO
        for tt in range(nt): a(f"v_add_u32 v{cur+tt}, {slot}, v{base+tt}")
        if s['dests'] is None:
            a(f"v_add_u32 v{cur+3}, {slot}, v{x}")
            for tt in range(3):
                for q in range(4): a(f"ds_read_b64_tr_b16 v[{fb+8*tt+2*q}:{fb+8*tt+2*q+1}], v{cur+tt} offset:{q*6144}")
            a("s_waitcnt lgkmcnt(0)\ns_barrier")
            for j in range(6): a(f"ds_write_b128 v{cur+3}, v[{fb+4*j}:{fb+4*j+3}] offset:{j*1024}")
        else:
            for tt in range(nt):
                for q in range(4 if s['kind'] == 'W' else 1):
                    k, r = s['dests'](tt, q)
                    a(f"ds_read_b64_tr_b16 {R(k, r, 2)}, v{cur+tt} offset:{q*6144}")
        a("s_waitcnt lgkmcnt(0)")
    a("s_waitcnt vmcnt(0)\ns_barrier")
    if STAMP and stampload:
        stamp(a, 1); a("s_memtime s[80:81]"); stamp_flush(a, 3, row=64, tmp=tmp); a("s_waitcnt vmcnt(0)")
    if stampload:
        import k_head
        loader.n = getattr(loader, 'n', 0) + 1
        k_head.wait_head(a, f"L_wh{loader.n}", tmp + 34 - 2, preloaded=True)
    return aW

def spin_guard(a, s):
    a(f"s_add_u32 s{s}, s{s}, 1\ns_cmp_gt_u32 s{s}, {SPIN_MAX}\ns_cbranch_scc1 L_exit")

def flag_addr(a, dst_s, role, head_s, wave_s=None):
    a(f"s_lshl_b32 s{dst_s}, s{head_s}, 8\ns_add_u32 s{dst_s}, s{dst_s}, {FLAG_OFF + role*FSTR}\ns_add_u32 s{dst_s}, s{dst_s}, s19")
    if wave_s is not None:
        a(f"s_lshl_b32 s22, s{wave_s}, 6\ns_add_u32 s{dst_s}, s{dst_s}, s22")

def proj_loop(a, pfx, src_off, seg0_s, nseg, out_base_s, sc, epilogue, flag_s=None, segstride=32*12288):
    HS = 40960
    a(f"""v_lshlrev_b32 v4, 4, v1                 ; lane*16
s_mul_i32 s22, s17, 10240
v_add_u32 v5, s22, v4
v_mov_b32 v6, 0
s_mov_b32 s28, 0
s_mov_b32 s29, {HS}                     ; next
s_mov_b32 s30, {2*HS}                   ; next-next""")
    def dma(seg_s, slot_s):
        a(f"s_min_u32 s23, s{seg_s}, 63\ns_mul_i32 s23, s23, {HS}\ns_add_u32 s23, s23, {src_off}\ns_mul_i32 s22, s17, 10240\ns_add_u32 s22, s22, s{slot_s}")
        for i in range(10):
            if i % 4 == 0:
                a(f"s_add_u32 m0, s22, {i*1024}\ns_add_u32 s26, s23, {i*1024}")
            a(f"buffer_load_dwordx4 v5, s[4:7], s26 offen offset:{(i%4)*1024} lds")
    dma(20, 28)
    a("s_add_u32 s31, s20, 1"); dma(31, 29)
    a("s_waitcnt vmcnt(10)")
    a.label(pfx + "_loop")
    a("s_barrier\ns_add_u32 s31, s20, 2")
    dma(31, 30)
    a("v_add_u32 v7, s28, v4")
    B = 16; ACC = 48
    def rd(kk):
        b = B + 8 * (kk % 3)
        a(f"ds_read_b128 v[{b}:{b+3}], v7 offset:{kk*1024}\nds_read_b128 v[{b+4}:{b+7}], v7 offset:{(20+kk)*1024}")
    rd(0); rd(1)
    for kk in range(20):
        if kk + 2 < 20: rd(kk + 2)
        b = B + 8 * (kk % 3)
        for tt in range(2):
            for t in range(3):
                acc = ACC + 8 * t + 4 * tt
                c = "0" if kk == 0 else f"v[{acc}:{acc+3}]"
                a(f"v_mfma_f32_16x16x32_bf16 v[{acc}:{acc+3}], a[{(kk*3+t)*4}:{(kk*3+t)*4+3}], v[{b+4*tt}:{b+4*tt+3}], {c}")
        if kk == 10:
            a("s_waitcnt vmcnt(10)")
            if flag_s is not None:
                a(f"v_mov_b32 v8, s20\ns_mov_b64 exec, 1\nbuffer_store_dword v8, v6, s[4:7], s{flag_s} offen sc1\ns_mov_b64 exec, -1")
    epilogue(a, ACC)
    a(f"s_mul_i32 s23, s20, {segstride}\ns_add_u32 s23, s23, s{out_base_s}")
    for t in range(3):
        o = 72 + 4 * t; acc = ACC + 8 * t
        for j in range(4): a(f"v_cvt_pk_bf16_f32 v{o+j}, v{acc+2*j}, v{acc+2*j+1}")
        a(f"buffer_store_dwordx4 v[{o}:{o+3}], v4, s[4:7], s23 offen offset:{t*1024} {sc}")
    a(f"""s_mov_b32 s22, s28
s_mov_b32 s28, s29
s_mov_b32 s29, s30
s_mov_b32 s30, s22
s_add_u32 s20, s20, 1
s_cmp_lt_u32 s20, s21
s_cbranch_scc1 {pfx}_loop
s_waitcnt vmcnt(0)""")
    if flag_s is not None:
        a(f"v_mov_b32 v8, s20\ns_mov_b64 exec, 1\nbuffer_store_dword v8, v6, s[4:7], s{flag_s} offen sc1\ns_mov_b64 exec, -1")

def proj_stream(a, pfx, src_off, out_base_s, flag_s):
    HS = 40960
    a(f"""v_lshlrev_b32 v4, 4, v1                 ; lane*16
s_mul_i32 s42, s17, 10240
v_add_u32 v5, s42, v4
v_mov_b32 v6, 0""")
    def dma_ops(seg_s, slot_s):
        ops = [[f"s_min_u32 s23, s{seg_s}, 63", f"s_mul_i32 s23, s23, {HS}", f"s_add_u32 s23, s23, {src_off}", f"s_add_u32 s22, s42, s{slot_s}"]]
        for i in range(10):
            o = []
            if i % 4 == 0: o += [f"s_add_u32 m0, s22, {i*1024}", f"s_add_u32 s26, s23, {i*1024}"]
            o.append(f"buffer_load_dwordx4 v5, s[4:7], s26 offen offset:{(i%4)*1024} sc1 lds")
            ops.append(o)
        return ops
    for j in range(3):
        a(f"s_mov_b32 s31, {j}\ns_mov_b32 s30, {j*HS}")
        for o in dma_ops(31, 30):
            for x in o: a(x)
    B = 16; ACCS = (48, 72); O = 96
    def rd(kk, ad):
        b = B + 8 * (kk % 4)
        return [f"ds_read_b128 v[{b}:{b+3}], v{ad} offset:{(kk%20)*1024}", f"ds_read_b128 v[{b+4}:{b+7}], v{ad} offset:{(20+kk%20)*1024}"]
    a(f"""s_mov_b32 s28, 0
s_mov_b32 s43, s{out_base_s}
v_mov_b32 v7, v4
s_waitcnt vmcnt(20)
s_barrier""")
    for x in rd(0, 7) + rd(1, 7): a(x)
    a("s_waitcnt lgkmcnt(0)")
    def epi_ops(acc):
        ops = []
        for t in range(3):
            o = O + 4 * t
            for j in range(4): ops.append(f"v_cvt_pk_bf16_f32 v{o+j}, v{acc+8*t+2*j}, v{acc+8*t+2*j+1}")
            ops.append(f"buffer_store_dwordx4 v[{o}:{o+3}], v4, s[4:7], s43 offen offset:{t*1024} sc1")
        return ops
    def body(par, first):
        acc = ACCS[par]; cur = 7 + par; nxt = 8 - par
        slots = []
        for kk in range(20):
            b = B + 8 * (kk % 4)
            for tt in range(2):
                for t in range(3):
                    d = acc + 8 * t + 4 * tt
                    c = "0" if kk == 0 else f"v[{d}:{d+3}]"
                    slots.append([f"v_mfma_f32_16x16x32_bf16 v[{d}:{d+3}], a[{(kk*3+t)*4}:{(kk*3+t)*4+3}], v[{b+4*tt}:{b+4*tt+3}], {c}", []])
        for kk in range(20):
            r = rd(kk + 2, cur if kk + 2 < 20 else nxt)
            slots[6*kk][1].append(r[0]); slots[6*kk + 1][1].append(r[1])
        if not first:
            for j, x in enumerate(epi_ops(ACCS[1 - par])): slots[3 + 2*j][1].append(x)
            slots[32][1].append(f"s_add_u32 s43, s43, {32*12288}")
        nst = 0 if first else 3
        slots[33][1] += [f"s_add_u32 s29, s28, {HS}", f"s_cmp_eq_u32 s29, {4*HS}", "s_cselect_b32 s29, 0, s29"]
        slots[34][1] += [f"v_add_u32 v{nxt}, s29, v4", "v_mov_b32 v9, s20"]
        slots[35][1] += [f"s_waitcnt vmcnt({10 + nst})", "s_barrier"]
        slots[38][1] += [f"s_add_u32 s30, s28, {3*HS}", f"s_sub_u32 s31, s30, {4*HS}", f"s_cmp_ge_u32 s30, {4*HS}"]
        slots[39][1] += ["s_cselect_b32 s30, s31, s30", "s_add_u32 s31, s20, 3"]
        ops = dma_ops(31, 30)
        slots[40][1] += ops[0][:2]; slots[41][1] += ops[0][2:]
        for i in range(10): slots[(44, 47, 51, 56, 59, 63, 68, 71, 75, 80)[i]][1] += ops[1 + i]
        return slots
    def flag(n):
        return [f"s_waitcnt vmcnt({n})", "s_mov_b64 exec, 1", f"buffer_store_dword v9, v6, s[4:7], s{flag_s} offen sc1", "s_mov_b64 exec, -1"]
    def emit(par, first):
        sl = body(par, first)
        if not first: sl[93][1] += flag(10)
        for mf, fl in sl:
            a(mf)
            fl = sorted(fl, key=lambda x: 1 if x.startswith('v_') else 0)
            for f in fl: a(f)
        a("s_mov_b32 s28, s29\ns_add_u32 s20, s20, 1")
    emit(0, True)
    for x in epi_ops(ACCS[0]): a(x)
    a(f"v_mov_b32 v9, s20\ns_add_u32 s43, s43, {32*12288}")
    for x in flag(0): a(x)
    emit(1, True)
    emit(0, False)
    a("s_waitcnt lgkmcnt(0)")
    a.label(pfx + "_loop")
    emit(1, False)
    a(f"s_cmp_eq_u32 s20, 64\ns_cbranch_scc1 {pfx}_fin")
    emit(0, False)
    a(f"s_waitcnt lgkmcnt(0)\ns_branch {pfx}_loop")
    a.label(pfx + "_fin")
    for x in epi_ops(ACCS[1]): a(x)
    a("v_mov_b32 v9, s20")
    for x in flag(0): a(x)
    a("s_waitcnt vmcnt(0) lgkmcnt(0)\ns_barrier")

def w_stages(srd_, stride, col, style, dest_fn, n=10, resident=()):
    st = []
    for c in range(n):
        st.append(dict(kind='W', srd=srd_, stride=stride, col=col, style=style, row0=64 * c,
                       dests=None if c in resident else (lambda t, q, c=c: dest_fn(c, t, q))))
    return st

def role_proj(a):
    a.label("L_proj")
    a("s_mul_i32 s32, s18, 384")
    loader(a, w_stages(8, 12288, 32, 'nat', lambda c, t, q: ('a', ((2*c + (q >> 1)) * 3 + t) * 4 + 2 * (q & 1))), 0, 16, True, depth=DW, pol=PW)
    a(f"""s_mov_b32 s33, {KX_OFF}
s_cmp_eq_u32 s27, {ROLE_V}
s_cselect_b32 s33, {VX_OFF}, s33
s_cmp_eq_u32 s27, {ROLE_Q}
s_cselect_b32 s33, {QX_OFF}, s33
s_mul_i32 s22, s18, 12288
s_add_u32 s33, s33, s22
s_mul_i32 s22, s17, 3072
s_add_u32 s33, s33, s22
s_lshl_b32 s34, s27, 14
s_add_u32 s34, s34, s19
s_lshl_b32 s22, s18, 8
s_add_u32 s34, s34, s22
s_lshl_b32 s22, s17, 6
s_add_u32 s34, s34, s22
s_add_u32 s34, s34, {FLAG_OFF}
s_mov_b32 s20, 0
s_mov_b32 s21, 64""")
    proj_stream(a, "L_proj", HF_OFF, 33, 34)
    stamp(a, 0)
    if STAMP: a("s_memtime s[78:79]")
    stamp_flush(a, 2, row=65)
    if STAMP: a("s_waitcnt vmcnt(0)")
    a(f"""s_min_u32 s22, s27, 2                   ; K, V, Q -> 0, 1, 2
s_lshl_b32 s22, s22, 5
s_add_u32 s18, s18, s22
s_branch L_second""")

def role_oworker(a):
    a.label("L_ow")
    a("s_mul_i32 s32, s18, 245760")
    st = [dict(kind='O', srd=8, stride=1280, col=32, style='lin', row0=16 * q,
               dests=(lambda t, qq, q=q: ('a', (t * 6 + (q >> 1)) * 4 + 2 * (q & 1)))) for q in range(12)]
    loader(a, st, 0, 16, True, depth=DW, pol=PW)
    flag_addr(a, 34, ROLE_O, 18, 17)
    flag_addr(a, 35, ROLE_V, 18)
    a(f"""v_lshlrev_b32 v4, 4, v1                 ; lane*16
v_and_b32 v5, 3, v1
v_lshlrev_b32 v5, 6, v5
v_mov_b32 v6, 0
s_mul_i32 s36, s18, 12288
s_mul_i32 s22, s17, 3072
s_add_u32 s36, s36, s22
s_add_u32 s36, s36, {VX_OFF}
s_lshl_b32 s37, s18, 10
s_mul_i32 s22, s17, {10*32768}
s_add_u32 s37, s37, s22
s_add_u32 s37, s37, {U_OFF}
s_mul_i32 s38, s17, 3072
s_mov_b32 s28, 0
s_mov_b32 s29, 12288
s_mov_b32 s20, 0
s_mov_b32 s39, 0""")
    def waitflag(lbl, need_s):
        a.label(lbl)
        a(f"buffer_load_dword v9, v5, s[4:7], s35 offen sc1")
        spin_guard(a, 39)
        a(f"s_waitcnt vmcnt(0)\nv_cmp_gt_u32 vcc, s{need_s}, v9\ns_cbranch_vccnz {lbl}")
    def dma(seg_s, slot_s):
        a(f"s_min_u32 s23, s{seg_s}, 63\ns_mul_i32 s23, s23, {32*12288}\ns_add_u32 s23, s23, s36\ns_add_u32 m0, s38, s{slot_s}")
        for i in range(3): a(f"buffer_load_dwordx4 v4, s[4:7], s23 offen offset:{i*1024} sc1 lds")
    a("s_mov_b32 s31, 1")
    waitflag("L_ow_w0", 31)
    a("s_mov_b32 s31, 0\ns_mov_b32 s30, 0"); dma(31, 30)
    a("s_waitcnt vmcnt(0)\ns_barrier")
    AS = (16, 64)
    ACC = 112; OB = 128
    def aread(A0, ad):
        return [f"ds_read2_b64 v[{A0+8*p+4*tt}:{A0+8*p+4*tt+3}], v{ad+p} offset0:{tt} offset1:{128+tt}" for p in range(6) for tt in range(2)]
    AD = 140
    for p in range(6): a(f"v_add_u32 v{AD+p}, {2048*p}, v4")
    for x in aread(AS[0], AD): a(x)
    a("s_mov_b32 s43, s37")
    def epi(t):
        acc = ACC + 8 * (t % 2); o = OB + 4 * (t % 2)
        return [f"v_cvt_pk_bf16_f32 v{o}, v{acc}, v{acc+1}", f"v_cvt_pk_bf16_f32 v{o+1}, v{acc+4}, v{acc+5}",
                f"v_cvt_pk_bf16_f32 v{o+2}, v{acc+2}, v{acc+3}", f"v_cvt_pk_bf16_f32 v{o+3}, v{acc+6}, v{acc+7}",
                f"buffer_store_dwordx4 v[{o}:{o+3}], v4, s[4:7], s43 offen sc1", "s_add_u32 s43, s43, 32768"]
    def emit(par, first, tag=""):
        A0 = AS[par]
        slots = []
        for t in range(10):
            acc = ACC + 8 * (t % 2)
            for p in range(6):
                for tt in range(2):
                    c = "0" if p == 0 else f"v[{acc+4*tt}:{acc+4*tt+3}]"
                    slots.append([f"v_mfma_f32_16x16x32_bf16 v[{acc+4*tt}:{acc+4*tt+3}], v[{A0+8*p+4*tt}:{A0+8*p+4*tt+3}], a[{(t*6+p)*4}:{(t*6+p)*4+3}], {c}", []])
        for t in range(10):
            if t == 0 and first: continue
            e = epi((t - 1) % 10)
            for jj in range(4): slots[12*t + 2 + jj][1].append(e[jj])
            slots[12*t + 7][1].append(e[4]); slots[12*t + 8][1].append(e[5])
        if not first: slots[9][1].append(f"s_add_u32 s43, s43, {30*32768}")
        slots[10][1] += ["buffer_load_dword v9, v5, s[4:7], s35 offen sc1", "s_add_u32 s31, s20, 3", "s_min_u32 s31, s31, 64"]
        slots[58][1] += ["v_mov_b32 v8, s20"]
        for p in range(6): slots[48 + p][1].append(f"v_add_u32 v{AD+p}, s{46+p}, v4")
        for p in range(6): slots[36 + p][1].append(f"s_add_u32 s{46+p}, s28, {2048*p}")
        lbl = f"L_ow_x{par}{int(first)}{tag}"
        def out(lo, hi):
            for mf, fl in slots[lo:hi]:
                a(mf)
                for f in sorted(fl, key=lambda x: 1 if x.startswith('v_') else 0): a(f)
        out(0, 60)
        a("s_waitcnt vmcnt(4)\ns_barrier")
        if not first: a("s_mov_b64 exec, 1\nbuffer_store_dword v8, v6, s[4:7], s34 offen sc1\ns_mov_b64 exec, -1")
        a(f"v_cmp_gt_u32 vcc, s31, v9\ns_cbranch_vccz {lbl}_go")
        waitflag(lbl, 31)
        a.label(lbl + "_go")
        a("s_add_u32 s30, s28, 12288\ns_cmp_eq_u32 s30, 36864\ns_cselect_b32 s30, 0, s30\ns_add_u32 s31, s20, 2")
        for k, x in enumerate(aread(AS[1 - par], AD)): slots[72 + 3*k][1].insert(0, x)
        d = [f"s_min_u32 s23, s31, 63", f"s_mul_i32 s23, s23, {32*12288}", "s_add_u32 s23, s23, s36", "s_add_u32 m0, s38, s30"]
        slots[60][1] += d[:2]; slots[61][1] += d[2:]
        for i in range(3): slots[(66, 69, 70)[i]][1].append(f"buffer_load_dwordx4 v4, s[4:7], s23 offen offset:{i*1024} sc1 lds")
        out(60, 120)
        a("s_mov_b32 s28, s30\ns_add_u32 s20, s20, 1\ns_waitcnt lgkmcnt(0)")
    for t in range(10):
        acc = ACC + 8 * (t % 2)
        for p in range(6):
            for tt in range(2):
                c = "0" if p == 0 else f"v[{acc+4*tt}:{acc+4*tt+3}]"
                a(f"v_mfma_f32_16x16x32_bf16 v[{acc+4*tt}:{acc+4*tt+3}], v[{AS[0]+8*p+4*tt}:{AS[0]+8*p+4*tt+3}], a[{(t*6+p)*4}:{(t*6+p)*4+3}], {c}")
                k = 2 * p + tt - 2
                if t > 0 and 0 <= k < 6: a(epi(t - 1)[k])
    for x in epi(9): a(x)
    a(f"""s_add_u32 s43, s43, {30*32768}
s_mov_b32 s20, 1
v_mov_b32 v8, 1
s_waitcnt vmcnt(0)
s_mov_b64 exec, 1
buffer_store_dword v8, v6, s[4:7], s34 offen sc1
s_mov_b64 exec, -1
s_mov_b32 s31, 3""")
    waitflag("L_ow_w1", 31)
    a("s_mov_b32 s31, 1\ns_mov_b32 s30, 12288"); dma(31, 30)
    a("s_mov_b32 s31, 2\ns_mov_b32 s30, 24576"); dma(31, 30)
    for p in range(6): a(f"v_add_u32 v{AD+p}, 12288, v{AD+p}")
    a("s_waitcnt vmcnt(3)\ns_barrier")
    for x in aread(AS[1], AD): a(x)
    a("s_mov_b32 s28, 24576\ns_waitcnt lgkmcnt(0)")
    emit(1, True)
    emit(0, False, "z")
    a.label("L_ow_loop")
    emit(1, False)
    a("s_cmp_eq_u32 s20, 64\ns_cbranch_scc1 L_ow_fin")
    emit(0, False)
    a("s_branch L_ow_loop")
    a.label("L_ow_fin")
    for x in epi(9): a(x)
    a("""s_waitcnt vmcnt(0)
v_mov_b32 v8, s20
s_mov_b64 exec, 1
buffer_store_dword v8, v6, s[4:7], s34 offen sc1
s_mov_b64 exec, -1
s_barrier""")
    stamp(a, 0)
    if STAMP: a("s_memtime s[78:79]")
    stamp_flush(a, 2, row=65)
    a("s_add_u32 s18, s18, 96\ns_branch L_second")

def remap(a, v, t):
    a(f"v_lshrrev_b32 v{t}, 13, v{v}\nv_and_b32 v{v}, 8191, v{v}\nv_lshl_add_u32 v{v}, v{t}, 14, v{v}")

def span_off(a, dst, step_s, plus, base, shift):
    a(f"s_add_u32 s{dst}, s{step_s}, {plus}\ns_lshl_b32 s{dst}, s{dst}, {shift}\ns_add_u32 s{dst}, s{dst}, {base}\ns_lshr_b32 s22, s{dst}, 8\ns_and_b32 s22, s22, 8192\ns_xor_b32 s22, s22, s19\ns_add_u32 s{dst}, s{dst}, s22")

def idx_reg(a, v):
    a(f"v_and_b32 v{v}, 1, v1\nv_cmp_eq_u32 vcc, 0, v{v}\nv_mov_b32 v{v}, 0xeeee\nv_mov_b32 v{v+1}, 0x4444\nv_cndmask_b32 v{v}, v{v}, v{v+1}, vcc")

def check(a, regs, acc):
    regs = list(regs)
    first = True
    while regs:
        if first:
            x = regs[:3]; regs = regs[3:]; a(f"v_max3_u32 v{acc}, v{x[0]}, v{x[1]}, v{x[2]}"); first = False
        elif len(regs) >= 2:
            x = regs[:2]; regs = regs[2:]; a(f"v_max3_u32 v{acc}, v{acc}, v{x[0]}, v{x[1]}")
        else:
            a(f"v_max_u32 v{acc}, v{acc}, v{regs[0]}"); regs = []

def ring_off(a, dst, plus):
    a(f"s_add_u32 s{dst}, s20, {plus}\ns_and_b32 s{dst}, s{dst}, 3\ns_lshl_b32 s{dst}, s{dst}, 17\ns_add_u32 s{dst}, s{dst}, s73")

def ring_setup(a):
    a(f"s_and_b32 s73, s16, 3\ns_lshl_b32 s73, s73, 19\ns_add_u32 s73, s73, {RING_OFF}")

MEMLDS = 6 * SLOT
def mem_poll_setup(a, vA):
    a(f"""s_mul_i32 s22, s17, 2560
v_lshlrev_b32 v{vA}, 4, v1
v_add_u32 v{vA}, s22, v{vA}
v_add_u32 v{vA+2}, {MEMLDS}, v{vA}
v_lshlrev_b32 v{vA+1}, 3, v1
v_add_u32 v{vA+1}, s22, v{vA+1}
v_add_u32 v{vA+3}, {MEMLDS}, v{vA+1}""")

def mem_poll(a, lbl, vA, P, T):
    if STAMP: a("s_mov_b32 s91, s39")
    stamp(a, 0)
    if STAMP: a("s_waitcnt lgkmcnt(0)")
    a.label(lbl)
    if os.environ.get('PSL'): a(f"s_sleep {os.environ['PSL']}")
    for i in range(2): a(f"buffer_load_dwordx4 v[{P+4*i}:{P+4*i+3}], v{vA}, s[4:7], s40 offen offset:{1024*i} sc1")
    a(f"buffer_load_dwordx2 v[{P+8}:{P+9}], v{vA+1}, s[4:7], s40 offen offset:2048 sc1")
    spin_guard(a, 39)
    a(f"""ds_write_b128 v{vA+2}, v[{P}:{P+3}]
v_max3_u32 v{T}, v{P}, v{P+1}, v{P+2}
ds_write_b128 v{vA+2}, v[{P+4}:{P+7}] offset:1024
v_max3_u32 v{T}, v{T}, v{P+3}, v{P+4}
v_max3_u32 v{T}, v{T}, v{P+5}, v{P+6}
ds_write_b64 v{vA+3}, v[{P+8}:{P+9}] offset:2048
v_max3_u32 v{T}, v{T}, v{P+7}, v{P+8}
v_max_u32 v{T}, v{T}, v{P+9}
v_cmp_eq_u32 vcc, s41, v{T}""")
    a(f"s_cbranch_vccnz {lbl}")
    stamp(a, 1)
    a("s_waitcnt lgkmcnt(0)\ns_barrier")

def emit_stream(a, slots):
    for mf, fl in slots:
        a(mf)
        fl = sorted(fl, key=lambda x: 1 if x.startswith('v_') else 0)
        for f in fl: a(f)

def role_R(a):
    a.label("L_R")
    ring_setup(a)
    a(f"""s_and_b32 s44, s16, 3                   ; die
s_lshl_b32 s45, s18, 2
s_add_u32 s45, s45, s17
v_lshrrev_b32 v14, 5, v1
v_mul_u32_u24 v14, 640, v14
v_and_b32 v15, 31, v1
v_lshl_add_u32 v4, v15, 4, v14
v_add_u32 v4, {RING_P}, v4
v_mul_u32_u24 v14, 1280, v2
v_lshl_add_u32 v8, v3, 3, v14
v_add_u32 v8, {RING_P + 512}, v8
s_lshl_b32 s23, s45, 11
s_add_u32 s23, s23, {RING_Y}
v_lshlrev_b32 v11, 4, v1
v_add_u32 v10, s23, v11                 ; Y offset
s_lshl_b32 s36, s45, 15
s_lshl_b32 s24, s44, 13
s_add_u32 s36, s36, s24
s_add_u32 s36, s36, {U_OFF}
s_mul_i32 s24, s45, 6554
s_lshr_b32 s24, s24, 16
s_lshl_b32 s24, s24, 6
s_lshl_b32 s22, s44, 11
s_add_u32 s24, s24, s22
v_and_b32 v12, 7, v1
v_lshlrev_b32 v12, 8, v12
v_add_u32 v12, s24, v12
s_add_u32 s35, s19, {FLAG_OFF + ROLE_O*FSTR}
s_mov_b32 s46, s19
s_lshl_b32 s22, s18, 14
s_add_u32 s46, s46, s22
s_lshl_b32 s22, s17, 11
s_add_u32 s46, s46, s22
s_add_u32 s46, s46, {PART_OFF}
v_lshlrev_b32 v14, 3, v1
s_lshl_b32 s22, s44, 9
v_add_u32 v18, s22, v14
v_xor_b32 v19, 512, v18
v_xor_b32 v28, 1024, v18
v_xor_b32 v29, 1536, v18
v_lshlrev_b32 v20, 6, v2
v_and_b32 v15, 1, v1
v_lshl_add_u32 v20, v15, 5, v20
v_bfe_u32 v14, v1, 1, 3
v_lshl_add_u32 v20, v14, 2, v20
s_lshl_b32 s22, s45, 8
v_add_u32 v20, s22, v20
v_cmp_eq_u32 vcc, 0, v15
v_mov_b32 v30, 0x03020706
v_mov_b32 v31, 0x05040100
v_cndmask_b32 v30, v30, v31, vcc
s_mov_b32 s41, {hex(SENT)}
s_mov_b32 s39, 0
s_mov_b32 s70, 0
s_mov_b32 s20, 0""")
    idx_reg(a, 16)
    a(f"""s_mul_i32 s22, s17, 1280
v_add_u32 v5, s22, v4
v_lshrrev_b32 v14, 5, v1
v_mul_u32_u24 v14, 640, v14
v_and_b32 v15, 31, v1
v_lshl_add_u32 v6, v15, 2, v14
v_add_u32 v6, s22, v6
v_add_u32 v6, {RING_P + 512}, v6
s_lshl_b32 s22, s17, 10
v_add_u32 v7, s22, v11
s_lshl_b32 s22, s17, 8
v_lshlrev_b32 v9, 2, v1
v_add_u32 v9, s22, v9
v_add_u32 v9, 4096, v9
v_mov_b32 v22, v11
v_lshlrev_b32 v23, 8, v2
v_lshl_add_u32 v23, v3, 3, v23
v_add_u32 v23, 4096, v23""")
    a("v_mov_b32 v21, s41\nv_mov_b32 v96, s41\nv_mov_b32 v97, s41\ns_cmp_lg_u32 s74, 0\ns_cbranch_scc1 L_R_safe")
    UB = 64; YB = 56; PB = 32; PM = 48; D = 24
    a.dup_begin()
    a.label("L_R_loop")
    a("s_add_u32 s31, s20, 1\ns_cmp_ge_u32 s70, s31\ns_cbranch_scc1 L_R_fok")
    a.label("L_R_fl")
    a("buffer_load_dword v13, v12, s[4:7], s35 offen sc1")
    spin_guard(a, 39)
    a("s_waitcnt vmcnt(0)")
    dpp8(a, "v_min_u32", 13)
    a("v_readfirstlane_b32 s70, v13\ns_nop 0\ns_cmp_lt_u32 s70, s31\ns_cbranch_scc1 L_R_fl")
    a.label("L_R_fok")
    a(f"s_mul_i32 s23, s20, {40*32768}\ns_add_u32 s23, s23, s36\ns_add_u32 s24, s23, 4096")
    for i in range(8):
        a(f"buffer_load_dwordx4 v[{UB+4*i}:{UB+4*i+3}], v11, s[4:7], s{23 + i//4} offen offset:{(i%4)*1024} sc1")
    ring_off(a, 43, 2)
    a(f"""buffer_store_dword v21, v20, s[4:7], s43 offen @loc
s_add_u32 s42, s20, 2
s_and_b32 s42, s42, 3
s_lshl_b32 s42, s42, 18
s_add_u32 s42, s42, s46
buffer_store_dwordx2 v[96:97], v18, s[4:7], s42 offen sc1
s_xor_b32 s42, s42, {2 << 18}""")
    ring_off(a, 40, 0); ring_off(a, 43, 1)
    a("s_waitcnt vmcnt(0)")
    stamp(a, 0)
    if STAMP: a("s_waitcnt lgkmcnt(0)")
    if os.environ.get('RCOOP', '1') == '1':
        a(f"v_mov_b64 v[{D}:{D+1}], 0\nv_mov_b64 v[{D+2}:{D+3}], 0")
        def ppass():
            a(f"buffer_load_dwordx4 v[{PB}:{PB+3}], v5, s[4:7], s40 offen sc1\nbuffer_load_dword v{PB+4}, v6, s[4:7], s40 offen sc1")
        def pcheck():
            a(f"""ds_write_b128 v7, v[{PB}:{PB+3}]
v_max3_u32 v15, v{PB}, v{PB+1}, v{PB+2}
ds_write_b32 v9, v{PB+4}
v_max3_u32 v15, v15, v{PB+3}, v{PB+4}""")
        a.label("L_R_pollY")
        for i in range(2): a(f"buffer_load_dwordx4 v[{YB+4*i}:{YB+4*i+3}], v10, s[4:7], s40 offen offset:{i*1024} sc1")
        ppass()
        spin_guard(a, 39)
        check(a, range(YB, YB + 8), 14)
        a("v_cmp_eq_u32 vcc, s41, v14\ns_cbranch_vccnz L_R_pollY")
        stamp(a, 1)
        pcheck()
        a("v_cmp_eq_u32 vcc, s41, v15\ns_cbranch_vccz L_R_pok")
        a.label("L_R_pollP")
        ppass()
        spin_guard(a, 39)
        pcheck()
        a("v_cmp_eq_u32 vcc, s41, v15\ns_cbranch_vccnz L_R_pollP")
        a.label("L_R_pok")
        stamp(a, 2)
        a("s_waitcnt lgkmcnt(0)\ns_barrier")
        for m in range(4): a(f"ds_read_b128 v[{PB+4*m}:{PB+4*m+3}], v22 offset:{1024*m}")
        a(f"ds_read2_b64 v[{PM}:{PM+3}], v23 offset0:0 offset1:16")
        for m in range(4): a(f"v_smfmac_f32_16x16x64_bf16 v[{D}:{D+3}], v[{PB+4*m}:{PB+4*m+3}], v[{UB+8*m}:{UB+8*m+7}], v16")
        a(f"v_smfmac_f32_16x16x64_bf16 v[{D}:{D+3}], v[{PM}:{PM+3}], v[{YB}:{YB+7}], v16")
    else:
        a.label("L_R_pollY")
        for i in range(2): a(f"buffer_load_dwordx4 v[{YB+4*i}:{YB+4*i+3}], v10, s[4:7], s40 offen offset:{i*1024} sc1")
        spin_guard(a, 39)
        check(a, range(YB, YB + 8), 14)
        a("v_cmp_eq_u32 vcc, s41, v14\ns_cbranch_vccnz L_R_pollY")
        stamp(a, 1)
        if STAMP: a("s_waitcnt lgkmcnt(0)")
        a.label("L_R_pollP")
        for i in range(2): a(f"buffer_load_dwordx2 v[{PM+2*i}:{PM+2*i+1}], v8, s[4:7], s40 offen offset:{640*i} sc1")
        for i in range(4): a(f"buffer_load_dwordx4 v[{PB+4*i}:{PB+4*i+3}], v4, s[4:7], s40 offen offset:{1280*i} sc1")
        spin_guard(a, 39)
        a(f"v_mov_b64 v[{D}:{D+1}], 0\nv_mov_b64 v[{D+2}:{D+3}], 0")
        a(f"v_smfmac_f32_16x16x64_bf16 v[{D}:{D+3}], v[{PM}:{PM+3}], v[{YB}:{YB+7}], v16")
        a(f"v_max3_u32 v14, v{PM}, v{PM+1}, v{PM+2}\nv_max_u32 v14, v14, v{PM+3}")
        for m in range(4):
            a(f"v_smfmac_f32_16x16x64_bf16 v[{D}:{D+3}], v[{PB+4*m}:{PB+4*m+3}], v[{UB+8*m}:{UB+8*m+7}], v16")
            a(f"v_max3_u32 v14, v14, v{PB+4*m}, v{PB+4*m+1}\nv_max3_u32 v14, v14, v{PB+4*m+2}, v{PB+4*m+3}")
        a("v_cmp_eq_u32 vcc, s41, v14\ns_cbranch_vccnz L_R_pollP")
        stamp(a, 2)
    a(f"""v_add_f32 v{D}, v{D}, v{D+1}
v_add_f32 v{D+1}, v{D+2}, v{D+3}
buffer_store_dwordx2 v[{D}:{D+1}], v18, s[4:7], s42 offen sc1""")
    stamp(a, 5)
    if STAMP: a("s_mov_b32 s91, s39")
    xw = os.environ.get('XW', 's6')
    if xw.startswith('s'): a(f"s_sleep {xw[1:]}")
    elif xw: a(f"s_waitcnt vmcnt({xw})")
    a.label("L_R_pollX")
    for x, v in enumerate((19, 28, 29)): a(f"buffer_load_dwordx2 v[{32+2*x}:{33+2*x}], v{v}, s[4:7], s42 offen sc1")
    spin_guard(a, 39)
    a(f"""v_pk_add_f32 v[40:41], v[{D}:{D+1}], v[32:33]
v_max3_u32 v14, v32, v33, v34
v_pk_add_f32 v[42:43], v[34:35], v[36:37]
v_max3_u32 v15, v35, v36, v37
v_pk_add_f32 v[40:41], v[40:41], v[42:43]
v_cvt_pk_bf16_f32 v40, v40, v41
v_max_u32 v14, v14, v15
v_cmp_eq_u32 vcc, s41, v14
v_mov_b32_dpp v41, v40 quad_perm:[1,0,3,2] row_mask:0xf bank_mask:0xf
v_perm_b32 v40, v41, v40, v30
s_cbranch_vccnz L_R_pollX
buffer_store_dword v40, v20, s[4:7], s43 offen @loc""")
    stamp(a, 3)
    a("s_barrier")
    if STAMP: a("s_sub_u32 s84, s39, s91")
    stamp_flush(a, 6, row_s=20)
    a(f"""s_add_u32 s20, s20, 1
s_cmp_lt_u32 s20, 63
s_cbranch_scc1 L_R_loop
s_endpgm""")
    a.dup_end("L_R_safe")

def role_V(a):
    a.label("L_V")
    def wv(c, t):
        f = c * 3 + t
        return ('a', 240 + 8 * f) if f < 2 else ('v', 128 + 8 * (f - 2))
    a("s_mul_i32 s32, s18, 384\ns_mul_i32 s33, s18, 245760")
    st = [dict(kind='O', srd=12, stride=1280, col=33, style='nat', row0=64 * (q >> 2) + 32 * ((q >> 1) & 1) + 4 * (q & 1),
               dests=(lambda t, qq, q=q: ('a', (t * 3 + (q >> 2)) * 8 + 2 * (q & 3)))) for q in range(12)]
    sv = w_stages(8, 12288, 32, 'sp', lambda c, t, q: (wv(c, t)[0], wv(c, t)[1] + 2 * q), resident=(6, 7, 8, 9))
    st = [x for c in range(6) for x in (st[2*c], sv[c], st[2*c+1])] + sv[6:]
    aW = loader(a, st, 0, 40, True, depth=DA, pol=PA, needpar=True)
    a("s_mul_i32 s22, s17, 6144\nv_lshlrev_b32 v4, 4, v1\nv_add_u32 v4, s22, v4\nv_add_u32 v5, 49152, v4")
    mem_poll_setup(a, 10)
    idx_reg(a, 16)
    VIMG = 4 * SLOT
    a(f"""v_lshlrev_b32 v18, 4, v1
v_add_u32 v18, {MEMLDS}, v18
s_mul_i32 s22, s17, 768
v_lshlrev_b32 v19, 6, v2                ; rows 2g (+32B: 2g+1)
v_bfe_u32 v15, v1, 1, 1
v_lshl_add_u32 v19, v15, 4, v19
v_bfe_u32 v15, v1, 2, 2
v_lshl_add_u32 v19, v15, 2, v19
v_and_b32 v15, 1, v1
v_lshl_add_u32 v19, v15, 1, v19
v_add_u32 v19, s22, v19
v_add_u32 v19, {VIMG}, v19
v_lshlrev_b32 v20, 4, v1
v_add_u32 v20, {VIMG}, v20
v_mov_b32 v15, v2
s_mul_i32 s22, s17, 10
v_add_u32 v15, s22, v15
v_lshlrev_b32 v21, 11, v15              ; ct*2K
s_and_b32 s22, s18, 7
s_lshl_b32 s22, s22, 8
v_add_u32 v21, s22, v21
v_lshl_add_u32 v21, v3, 4, v21
s_mov_b32 s41, {hex(SENT)}
s_mov_b32 s39, 0
s_mov_b32 s20, 0""")
    M = 24; ACC = 64; WIN = 80; VA = 80; P = 24; YA = 24
    for j in range(4): a(f"v_mov_b32 v{124+j}, s41")
    ring_setup(a)
    flag_addr(a, 35, ROLE_T, 18, 17)
    a(f"""s_lshr_b32 s44, s18, 3
s_mul_i32 s44, s44, 81920
s_add_u32 s44, s44, {Y_OFF}
v_mov_b32 v22, 0
s_cmp_lg_u32 s74, 0
s_cbranch_scc1 L_V_safe""")
    a.dup_begin()
    def winread(c, t, w):
        off = (c - 6) * SLOT + t * 2048
        base = 4
        if off >= 49152: base = 5; off -= 49152
        return [f"ds_read_b128 v[{WIN+8*w+4*hh}:{WIN+8*w+4*hh+3}], v{base} offset:{off + hh*1024}" for hh in range(2)]
    a.label("L_V_loop")
    ring_off(a, 40, 0)
    a(f"s_add_u32 s42, s40, {RING_Y}\nv_mov_b32 v23, s20")
    for j in range(4):
        for x in winread(6 + j, 0, j): a(x)
    for j in range(0, 12, 2): a(f"v_mov_b64 v[{ACC+j}:{ACC+j+1}], 0")
    a("s_waitcnt lgkmcnt(0)")
    mem_poll(a, "L_V_poll", 10, P, 15)
    order = [6, 0, 7, 1, 2, 8, 3, 9, 4, 5]
    for c in order: a(f"ds_read_b128 v[{M+4*c}:{M+4*c+3}], v18 offset:{c*1024}")
    def post_v(t):
        d = ACC + 4 * t
        return [f"v_add_f32 v{d}, v{d}, v{d+1}", f"v_add_f32 v{d+2}, v{d+2}, v{d+3}", f"v_cvt_pk_bf16_f32 v{d}, v{d}, v{d+2}",
                f"ds_write_b16 v19, v{d} offset:{t*256}", f"ds_write_b16_d16_hi v19, v{d} offset:{t*256+32}"]
    slots = []
    for t in range(3):
        d = ACC + 4 * t
        for n, c in enumerate(order):
            if c >= 6: src = f"v[{WIN+8*(c-6)}:{WIN+8*(c-6)+7}]"
            else: src = R(*wv(c, t), 8)
            slots.append((f"v_smfmac_f32_16x16x64_bf16 v[{d}:{d+3}], v[{M+4*c}:{M+4*c+3}], {src}, v16", []))
    for t in range(2):
        for n, c in enumerate(order):
            if c >= 6:
                r = winread(c, t + 1, c - 6)
                slots[10*t + n][1].append(r[0]); slots[10*t + n + 1][1].append(r[1])
    for t in (1, 2):
        for j, x in enumerate(post_v(t - 1)): slots[10*t + (2, 3, 5, 9, 9)[j]][1].append(x)
    slots[27][1].extend(["s_mov_b64 exec, 1", "buffer_store_dword v23, v22, s[4:7], s35 offen sc1", "s_mov_b64 exec, -1"])
    emit_stream(a, slots)
    for j in range(0, 8, 2): a(f"v_mov_b64 v[{YA+j}:{YA+j+1}], 0")
    for x in post_v(2): a(x)
    for j in range(8, 40, 2): a(f"v_mov_b64 v[{YA+j}:{YA+j+1}], 0")
    stamp(a, 2)
    a("s_waitcnt lgkmcnt(0)\ns_barrier")
    for c in range(3): a(f"ds_read_b128 v[{VA+4*c}:{VA+4*c+3}], v20 offset:{c*1024}")
    YO = 112
    def post_y(t):
        d = YA + 4 * t
        return [f"v_add_f32 v{d}, v{d}, v{d+1}", f"v_add_f32 v{d+2}, v{d+2}, v{d+3}", f"v_cvt_pk_bf16_f32 v{YO+t}, v{d}, v{d+2}"]
    def xpose(gp):
        o = YO + 4 * gp
        return [f"v_permlane32_swap_b32 v{o}, v{o+2}", f"v_permlane32_swap_b32 v{o+1}, v{o+3}",
                f"v_permlane16_swap_b32 v{o}, v{o+1}", f"v_permlane16_swap_b32 v{o+2}, v{o+3}"]
    def store_y(gp):
        o = YO + 4 * gp
        return [f"s_add_u32 s26, s42, {gp*8192}", f"buffer_store_dwordx4 v[{o}:{o+3}], v21, s[4:7], s26 offen @loc"]
    slots = []
    for t in range(10):
        d = YA + 4 * t
        for c in range(3):
            slots.append((f"v_smfmac_f32_16x16x64_bf16 v[{d}:{d+3}], v[{VA+4*c}:{VA+4*c+3}], a[{(t*3+c)*8}:{(t*3+c)*8+7}], v16", []))
    for t in range(8):
        for j, x in enumerate(post_y(t)): slots[3*t + 4 + j][1].append(x)
    for j, x in enumerate(xpose(0)): slots[17 + j][1].append(x)
    slots[21][1].extend(store_y(0))
    p8 = post_y(8)
    slots[28][1].append(p8[0]); slots[29][1].append(p8[1])
    emit_stream(a, slots)
    for x in [p8[2]] + xpose(1) + store_y(1) + post_y(9) + xpose(2): a(x)
    st2 = store_y(2)
    for x in [st2[0], "s_mov_b32 exec_hi, 0", st2[1], "s_mov_b32 exec_hi, -1"]: a(x)
    stamp(a, 3)
    a(f"s_xor_b32 s42, s42, {2 << 17}\ns_mul_i32 s43, s20, {Y_STR}\ns_add_u32 s43, s43, s44")
    for gp in range(3):
        if gp == 2: a("s_mov_b32 exec_hi, 0")
        a(f"""s_add_u32 s26, s42, {gp*8192}
buffer_store_dwordx4 v[124:127], v21, s[4:7], s26 offen @loc
s_add_u32 s26, s43, {gp*8192}
buffer_store_dwordx4 v[{YO+4*gp}:{YO+4*gp+3}], v21, s[4:7], s26 offen sc1""")
    a("s_mov_b32 exec_hi, -1")
    stamp_flush(a, 4, row_s=20)
    a(f"""s_add_u32 s20, s20, 1
s_cmp_lt_u32 s20, 64
s_cbranch_scc1 L_V_loop
v_mov_b32 v23, s20
s_waitcnt vmcnt(0)
s_mov_b64 exec, 1
buffer_store_dword v23, v22, s[4:7], s35 offen sc1
s_endpgm""")
    a.dup_end("L_V_safe")

SCL = (192 ** -0.5) * math.log2(math.e)
def xlane(a, op, v, t, ror8):
    if ror8: a(f"{op}_dpp v{v}, v{v}, v{v} row_ror:8 row_mask:0xf bank_mask:0xf")
    a(f"v_mov_b32 v{t}, v{v}\nv_permlane16_swap_b32 v{t}, v{v}\n{op} v{v}, v{v}, v{t}")
    a(f"v_mov_b32 v{t}, v{v}\nv_permlane32_swap_b32 v{t}, v{v}\n{op} v{v}, v{v}, v{t}")

def dpp8(a, op, v):
    for m in ("quad_perm:[1,0,3,2]", "quad_perm:[2,3,0,1]", "row_half_mirror"):
        a(f"{op}_dpp v{v}, v{v}, v{v} {m} row_mask:0xf bank_mask:0xf")

def role_A(a):
    a.label("L_A")
    def fr(m, c, t):
        f = (c * 3 + t) if m == 0 else (24 + c * 3 + t)
        return ('a', 8 * f) if f < 32 else ('v', 152 + 8 * (f - 32))
    a("s_mul_i32 s32, s18, 384")
    sq = w_stages(8, 12288, 32, 'sp', lambda c, t, q: (fr(0, c, t)[0], fr(0, c, t)[1] + 2 * q), resident=(8, 9))
    sk = w_stages(12, 12288, 32, 'sp', lambda c, t, q: (fr(1, c, t)[0], fr(1, c, t)[1] + 2 * q), resident=(7, 8, 9))
    st = [x for c in range(10) for x in (sq[c], sk[c])]
    resid = {(1, 7): 0, (0, 8): 1, (1, 8): 2, (0, 9): 3, (1, 9): 4}
    aW = loader(a, st, 3, 40, True, depth=DA, pol=PA, needpar=True)
    a("s_mul_i32 s22, s17, 6144\nv_lshlrev_b32 v4, 4, v1\nv_add_u32 v4, s22, v4\nv_add_u32 v5, 61440, v4")
    mem_poll_setup(a, 10)
    idx_reg(a, 16)
    SP = MEMLDS + 10240
    SROW = 176; SWV = 8 * SROW
    XP = 5 * SLOT
    a(f"""v_lshlrev_b32 v30, 4, v1                ; lane*16
v_add_u32 v18, {MEMLDS}, v30
v_mul_u32_u24 v19, {SROW}, v3
v_lshl_add_u32 v19, v2, 4, v19
s_mul_i32 s22, s17, {SWV}
s_add_u32 s22, s22, {SP}
v_add_u32 v19, s22, v19
v_lshrrev_b32 v31, 3, v1                ; i
v_mul_u32_u24 v21, {SROW}, v31
v_add_u32 v21, {SP}, v21
v_and_b32 v15, 1, v1
v_lshl_add_u32 v21, v15, 4, v21
v_bfe_u32 v15, v1, 1, 1                 ; hf
v_lshl_add_u32 v20, v15, 6, v21
v_lshl_add_u32 v21, v15, 3, v21
v_add_u32 v21, 128, v21
v_bfe_u32 v15, v1, 2, 1
v_lshl_add_u32 v20, v15, 5, v20
s_and_b32 s22, s18, 7
s_mul_i32 s22, s22, 640
s_add_u32 s22, s22, {RING_P}
v_lshlrev_b32 v22, 8, v15
v_lshl_add_u32 v22, v31, 5, v22
v_and_b32 v15, 3, v1
v_lshl_add_u32 v22, v15, 3, v22
v_add_u32 v22, s22, v22
v_lshlrev_b32 v23, 4, v31
v_lshl_add_u32 v23, v15, 2, v23
v_add_u32 v23, s22, v23
v_add_u32 v23, 512, v23""")
    SEL = 6
    a(f"""v_lshlrev_b32 v15, 1, v2
v_sub_u32 v15, v3, v15                  ; n - 2g
v_mov_b32 v26, 0x3f80
v_mov_b32 v27, 0x3f800000""")
    for j in range(2):
        base = (0, 8)[j]
        a(f"""v_mov_b32 v{SEL+j}, 0
v_cmp_eq_u32 vcc, {base}, v15
v_cndmask_b32 v{SEL+j}, v{SEL+j}, v26, vcc
v_cmp_eq_u32 vcc, {base+1}, v15
v_cndmask_b32 v{SEL+j}, v{SEL+j}, v27, vcc""")
    a("v_lshlrev_b32 v15, 2, v2\nv_sub_u32 v15, v3, v15")
    for r in range(4): a(f"v_cmp_le_i32 s[{44+2*r}:{45+2*r}], {r}, v15")
    a("s_nop 4\ns_and_b32 s22, s17, 1\ns_cmp_eq_u32 s22, 1")
    for r in range(4):
        a(f"s_cselect_b64 s[{52+2*r}:{53+2*r}], s[{44+2*r}:{45+2*r}], 0\ns_cselect_b64 s[{44+2*r}:{45+2*r}], -1, s[{44+2*r}:{45+2*r}]")
    a(f"""s_mov_b32 s60, 0
s_mov_b32 s61, -1
s_mul_i32 s22, s17, 5120
s_add_u32 s22, s22, {XP}
v_add_u32 v17, s22, v30
s_and_b32 s22, s17, 1
s_lshl_b32 s22, s22, 11
s_add_u32 s22, s22, {XP}
v_add_u32 v0, s22, v30
s_mul_i32 s36, s18, 12288
s_mul_i32 s22, s17, 3072
s_add_u32 s36, s36, s22
s_and_b32 s22, s17, 1
s_lshl_b32 s37, s22, 15
s_lshl_b32 s23, s18, 10
s_add_u32 s37, s37, s23
s_add_u32 s37, s37, {PX_OFF}
s_lshl_b32 s38, s22, 13
s_lshl_b32 s23, s18, 8
s_add_u32 s38, s38, s23
s_add_u32 s38, s38, {PXM_OFF}
v_and_b32 v15, 1, v2
v_lshlrev_b32 v3, 4, v3
v_lshl_add_u32 v3, v15, 3, v3
v_and_b32 v2, 1, v1
v_mul_u32_u24 v2, {(ROLE_Q - ROLE_K) * FSTR}, v2
v_mov_b32 v1, v30
s_mov_b32 s62, {hex(f2u(SCL))}
s_mov_b32 s63, {hex(f2u(SCL))}
s_mov_b32 s64, 0xff800000
s_mov_b32 s65, {hex(f2u(-1e9 / (192 ** -0.5)))}
s_mov_b32 s66, 0x00ff00ff
s_mov_b32 s67, 0x00ff00ff
s_mov_b32 s68, 0x0f0f0f0f
s_mov_b32 s69, 0x0f0f0f0f
s_mov_b32 s70, 0
s_mov_b32 s41, {hex(SENT)}
s_mov_b32 s39, 0
s_mov_b32 s20, 0""")
    flag_addr(a, 35, ROLE_K, 18, 17)
    a(f"s_add_u32 s72, s35, {(ROLE_PX - ROLE_K) * FSTR}\nv_mov_b32 v8, s41\nv_mov_b32 v9, s41\nv_add_u32 v30, {2*SWV}, v21")
    X = 24; M = 32; ACC = 72; WIN = 88; KX = 104; KN = 116; QX = 128; S = 140
    P = M
    ring_setup(a)
    kxsrc = [0, 1, 4, 5, 2, 3, 6, 7, 8, 9, 10, 11]
    def winread(m, c, t, w):
        off = resid[(m, c)] * SLOT + t * 2048; base = 4
        if off + 1024 > 65535: base = 5; off -= 61440
        return [f"ds_read_b128 v[{WIN+8*w+4*hh}:{WIN+8*w+4*hh+3}], v{base} offset:{off + hh*1024}" for hh in range(2)]
    regs_ = []
    for c in range(6): regs_ += [(0, c), (1, c)]
    regs_ += [(1, 6), (0, 6), (0, 7)]
    lds_ = [(0, 8), (1, 8), (0, 9), (1, 9), (1, 7)]
    seq = []
    for i in range(5): seq += [lds_[i]] + regs_[3*i:3*i+3]
    ldsfr = [(m, c, t) for t in range(3) for (m, c) in lds_]
    def waitflags(lbl):
        a(f"s_cmp_ge_u32 s70, s31\ns_cbranch_scc1 {lbl}_ok")
        a.label(lbl)
        a("buffer_load_dword v15, v2, s[4:7], s35 offen sc1")
        spin_guard(a, 39)
        a(f"s_waitcnt vmcnt(0)\nv_readlane_b32 s70, v15, 0\nv_readlane_b32 s71, v15, 1\ns_nop 0\ns_min_u32 s70, s70, s71\ns_cmp_lt_u32 s70, s31\ns_cbranch_scc1 {lbl}")
        a.label(lbl + "_ok")
    if DIAG: a("s_memrealtime s[82:83]\ns_waitcnt lgkmcnt(0)")
    a("s_mov_b32 s31, 1")
    waitflags("L_A_f0")
    a(f"s_add_u32 s23, s36, {KX_OFF}")
    for t in range(3): a(f"buffer_load_dwordx4 v[{KN+4*t}:{KN+4*t+3}], v1, s[4:7], s23 offen offset:{t*1024} sc1")
    a("s_waitcnt vmcnt(0)\ns_cmp_lg_u32 s74, 0\ns_cbranch_scc1 L_A_safe")
    a.dup_begin()
    a.label("L_A_loop")
    a("s_add_u32 s31, s20, 2\ns_min_u32 s31, s31, 64")
    waitflags("L_A_fl")
    for j in range(0, 12, 2): a(f"v_mov_b64 v[{KX+j}:{KX+j+1}], v[{KN+kxsrc[j]}:{KN+kxsrc[j]+1}]")
    ring_off(a, 40, 0)
    a(f"""s_add_u32 s23, s20, 1
s_min_u32 s23, s23, 63
s_mul_i32 s23, s23, {32*12288}
s_add_u32 s23, s23, s36
s_add_u32 s42, s23, {KX_OFF}
s_mul_i32 s23, s20, {32*12288}
s_add_u32 s23, s23, s36
s_add_u32 s43, s23, {QX_OFF}""")
    for x in winread(*ldsfr[0], 0) + winread(*ldsfr[1], 1): a(x)
    for j in range(0, 16, 2): a(f"v_mov_b64 v[{ACC+j}:{ACC+j+1}], 0")
    a("s_waitcnt lgkmcnt(0)")
    mem_poll(a, "L_A_poll", 10, P, 15)
    corder = []
    for (m, c) in seq:
        if c not in corder: corder.append(c)
    mread = lambda c: f"ds_read_b128 v[{M+4*c}:{M+4*c+3}], v18 offset:{c*1024}"
    if STAMP: a("s_sub_u32 s86, s39, s91")
    if DIAG: a("s_cmp_lg_u32 s20, 1\ns_cbranch_scc1 L_dg1\ns_memrealtime s[78:79]\ns_waitcnt lgkmcnt(0)\nL_dg1:")
    for c in corder[:6]: a(mread(c))
    slots = []
    for t in range(3):
        dq = ACC + 8 * (t % 2)
        for n, (m, c) in enumerate(seq):
            d = dq + 4 * m
            if (m, c) in resid:
                k = 5 * t + n // 4; w = k % 2
                src = f"v[{WIN+8*w}:{WIN+8*w+7}]"
            else: src = R(*fr(m, c, t), 8)
            slots.append([f"v_smfmac_f32_16x16x64_bf16 v[{d}:{d+3}], v[{M+4*c}:{M+4*c+3}], {src}, v16", []])
    for k in range(13):
        r = winread(*ldsfr[k + 2], k % 2)
        slots[4*k][1].append(r[0]); slots[4*k + 1][1].append(r[1])
        slots[4*k + 7][1].append(f"@touch v[{WIN+8*(k%2)}:{WIN+8*(k%2)+7}]")
    for j, c in enumerate(corder[6:]): slots[(2, 3, 6, 10)[j]][1].insert(0, mread(c))
    for t in range(3):
        slots[(14, 18, 22)[t]][1].append(f"buffer_load_dwordx4 v[{QX+4*t}:{QX+4*t+3}], v1, s[4:7], s43 offen offset:{t*1024} sc1")
        slots[(26, 30, 34)[t]][1].append(f"buffer_load_dwordx4 v[{KN+4*t}:{KN+4*t+3}], v1, s[4:7], s42 offen offset:{t*1024} sc1")
    slots[36][1].append("v_mov_b32 v15, s20")
    slots[38][1] += ["s_mov_b64 exec, 1", "buffer_store_dword v15, v1, s[4:7], s72 offen sc1", "s_mov_b64 exec, -1"]
    def cvts(t):
        dq = ACC + 8 * (t % 2); dk = dq + 4
        return [f"v_add_f32 v{dk}, v{dk}, v{dk+1}", f"v_add_f32 v{dk+2}, v{dk+2}, v{dk+3}", f"v_cvt_pk_bf16_f32 v{dk+1}, v{dk}, v{dk+2}",
                f"v_add_f32 v{dq}, v{dq}, v{dq+1}", f"v_add_f32 v{dq+2}, v{dq+2}, v{dq+3}", f"v_cvt_pk_bf16_f32 v{dk}, v{dq}, v{dq+2}"]
    def tmf(t):
        dq = ACC + 8 * (t % 2); dk = dq + 4
        return f"v_mfma_f32_16x16x16_bf16 v[{dq}:{dq+3}], v[{dk}:{dk+1}], v[{SEL}:{SEL+1}], 0"
    def xcv(t):
        dq = ACC + 8 * (t % 2); x = X + 2 * t
        return [f"v_cvt_pk_bf16_f32 v{x}, v{dq}, v{dq+1}", f"v_cvt_pk_bf16_f32 v{x+1}, v{dq+2}, v{dq+3}"]
    extra = {}
    for t in (0, 1):
        b = 20 * (t + 1)
        for j, x in enumerate(cvts(t)): slots[b + j][1].append(x)
        extra[b + 6] = [tmf(t)]
        for j, x in enumerate(xcv(t)): slots[b + 9 + j][1].append(x)
    for j in range(4): slots[31 + j][1].append(f"v_mov_b64 v[{ACC+2*j}:{ACC+2*j+1}], 0")
    sc32 = [f"v_mfma_f32_16x16x32_bf16 v[{S+4*j}:{S+4*j+3}], v[{src}:{src+3}], v[{X}:{X+3}], 0" for j, src in enumerate((X, KX, KX + 4))]
    full = []
    for i, (mf, fl) in enumerate(slots):
        full.append((mf, fl))
        for e in extra.get(i, []): full.append((e, []))
    emit_stream(a, full)
    cv = cvts(2)
    for x in (cv[0], sc32[0], cv[1], cv[2], sc32[1], cv[3], cv[4], cv[5], tmf(2), sc32[2]): a(x)
    for x in xcv(2): a(x)
    for j, src in enumerate((X + 4, KX + 8, KX + 10)):
        a(f"v_mfma_f32_16x16x16_bf16 v[{S+4*j}:{S+4*j+3}], v[{src}:{src+1}], v[{X+4}:{X+5}], v[{S+4*j}:{S+4*j+3}]")
    a("s_mov_b64 exec, s[66:67]")
    for j in range(3): a(f"ds_write_b128 v19, v[{S+4*j}:{S+4*j+3}] offset:{(96, 0, 64)[j]}")
    stamp(a, 2)
    a("s_mov_b64 exec, -1\ns_cmp_lg_u32 s17, 0\ns_waitcnt lgkmcnt(0)\ns_barrier\ns_cbranch_scc1 L_A_x")
    T = M
    a(f"""ds_read_b128 v[{T}:{T+3}], v20
ds_read_b128 v[{T+8}:{T+11}], v20 offset:{SWV}
ds_read2_b64 v[{T+4}:{T+7}], v21 offset0:0 offset1:{SWV//8}
ds_read_b128 v[{T+12}:{T+15}], v20 offset:{2*SWV}
ds_read_b128 v[{T+16}:{T+19}], v20 offset:{3*SWV}
ds_read2_b64 v[{T+20}:{T+23}], v30 offset0:0 offset1:{SWV//8}
v_pk_add_f32 v[{T}:{T+1}], v[{T}:{T+1}], v[{T+8}:{T+9}]
v_pk_add_f32 v[{T+2}:{T+3}], v[{T+2}:{T+3}], v[{T+10}:{T+11}]
v_pk_add_f32 v[{T+4}:{T+5}], v[{T+4}:{T+5}], v[{T+6}:{T+7}]
v_pk_add_f32 v[{T}:{T+1}], v[{T}:{T+1}], v[{T+12}:{T+13}]
v_pk_add_f32 v[{T+2}:{T+3}], v[{T+2}:{T+3}], v[{T+14}:{T+15}]
v_pk_add_f32 v[{T}:{T+1}], v[{T}:{T+1}], v[{T+16}:{T+17}]
v_pk_add_f32 v[{T+2}:{T+3}], v[{T+2}:{T+3}], v[{T+18}:{T+19}]
v_pk_add_f32 v[{T+4}:{T+5}], v[{T+4}:{T+5}], v[{T+20}:{T+21}]
v_max3_f32 v{T+8}, v{T}, v{T+1}, v{T+2}
v_pk_add_f32 v[{T+4}:{T+5}], v[{T+4}:{T+5}], v[{T+22}:{T+23}]
v_max_f32 v{T+8}, v{T+8}, v{T+3}
v_max3_f32 v{T+8}, v{T+8}, v{T+4}, v{T+5}""")
    mx = T + 8
    dpp8(a, "v_max_f32", mx)
    a(f"v_mul_f32 v{mx}, s62, v{mx}")
    for j in (0, 2, 4): a(f"v_pk_fma_f32 v[{T+j}:{T+j+1}], v[{T+j}:{T+j+1}], s[62:63], v[{mx}:{mx+1}] op_sel_hi:[1,1,0] neg_lo:[0,0,1] neg_hi:[0,0,1]")
    for j in range(6): a(f"v_exp_f32 v{T+j}, v{T+j}")
    a(f"""v_pk_add_f32 v[{mx}:{mx+1}], v[{T}:{T+1}], v[{T+2}:{T+3}]
v_pk_fma_f32 v[{mx}:{mx+1}], v[{T+4}:{T+5}], 0.5, v[{mx}:{mx+1}] op_sel_hi:[1,0,1]
v_add_f32 v{mx}, v{mx}, v{mx+1}""")
    dpp8(a, "v_add_f32", mx)
    a(f"v_rcp_f32 v{mx}, v{mx}")
    a(f"""v_pk_mul_f32 v[{T}:{T+1}], v[{T}:{T+1}], v[{mx}:{mx+1}] op_sel_hi:[1,0]
v_pk_mul_f32 v[{T+2}:{T+3}], v[{T+2}:{T+3}], v[{mx}:{mx+1}] op_sel_hi:[1,0]
v_pk_mul_f32 v[{T+4}:{T+5}], v[{T+4}:{T+5}], v[{mx}:{mx+1}] op_sel_hi:[1,0]
v_cvt_pk_bf16_f32 v{T}, v{T}, v{T+1}
v_cvt_pk_bf16_f32 v{T+1}, v{T+2}, v{T+3}
buffer_store_dwordx2 v[{T}:{T+1}], v22, s[4:7], s40 offen @loc
v_cvt_pk_bf16_f32 v{T+2}, v{T+4}, v{T+5}
s_mov_b64 exec, s[68:69]
buffer_store_dword v{T+2}, v23, s[4:7], s40 offen @loc
s_mov_b64 exec, -1""")
    stamp(a, 3)
    if STAMP: a("s_waitcnt lgkmcnt(0)")
    a("s_waitcnt vmcnt(2)\ns_branch L_A_x1")
    a.label("L_A_x")
    XS = M + 12
    a("s_waitcnt vmcnt(0)")
    a.label("L_A_x1")
    a(f"v_swap_b32 v{QX+2}, v{QX+4}\nv_swap_b32 v{QX+3}, v{QX+5}")
    tl = ((0, 0), (1, 0), (0, 1), (1, 1), (2, 1))
    for j, (kt, qt) in enumerate(tl):
        src = (X, KX, KX + 4)[kt]
        a(f"v_mfma_f32_16x16x32_bf16 v[{XS+4*j}:{XS+4*j+3}], v[{src}:{src+3}], v[{QX+4*qt}:{QX+4*qt+3}], 0")
    for j, (kt, qt) in enumerate(tl):
        src = (X + 4, KX + 8, KX + 10)[kt]
        a(f"v_mfma_f32_16x16x16_bf16 v[{XS+4*j}:{XS+4*j+3}], v[{src}:{src+1}], v[{QX+8+2*qt}:{QX+9+2*qt}], v[{XS+4*j}:{XS+4*j+3}]")
    for j in range(5): a(f"ds_write_b128 v17, v[{XS+4*j}:{XS+4*j+3}] offset:{1024*j}")
    a("s_waitcnt lgkmcnt(0)\ns_barrier\ns_cmp_ge_u32 s17, 2\ns_cbranch_scc1 L_A_xs\ns_cmp_lg_u32 s17, 0\ns_cbranch_scc1 L_A_next")
    a(f"""s_xor_b32 s23, s40, {2 << 17}
buffer_store_dwordx2 v[8:9], v22, s[4:7], s23 offen @loc
s_mov_b64 exec, s[68:69]
buffer_store_dword v8, v23, s[4:7], s23 offen @loc
s_mov_b64 exec, -1
s_branch L_A_next""")
    a.label("L_A_xs")
    for w in range(3):
        for j in range(3): a(f"ds_read_b128 v[{T+12*w+4*j}:{T+12*w+4*j+3}], v0 offset:{5120*w + 1024*j}")
    for j in range(0, 12, 2): a(f"v_pk_add_f32 v[{T+j}:{T+j+1}], v[{T+j}:{T+j+1}], v[{T+12+j}:{T+13+j}]")
    for j in range(3): a(f"ds_read_b128 v[{T+12+4*j}:{T+12+4*j+3}], v0 offset:{5120*3 + 1024*j}")
    for j in range(0, 12, 2): a(f"v_pk_add_f32 v[{T+j}:{T+j+1}], v[{T+j}:{T+j+1}], v[{T+24+j}:{T+25+j}]")
    for j in range(0, 12, 2): a(f"v_pk_add_f32 v[{T+j}:{T+j+1}], v[{T+j}:{T+j+1}], v[{T+12+j}:{T+13+j}]")
    a(f"v_mov_b32 v{T+12}, s65\nv_mov_b32 v{T+13}, s64")
    for r in range(4):
        a(f"v_cndmask_b32 v{T+r}, v{T+13}, v{T+r}, s[60:61]")
        a(f"v_cndmask_b32 v{T+4+r}, v{T+12}, v{T+4+r}, s[{44+2*r}:{45+2*r}]")
        a(f"v_cndmask_b32 v{T+8+r}, v{T+12}, v{T+8+r}, s[{52+2*r}:{53+2*r}]")
    mx = T + 12; tm = T + 13
    a(f"v_max3_f32 v{mx}, v{T}, v{T+1}, v{T+2}")
    for j in range(3, 11, 2): a(f"v_max3_f32 v{mx}, v{mx}, v{T+j}, v{T+j+1}")
    a(f"v_max_f32 v{mx}, v{mx}, v{T+11}")
    xlane(a, "v_max_f32", mx, tm, False)
    a(f"v_mul_f32 v{mx}, s62, v{mx}")
    for j in range(0, 12, 2): a(f"v_pk_fma_f32 v[{T+j}:{T+j+1}], v[{T+j}:{T+j+1}], s[62:63], v[{mx}:{mx+1}] op_sel_hi:[1,1,0] neg_lo:[0,0,1] neg_hi:[0,0,1]")
    for j in range(12): a(f"v_exp_f32 v{T+j}, v{T+j}")
    a(f"v_pk_add_f32 v[{mx}:{mx+1}], v[{T}:{T+1}], v[{T+2}:{T+3}]")
    for j in range(4, 12, 2): a(f"v_pk_add_f32 v[{mx}:{mx+1}], v[{mx}:{mx+1}], v[{T+j}:{T+j+1}]")
    a(f"v_add_f32 v{mx}, v{mx}, v{mx+1}")
    xlane(a, "v_add_f32", mx, tm, False)
    a(f"v_rcp_f32 v{mx}, v{mx}")
    for j in range(0, 12, 2): a(f"v_pk_mul_f32 v[{T+j}:{T+j+1}], v[{T+j}:{T+j+1}], v[{mx}:{mx+1}] op_sel_hi:[1,0]")
    O = T + 16
    a(f"""v_cvt_pk_bf16_f32 v{O}, v{T+4}, v{T+5}
v_cvt_pk_bf16_f32 v{O+1}, v{T+8}, v{T+9}
v_cvt_pk_bf16_f32 v{O+2}, v{T+6}, v{T+7}
v_cvt_pk_bf16_f32 v{O+3}, v{T+10}, v{T+11}
v_cvt_pk_bf16_f32 v{O+4}, v{T}, v{T+1}
v_cvt_pk_bf16_f32 v{O+5}, v{T+2}, v{T+3}
s_lshl_b32 s23, s20, 16
s_add_u32 s23, s23, s37
buffer_store_dwordx4 v[{O}:{O+3}], v1, s[4:7], s23 offen sc1
s_lshl_b32 s23, s20, 14
s_add_u32 s23, s23, s38
s_mov_b32 exec_lo, 0
buffer_store_dwordx2 v[{O+4}:{O+5}], v3, s[4:7], s23 offen sc1
s_mov_b32 exec_lo, -1""")
    a.label("L_A_next")
    stamp(a, 4); stamp_flush(a, 6, row_s=20)
    a(f"""s_add_u32 s20, s20, 1
s_cmp_lt_u32 s20, 64
s_cbranch_scc1 L_A_loop
v_mov_b32 v15, s20
s_waitcnt vmcnt(0)
s_mov_b64 exec, 1
buffer_store_dword v15, v1, s[4:7], s72 offen sc1
s_mov_b64 exec, -1""")
    if DIAG:
        x = {'0': 76, '1': 78, '2': 80, '3': 82}[DIAG]
        a(f"""s_memrealtime s[80:81]
s_waitcnt lgkmcnt(0)
s_cmp_lg_u32 s16, 0
s_cbranch_scc1 L_exit
s_sub_u32 s84, s{x}, s76
s_lshl_b32 s84, s84, 2
s_add_u32 s84, s84, 30000
s_add_u32 s84, s84, s76
L_dg2:
s_memrealtime s[86:87]
s_waitcnt lgkmcnt(0)
s_sub_u32 s85, s86, s84
s_cmp_lt_i32 s85, 0
s_cbranch_scc1 L_dg2""")
    stamp(a, 0)
    if STAMP: a("s_memtime s[78:79]")
    stamp_flush(a, 2, row=65)
    a("s_endpgm")
    a.dup_end("L_A_safe")

def gen_main():
    a = Asm()
    a(f"""s_cmp_ge_u32 s2, 256
s_cbranch_scc1 L_exit""")
    if os.environ.get('NOPF') is None:
        a("""s_getpc_b64 s[8:9]
L_pc:
s_mov_b32 s10, L_codeend-L_pc
s_mov_b32 s11, 0x20000
s_lshr_b32 s3, s2, 3
s_lshl_b32 s3, s3, 12
v_lshlrev_b32 v1, 4, v0
buffer_load_dwordx4 v[248:251], v1, s[8:11], s3 offen""")
    a(f"""s_load_dwordx2 s[24:25], s[0:1], {K_WS}
s_load_dwordx2 s[96:97], s[0:1], {K_DBG}
s_load_dwordx8 s[68:75], s[0:1], {K_WQ}
""")
    a("""s_lshr_b32 s16, s2, 3
s_lshl_b32 s16, s16, 2
s_and_b32 s3, s2, 3
s_or_b32 s16, s16, s3
s_and_b32 s3, s2, 4
s_lshl_b32 s3, s3, 5
s_or_b32 s16, s16, s3""")
    a(f"""v_lshrrev_b32 v1, 6, v0
s_nop 0
v_readfirstlane_b32 s17, v1
s_waitcnt lgkmcnt(0)
s_mov_b32 s98, 256
s_mov_b32 s99, 0x20000
s_mov_b32 s39, 0""")
    stamp(a, 0)
    if DIAG: a("s_memrealtime s[76:77]\ns_waitcnt lgkmcnt(0)")
    srd(a, 4, 24, WS_BYTES)
    lane_decomp(a)
    WB = 640 * 6144 * 2
    import k_head
    a(f"""s_getreg_b32 s95, hwreg(HW_REG_XCC_ID, 0, 4)
s_and_b32 s95, s95, 7
s_mul_i32 s22, s95, s95
s_lshl_b32 s22, s22, 16
s_lshl_b32 s95, s95, 8
s_add_u32 s95, s95, s22
s_add_u32 s95, s95, 1
s_and_b32 s94, s16, 3
s_lshl_b32 s94, s94, 2
s_add_u32 s94, s94, {k_head.CNT_GRP}
s_cmp_ge_u32 s16, 104
s_cbranch_scc1 L_nogrp
s_cmp_lg_u32 s17, 0
s_cbranch_scc1 L_nogrp
v_mov_b32 v4, s95
s_mov_b64 exec, 1
buffer_atomic_add v4, off, s[96:99], s94
s_mov_b64 exec, -1""")
    a.label("L_nogrp")
    a(f"""s_and_b32 s18, s16, 3
s_lshl_b32 s18, s18, 3
s_bfe_u32 s22, s16, 0x30002
s_add_u32 s18, s18, s22
s_lshr_b32 s27, s16, 5                  ; 0 A, 1 V, 2-3 R/idle, 4 K, 5 V, 6 O, 7 Q
s_mov_b32 s10, {WB}
s_mov_b32 s11, 0x20000
s_mov_b32 s14, {WB}
s_mov_b32 s15, 0x20000
s_mov_b64 s[8:9], s[68:69]
s_mov_b64 s[12:13], s[70:71]
s_cmp_eq_u32 s27, 0
s_cbranch_scc1 L_A
s_mov_b64 s[8:9], s[72:73]
s_mov_b64 s[12:13], s[74:75]
s_cmp_eq_u32 s27, 1
s_cbranch_scc1 L_V
s_cmp_ge_u32 s27, 4
s_cbranch_scc1 L_work
s_sub_u32 s18, s16, 64""")
    import k_head
    k_head.role_head(a)
    a(f"""s_sub_u32 s50, s16, 104
s_mov_b32 s51, 24
s_mov_b32 s52, {T0}
s_sub_u32 s22, s16, 64
s_cmp_ge_u32 s22, 40
s_cbranch_scc1 L_T
s_lshr_b32 s18, s22, 2
s_branch L_R""")
    a.label("L_exit")
    a("s_endpgm")
    a.label("L_work")
    a(f"""s_sub_u32 s27, s27, 4
s_cmp_eq_u32 s27, {ROLE_V}
s_cbranch_scc1 L_proj
s_mov_b64 s[8:9], s[70:71]
s_cmp_eq_u32 s27, {ROLE_K}
s_cbranch_scc1 L_proj
s_mov_b64 s[8:9], s[68:69]
s_cmp_eq_u32 s27, {ROLE_Q}
s_cbranch_scc1 L_proj
s_mov_b64 s[8:9], s[74:75]
s_branch L_ow""")
    import k_tail
    role_R(a); k_tail.role_attn(a); role_proj(a); k_tail.second_role(a); k_tail.role_f1(a); k_tail.role_f2(a); role_oworker(a); role_V(a); role_A(a)
    a.label("L_codeend")
    return a.finish(), dict(vgpr=512, sgpr=100, acc=256)
```

```python
from asmgen import Asm
from layout import *
from k_prep import srd, f2u
import k_main as km
from k_main import loader, w_stages, R, SLOT, spin_guard, span_off, xlane, check, stamp, stamp_flush
import math, os

BACKOFF = 4
def wait_flags(a, lbl, voff, base_s, need_s, cache_s=None, tmp=15):
    if cache_s is not None: a(f"s_cmp_eq_u32 s{cache_s}, 64\ns_cbranch_scc1 {lbl}_ok")
    a(f"s_branch {lbl}_in")
    a.label(lbl)
    a(f"s_sleep {BACKOFF}")
    a.label(lbl + "_in")
    a(f"buffer_load_dword v{tmp}, v{voff}, s[4:7], s{base_s} offen sc1")
    spin_guard(a, 39)
    a(f"s_waitcnt vmcnt(0)\nv_cmp_gt_u32 vcc, s{need_s}, v{tmp}\ns_cbranch_vccnz {lbl}")
    if cache_s is not None:
        a(f"v_cmp_gt_u32 vcc, 64, v{tmp}\ns_cbranch_vccnz {lbl}_ok\ns_mov_b32 s{cache_s}, 64")
        a.label(lbl + "_ok")

def put_flag(a, val_s, addr_s, vz, vt):
    a(f"v_mov_b32 v{vt}, s{val_s}\ns_waitcnt vmcnt(0)\ns_mov_b64 exec, 1\nbuffer_store_dword v{vt}, v{vz}, s[4:7], s{addr_s} offen sc1\ns_mov_b64 exec, -1")

def role_attn(a):
    a.label("L_T")
    if os.environ.get('NOT'): a("s_endpgm")
    a(f"""s_load_dwordx2 s[24:25], s[0:1], {K_X}
s_waitcnt lgkmcnt(0)""")
    srd(a, 8, 24, 2048 * 1280)
    a(f"""v_lshlrev_b32 v4, 4, v1
v_mov_b32 v5, 0
s_lshl_b32 s22, s17, 13
s_add_u32 s28, s22, {U_OFF}
s_add_u32 s29, s22, {PX_OFF}
s_lshl_b32 s22, s17, 11
s_add_u32 s30, s22, {PXM_OFF}            ; PXM
s_mul_i32 s33, s17, 81920
s_add_u32 s33, s33, {Y_OFF}
v_and_b32 v6, 31, v1
v_lshlrev_b32 v6, 6, v6
v_add_u32 v6, s22, v6
v_and_b32 v7, 7, v1
v_lshlrev_b32 v7, 8, v7
v_bfe_u32 v15, v1, 3, 1
v_lshl_add_u32 v7, v15, 6, v7
v_add_u32 v7, s22, v7
v_add_u32 v15, {(ROLE_T - ROLE_PX)*FSTR - 128}, v6
v_cmp_gt_u32 vcc, 32, v1
v_cndmask_b32 v7, v7, v15, vcc
s_add_u32 s34, s19, {FLAG_OFF + ROLE_O*FSTR}
s_add_u32 s35, s19, {FLAG_OFF + ROLE_PX*FSTR + 128}
s_lshl_b32 s22, s17, 13
v_add_u32 v8, s22, v4
s_lshr_b32 s53, s17, 1
s_and_b32 s54, s17, 1
s_lshl_b32 s24, s53, 12
s_lshl_b32 s25, s54, 10
s_add_u32 s24, s24, s25
v_add_u32 v9, s24, v4
v_mul_u32_u24 v10, 1280, v3
v_lshl_add_u32 v10, v2, 3, v10
v_lshrrev_b32 v15, 1, v2
v_lshlrev_b32 v11, 8, v15
v_lshl_add_u32 v11, v3, 4, v11
v_and_b32 v15, 1, v2
v_lshl_add_u32 v11, v15, 3, v11
v_mul_u32_u24 v12, 160, v3
v_lshlrev_b32 v13, 4, v2
s_mov_b32 s39, 0
s_mov_b32 s46, 0""")
    def decode(t, seg, cg):
        a(f"s_mul_i32 s{seg}, s{t}, 6554\ns_lshr_b32 s{seg}, s{seg}, 16\ns_mul_i32 s22, s{seg}, 10\ns_sub_u32 s{cg}, s{t}, s22")
    ACC = 40; PB = 72; PM = 136; YB = 152; XR = 32
    def uops(ub):
        ops = []
        for ct in range(4):
            for k in range(8):
                r = 128 * ub + (k * 4 + ct) * 4
                ops.append((f"s_add_u32 s22, s49, {ct*32768 + k*1024}\n" if k % 4 == 0 else "") +
                           f"buffer_load_dwordx4 a[{r}:{r+3}], v4, s[4:7], s22 offen offset:{(k%4)*1024} sc1")
        return ops
    decode(50, 20, 32)
    a("s_add_u32 s31, s20, 1")
    wait_flags(a, "L_T_wu", 6, 34, 31)
    a(f"s_lshl_b32 s49, s50, 17\ns_add_u32 s49, s49, s28")
    for x in uops(0): a(x)
    a.label("L_T_loop")
    for ub in range(2):
        decode(50, 20, 32)
        a(f"""s_lshl_b32 s24, s32, 1
s_add_u32 s24, s24, s53                 ; kk
s_lshl_b32 s22, s24, 7
s_add_u32 s23, s22, {MOD_OFF + 2*2560}
buffer_load_dwordx4 v[16:19], v13, s[4:7], s23 offen sc1
buffer_load_dwordx4 v[20:23], v13, s[4:7], s23 offen offset:64 sc1
s_add_u32 s23, s22, {MOD_OFF + 4*2560}
buffer_load_dwordx4 v[24:27], v13, s[4:7], s23 offen sc1
buffer_load_dwordx4 v[28:31], v13, s[4:7], s23 offen offset:64 sc1
s_lshl_b32 s25, s20, 1
s_add_u32 s25, s25, s54
s_mul_i32 s47, s25, {16*1280}
s_lshl_b32 s22, s24, 6
s_add_u32 s47, s47, s22
buffer_load_dwordx2 v[{XR}:{XR+1}], v10, s[8:11], s47 offen
buffer_load_dwordx2 v[{XR+2}:{XR+3}], v10, s[8:11], s47 offen offset:32
s_mul_i32 s44, s25, 20
s_add_u32 s44, s44, s24
s_lshl_b32 s44, s44, 10
s_add_u32 s44, s44, {H2_OFF}
s_mul_i32 s45, s25, 2560
s_lshl_b32 s22, s24, 3
s_add_u32 s45, s45, s22
s_add_u32 s45, s45, {STAT_OFF}
s_lshl_b32 s36, s50, 6
s_lshl_b32 s22, s17, 2
s_add_u32 s36, s36, s22
s_add_u32 s36, s36, {X1F_OFF}
s_mul_i32 s42, s20, {Y_STR}
s_add_u32 s42, s42, s33
s_lshl_b32 s22, s32, 13
s_add_u32 s42, s42, s22
s_lshl_b32 s40, s20, 16
s_add_u32 s40, s40, s29
s_lshl_b32 s43, s20, 14
s_add_u32 s43, s43, s30
s_add_u32 s50, s50, s51""")
        decode(50, 31, 48)
        a("s_add_u32 s31, s31, 1\ns_min_u32 s31, s31, 64")
        wait_flags(a, f"L_T_wu{ub}", 6, 34, 31, cache_s=46)
        a("s_add_u32 s31, s20, 1")
        wait_flags(a, f"L_T_wp{ub}", 7, 35, 31)
        stamp(a, 0)
        for k in range(8):
            for qt in range(2):
                if k % 4 == 0: a(f"s_add_u32 s{22+qt}, s40, {qt*32768 + k*1024}")
                a(f"buffer_load_dwordx4 v[{PB+8*k+4*qt}:{PB+8*k+4*qt+3}], v4, s[4:7], s{22+qt} offen offset:{(k%4)*1024} sc1")
        for qt in range(2):
            a(f"s_add_u32 s22, s43, {qt*8192}")
            for k in range(2): a(f"buffer_load_dwordx4 v[{PM+8*k+4*qt}:{PM+8*k+4*qt+3}], v4, s[4:7], s22 offen offset:{k*1024} sc1")
        def yloads():
            for ct in range(4):
                a(f"s_add_u32 s22, s42, {ct*2048}")
                for k in range(2): a(f"buffer_load_dwordx4 v[{YB+16*k+4*ct}:{YB+16*k+4*ct+3}], v4, s[4:7], s22 offen offset:{k*1024} sc1")
        yloads()
        a(f"s_lshl_b32 s49, s50, 17\ns_add_u32 s49, s49, s28\ns_cmp_ge_u32 s50, s52\ns_cselect_b32 s49, 0xf0000000, s49")
        uo = uops(1 - ub)
        for k in range(8):
            for ct in range(4):
                for qt in range(2):
                    acc = ACC + 8 * ct + 4 * qt; r = 128 * ub + (k * 4 + ct) * 4
                    c = "0" if k == 0 else f"v[{acc}:{acc+3}]"
                    a(f"v_mfma_f32_16x16x32_bf16 v[{acc}:{acc+3}], a[{r}:{r+3}], v[{PB+8*k+4*qt}:{PB+8*k+4*qt+3}], {c}")
                    if k >= 4: a(uo.pop(0))
        for k in range(2):
            for ct in range(4):
                for qt in range(2):
                    acc = ACC + 8 * ct + 4 * qt
                    a(f"v_mfma_f32_16x16x32_bf16 v[{acc}:{acc+3}], v[{YB+16*k+4*ct}:{YB+16*k+4*ct+3}], v[{PM+8*k+4*qt}:{PM+8*k+4*qt+3}], v[{acc}:{acc+3}]")
        for j in range(8): a(f"ds_write_b128 v8, v[{ACC+4*j}:{ACC+4*j+3}] offset:{1024*j}")
        a("s_waitcnt lgkmcnt(0)\ns_barrier")
        T = 72
        for w in range(4):
            for u in range(2): a(f"ds_read_b128 v[{T+8*w+4*u}:{T+8*w+4*u+3}], v9 offset:{8192*w + 2048*u}")
        for j in range(0, 8, 2): a(f"v_pk_add_f32 v[{T+j}:{T+j+1}], v[{T+j}:{T+j+1}], v[{T+8+j}:{T+9+j}]")
        for j in range(0, 8, 2): a(f"v_pk_add_f32 v[{T+16+j}:{T+17+j}], v[{T+16+j}:{T+17+j}], v[{T+24+j}:{T+25+j}]")
        for j in range(0, 8, 2): a(f"v_pk_add_f32 v[{T+j}:{T+j+1}], v[{T+j}:{T+j+1}], v[{T+16+j}:{T+17+j}]")
        X = T + 8
        for j in range(4): a(f"v_lshlrev_b32 v{X+2*j}, 16, v{XR+j}\nv_and_b32 v{X+2*j+1}, 0xffff0000, v{XR+j}")
        for j in range(0, 8, 2): a(f"v_pk_fma_f32 v[{X+j}:{X+j+1}], v[{T+j}:{T+j+1}], v[{16+j}:{17+j}], v[{X+j}:{X+j+1}]")
        O = T + 16
        for j in range(4): a(f"v_cvt_pk_bf16_f32 v{O+j}, v{X+2*j}, v{X+2*j+1}")
        a(f"""s_add_u32 s22, s47, {X1_OFF}
buffer_store_dwordx2 v[{O}:{O+1}], v10, s[4:7], s22 offen sc1
buffer_store_dwordx2 v[{O+2}:{O+3}], v10, s[4:7], s22 offen offset:32 sc1""")
        for j in range(4): a(f"v_lshlrev_b32 v{X+2*j}, 16, v{O+j}\nv_and_b32 v{X+2*j+1}, 0xffff0000, v{O+j}")
        for j in range(0, 8, 2): a(f"v_pk_mul_f32 v[{T+j}:{T+j+1}], v[{X+j}:{X+j+1}], v[{24+j}:{25+j}]")
        for j in range(4): a(f"v_cvt_pk_bf16_f32 v{O+4+j}, v{T+2*j}, v{T+2*j+1}")
        a(f"""buffer_store_dwordx2 v[{O+4}:{O+5}], v11, s[4:7], s44 offen sc1
buffer_store_dwordx2 v[{O+6}:{O+7}], v11, s[4:7], s44 offen offset:512 sc1""")
        S = O + 8
        a(f"v_add_f32 v{S}, v{X}, v{X+1}\nv_mul_f32 v{S+1}, v{X}, v{X}")
        for j in range(2, 8): a(f"v_add_f32 v{S}, v{S}, v{X+j}")
        for j in range(1, 8): a(f"v_fmac_f32 v{S+1}, v{X+j}, v{X+j}")
        xlane(a, "v_add_f32", S, S + 2, False); xlane(a, "v_add_f32", S + 1, S + 3, False)
        a(f"""s_mov_b64 exec, 0xffff
buffer_store_dwordx2 v[{S}:{S+1}], v12, s[4:7], s45 offen sc1
s_mov_b64 exec, -1
v_xor_b32 v8, 32768, v8
v_xor_b32 v9, 32768, v9""")
        put_flag(a, 31, 36, 5, 15)
        stamp(a, 1); stamp_flush(a, 2, row_s=20)
        a("s_cmp_ge_u32 s50, s52\ns_cbranch_scc1 L_exit")
    a("s_branch L_T_loop")

def role_f1(a):
    a.label("L_F1")
    if os.environ.get('NOT'): a("s_endpgm")
    a(f"""s_load_dwordx4 s[28:31], s[0:1], {K_W1}      ; w1, b1
s_lshr_b32 s20, s18, 3
s_and_b32 s33, s18, 7
s_mul_i32 s32, s33, 384
s_waitcnt lgkmcnt(0)""")
    srd(a, 8, 28, 640 * 3072); srd(a, 12, 30, 3072)
    loader(a, w_stages(8, 3072, 32, 'nat', lambda c, t, q: ('a', ((2*c + (q >> 1)) * 3 + t) * 4 + 2 * (q & 1))), 0, 16)
    import k_head
    k_head.wait_count(a, "L_F1_m", 4, k_head.CNT_MOD2, 40)
    C = 104
    a(f"""s_mul_i32 s22, s17, 96
s_add_u32 s22, s22, s32
v_lshlrev_b32 v4, 3, v2""")
    for t in range(3): a(f"buffer_load_dwordx2 v[{96+2*t}:{97+2*t}], v4, s[12:15], s22 offen offset:{32*t}")
    a(f"v_lshlrev_b32 v4, 5, v2\ns_mov_b32 s22, {MOD_OFF + 4*2560}\ns_mov_b32 s23, {MOD_OFF + 3*2560}")
    for half in range(4):
        for k5 in range(5):
            kk = 5 * half + k5
            for tt in range(2):
                for hh in range(2):
                    r = 128 + 16 * k5 + 8 * tt + 4 * hh
                    a(f"buffer_load_dwordx4 v[{r}:{r+3}], v4, s[4:7], s{22+tt} offen offset:{kk*128 + 16*hh} sc1")
        for k5 in range(5):
            kk = 5 * half + k5
            for tt in range(2):
                r = 128 + 16 * k5 + 8 * tt; o = 16 + 8 * k5 + 4 * tt
                for j in range(4): a(f"v_cvt_pk_bf16_f32 v{o+j}, v{r+2*j}, v{r+2*j+1}")
                for t in range(3):
                    acc = C + 8 * t + 4 * tt
                    c = "0" if kk == 0 else f"v[{acc}:{acc+3}]"
                    a(f"v_mfma_f32_16x16x32_bf16 v[{acc}:{acc+3}], a[{(kk*3+t)*4}:{(kk*3+t)*4+3}], v[{o}:{o+3}], {c}")
    for t in range(3):
        a(f"""v_lshlrev_b32 v8, 16, v{96+2*t}
v_and_b32 v9, 0xffff0000, v{96+2*t}
v_lshlrev_b32 v10, 16, v{97+2*t}
v_and_b32 v11, 0xffff0000, v{97+2*t}""")
        for r in range(4): a(f"v_add_f32 v{C+8*t+4+r}, v{C+8*t+4+r}, v{8+r}")
    a(f"""v_lshlrev_b32 v4, 4, v1
s_mul_i32 s42, s17, 10240
v_add_u32 v5, s42, v4
v_mov_b32 v6, 0
v_mov_b32 v7, v4
v_min_u32 v15, 39, v1
v_lshrrev_b32 v8, 2, v15
v_lshlrev_b32 v8, 6, v8
v_and_b32 v15, 3, v15
v_lshl_add_u32 v8, v15, 2, v8
v_mul_u32_u24 v9, 160, v3
v_mul_u32_u24 v15, 40, v2
v_add_u32 v9, v9, v15
s_mul_i32 s36, s33, 12288
s_mul_i32 s22, s17, 3072
s_add_u32 s36, s36, s22
s_add_u32 s36, s36, {G_OFF}
s_lshl_b32 s34, s18, 8
s_lshl_b32 s22, s17, 6
s_add_u32 s34, s34, s22
s_add_u32 s34, s34, {FLAG_OFF + ROLE_G*FSTR}
s_mov_b32 s28, 0
s_mov_b32 s44, {hex(f2u(-2.0 * math.sqrt(2.0 / math.pi) * math.log2(math.e)))}
s_mov_b32 s45, {hex(f2u(-2.0 * math.sqrt(2.0 / math.pi) * math.log2(math.e) * 0.044715))}
s_mov_b32 s46, {hex(f2u(1.0 / 640))}
s_mov_b32 s39, 0""")
    B = 16; ACC = 48; ST = 128
    a.label("L_F1_loop")
    a(f"s_add_u32 s31, s20, 1\ns_mul_i32 s35, s20, 640\ns_add_u32 s35, s35, {X1F_OFF}")
    wait_flags(a, "L_F1_w", 8, 35, 31)
    stamp(a, 0)
    a(f"s_mul_i32 s23, s20, 40960\ns_add_u32 s23, s23, {H2_OFF}\ns_add_u32 s22, s42, s28")
    for i in range(10):
        if i % 4 == 0: a(f"s_add_u32 m0, s22, {i*1024}\ns_add_u32 s26, s23, {i*1024}")
        a(f"buffer_load_dwordx4 v5, s[4:7], s26 offen offset:{(i%4)*1024} sc1 lds")
    a(f"s_mul_i32 s23, s20, 5120\ns_add_u32 s23, s23, {STAT_OFF}")
    for tt in range(2):
        r = ST + 12 * tt
        a(f"""buffer_load_dwordx4 v[{r}:{r+3}], v9, s[4:7], s23 offen offset:{2560*tt} sc1
buffer_load_dwordx4 v[{r+4}:{r+7}], v9, s[4:7], s23 offen offset:{2560*tt+16} sc1
buffer_load_dwordx2 v[{r+8}:{r+9}], v9, s[4:7], s23 offen offset:{2560*tt+32} sc1""")
    a("s_waitcnt vmcnt(6)\ns_barrier")
    def rd(kk):
        b = B + 8 * (kk % 4)
        return [f"ds_read_b128 v[{b}:{b+3}], v7 offset:{kk*1024}", f"ds_read_b128 v[{b+4}:{b+7}], v7 offset:{(20+kk)*1024}"]
    for x in rd(0) + rd(1): a(x)
    slots = []
    for kk in range(20):
        b = B + 8 * (kk % 4)
        for tt in range(2):
            for t in range(3):
                d = ACC + 8 * t + 4 * tt
                c = "0" if kk == 0 else f"v[{d}:{d+3}]"
                slots.append([f"v_mfma_f32_16x16x32_bf16 v[{d}:{d+3}], a[{(kk*3+t)*4}:{(kk*3+t)*4+3}], v[{b+4*tt}:{b+4*tt+3}], {c}", []])
    for kk in range(18):
        r = rd(kk + 2); slots[6*kk][1].append(r[0]); slots[6*kk + 1][1].append(r[1])
    sops = []
    for tt in range(2):
        r = ST + 12 * tt
        for j in (2, 4, 6, 8): sops += [f"v_add_f32 v{r}, v{r}, v{r+j}", f"v_add_f32 v{r+1}, v{r+1}, v{r+j+1}"]
        for sw in ("v_permlane16_swap_b32", "v_permlane32_swap_b32"):
            sops += [f"v_mov_b32 v{r+2}, v{r}", f"v_mov_b32 v{r+3}, v{r+1}", f"{sw} v{r+2}, v{r}", f"{sw} v{r+3}, v{r+1}",
                     f"v_add_f32 v{r}, v{r}, v{r+2}", f"v_add_f32 v{r+1}, v{r+1}, v{r+3}"]
        sops += [f"v_mul_f32 v{r}, s46, v{r}", f"v_mul_f32 v{r+2}, v{r}, v{r}", f"v_fma_f32 v{r+1}, v{r+1}, s46, -v{r+2}",
                 f"v_max_f32 v{r+1}, 0, v{r+1}", f"v_add_f32 v{r+1}, {hex(f2u(1e-5))}, v{r+1}", f"v_rsq_f32 v{r+1}, v{r+1}"]
    for j, x in enumerate(sops): slots[20 + (j * 3) // 2][1].append(x)
    km.emit_stream(a, slots)
    a("v_mov_b32 v92, s44")
    a(f"s_mul_i32 s23, s20, {8*12288}\ns_add_u32 s23, s23, s36")
    for t in range(3):
        for tt in range(2):
            b = ACC + 8 * t + 4 * tt; mu = ST + 12 * tt
            for r in range(4): a(f"v_fma_f32 v{b+r}, -v{mu}, v{C+8*t+r}, v{b+r}")
            for r in range(4): a(f"v_fma_f32 v{b+r}, v{b+r}, v{mu+1}, v{C+8*t+4+r}")
            for r in (0, 2): a(f"v_pk_mul_f32 v[{88+r}:{89+r}], v[{b+r}:{b+r+1}], v[{b+r}:{b+r+1}]")
            for r in range(4): a(f"v_fma_f32 v{88+r}, v{88+r}, s45, v92")
            for r in (0, 2): a(f"v_pk_mul_f32 v[{88+r}:{89+r}], v[{88+r}:{89+r}], v[{b+r}:{b+r+1}]")
            for r in range(4): a(f"v_exp_f32 v{88+r}, v{88+r}")
            for r in (0, 2): a(f"v_pk_add_f32 v[{88+r}:{89+r}], v[{88+r}:{89+r}], 1.0 op_sel_hi:[1,0]")
            for r in range(4): a(f"v_rcp_f32 v{88+r}, v{88+r}")
            for r in (0, 2): a(f"v_pk_mul_f32 v[{b+r}:{b+r+1}], v[{b+r}:{b+r+1}], v[{88+r}:{89+r}]")
        o = 72 + 4 * t; acc = ACC + 8 * t
        for j in range(4): a(f"v_cvt_pk_bf16_f32 v{o+j}, v{acc+2*j}, v{acc+2*j+1}")
        a(f"buffer_store_dwordx4 v[{o}:{o+3}], v4, s[4:7], s23 offen offset:{t*1024} sc1")
    a("s_xor_b32 s28, s28, 65536\nv_xor_b32 v7, 0x10000, v7")
    put_flag(a, 31, 34, 6, 15)
    stamp(a, 1); stamp_flush(a, 2, row_s=20)
    a(f"""s_add_u32 s20, s20, {NF1}
s_cmp_lt_u32 s20, 64
s_cbranch_scc1 L_F1_loop
s_endpgm""")

def role_f2(a):
    a.label("L_F2")
    if os.environ.get('NOT'): a("s_endpgm")
    a(f"""s_load_dwordx4 s[28:31], s[0:1], {K_W2}      ; w2, b2
s_load_dwordx2 s[34:35], s[0:1], {K_OUT}
s_mul_i32 s20, s18, 6554
s_lshr_b32 s20, s20, 16
s_mul_i32 s3, s20, 10
s_sub_u32 s18, s18, s3
s_waitcnt lgkmcnt(0)""")
    srd(a, 8, 28, 1536 * 1280); srd(a, 12, 30, 1280); srd(a, 48, 34, 2048 * 1280)
    a(f"""v_lshrrev_b32 v8, 3, v1                 ; rho
v_and_b32 v9, 7, v1
v_lshrrev_b32 v10, 1, v9
v_lshrrev_b32 v11, 1, v8
v_xor_b32 v10, v10, v11
v_lshlrev_b32 v10, 5, v10
v_and_b32 v9, 1, v9
v_lshl_add_u32 v10, v9, 4, v10
v_mul_u32_u24 v8, 1280, v8
v_add_u32 v8, v8, v10
s_mul_i32 s32, s17, {384*1280}
s_lshl_b32 s22, s18, 7
s_add_u32 s32, s32, s22
s_mul_i32 s33, s17, 32768
v_bfe_u32 v9, v1, 2, 3
v_and_b32 v10, 3, v1
v_lshlrev_b32 v10, 3, v10
v_lshl_add_u32 v10, v9, 7, v10
v_lshrrev_b32 v9, 1, v9
v_lshrrev_b32 v11, 5, v1
v_lshl_add_u32 v10, v11, 10, v10
v_add_u32 v10, s33, v10
s_waitcnt vmcnt(0)""")
    for t in range(4): a(f"v_xor_b32 v11, {t}, v9\nv_lshl_add_u32 v{12+t}, v11, 5, v10")
    def piece(u):
        a(f"s_add_u32 m0, s33, {(u % 32)*1024}\ns_add_u32 s26, s32, {u*8*1280}\nbuffer_load_dwordx4 v8, s[8:11], s26 offen lds")
    for u in range(32): piece(u)
    issued = 32
    for q in range(24):
        a(f"s_waitcnt vmcnt({issued - 2*q - 2})")
        for t in range(4):
            r = ((q >> 1) * 4 + t) * 4 + 2 * (q & 1)
            a(f"ds_read_b64_tr_b16 a[{r}:{r+1}], v{12+t} offset:{((2*q) % 32)*1024}")
        if issued < 48:
            a("s_waitcnt lgkmcnt(0)")
            piece(issued); piece(issued + 1); issued += 2
    a("s_waitcnt lgkmcnt(0)\ns_barrier")
    import k_head
    k_head.wait_count(a, "L_F2_m", 4, k_head.CNT_MOD2, 40)
    a(f"""v_lshlrev_b32 v4, 4, v1
s_lshl_b32 s22, s18, 7
s_lshl_b32 s23, s17, 5
s_add_u32 s40, s22, s23
v_lshlrev_b32 v7, 3, v2
buffer_load_dwordx2 v[8:9], v7, s[12:15], s40 offen
v_lshlrev_b32 v7, 4, v2
s_lshl_b32 s22, s40, 1
s_add_u32 s22, s22, {MOD_OFF + 5*2560}
buffer_load_dwordx4 v[160:163], v7, s[4:7], s22 offen sc1
v_mul_u32_u24 v6, 1280, v3
v_lshl_add_u32 v6, v2, 3, v6
v_lshlrev_b32 v16, 16, v8
v_and_b32 v17, 0xffff0000, v8
v_lshlrev_b32 v18, 16, v9
v_and_b32 v19, 0xffff0000, v9
s_lshl_b32 s22, s17, 13
v_add_u32 v5, s22, v4
s_lshl_b32 s22, s17, 11
v_add_u32 v10, s22, v4
s_mul_i32 s41, s17, 24576
s_add_u32 s41, s41, {G_OFF}
v_and_b32 v11, 7, v1
v_lshlrev_b32 v11, 6, v11
s_lshl_b32 s22, s17, 9
v_add_u32 v11, s22, v11
s_mov_b32 s39, 0
s_waitcnt vmcnt(0)""")
    GB = 64; ACC = 24
    a.label("L_F2_loop")
    a(f"""s_add_u32 s31, s20, 1
s_mul_i32 s22, s20, {(65536 + NF1 - 1) // NF1}
s_lshr_b32 s22, s22, 16
s_mul_i32 s22, s22, {NF1}
s_sub_u32 s35, s20, s22
s_lshl_b32 s35, s35, 11
s_add_u32 s35, s35, {FLAG_OFF + ROLE_G*FSTR}""")
    wait_flags(a, "L_F2_w", 11, 35, 31)
    stamp(a, 0)
    a(f"s_mul_i32 s23, s20, {8*12288}\ns_add_u32 s23, s23, s41")
    for T in range(24):
        if T % 4 == 0: a(f"s_add_u32 s22, s23, {T*1024}")
        a(f"buffer_load_dwordx4 v[{GB+4*T}:{GB+4*T+3}], v4, s[4:7], s22 offen offset:{(T%4)*1024} sc1")
    a(f"""s_mul_i32 s23, s20, {32*1280}
s_add_u32 s42, s23, s40
s_add_u32 s43, s42, {16*1280}
s_add_u32 s22, s42, {X1_OFF}
buffer_load_dwordx2 v[20:21], v6, s[4:7], s22 offen sc1
s_add_u32 s22, s43, {X1_OFF}
buffer_load_dwordx2 v[22:23], v6, s[4:7], s22 offen sc1""")
    for p in range(12):
        b = GB + 8 * p
        a(f"v_swap_b32 v{b+2}, v{b+4}\nv_swap_b32 v{b+3}, v{b+5}")
        for t in range(4):
            for tt in range(2):
                acc = ACC + 8 * t + 4 * tt
                c = "0" if p == 0 else f"v[{acc}:{acc+3}]"
                a(f"v_mfma_f32_16x16x32_bf16 v[{acc}:{acc+3}], a[{(p*4+t)*4}:{(p*4+t)*4+3}], v[{b+4*tt}:{b+4*tt+3}], {c}")
    for j in range(8): a(f"ds_write_b128 v5, v[{ACC+4*j}:{ACC+4*j+3}] offset:{1024*j}")
    a("s_waitcnt lgkmcnt(0)\ns_barrier")
    for w in range(4):
        for tt in range(2): a(f"ds_read_b128 v[{64+8*w+4*tt}:{67+8*w+4*tt}], v10 offset:{8192*w + 1024*tt}")
    for j in range(0, 8, 2): a(f"v_pk_add_f32 v[{64+j}:{65+j}], v[{64+j}:{65+j}], v[{72+j}:{73+j}]\nv_pk_add_f32 v[{80+j}:{81+j}], v[{80+j}:{81+j}], v[{88+j}:{89+j}]")
    for j in range(0, 8, 2): a(f"v_pk_add_f32 v[{64+j}:{65+j}], v[{64+j}:{65+j}], v[{80+j}:{81+j}]")
    for tt in range(2):
        o = 64 + 4 * tt; x = 20 + 2 * tt
        for j in range(4): a(f"v_add_f32 v{o+j}, v{o+j}, v{16+j}")
        a(f"""v_lshlrev_b32 v72, 16, v{x}
v_and_b32 v73, 0xffff0000, v{x}
v_lshlrev_b32 v74, 16, v{x+1}
v_and_b32 v75, 0xffff0000, v{x+1}""")
        for j in range(4): a(f"v_fmac_f32 v{72+j}, v{o+j}, v{160+j}")
        a(f"""v_cvt_pk_bf16_f32 v{56+2*tt}, v72, v73
v_cvt_pk_bf16_f32 v{57+2*tt}, v74, v75
buffer_store_dwordx2 v[{56+2*tt}:{57+2*tt}], v6, s[48:51], s{42+tt} offen""")
    stamp(a, 1); stamp_flush(a, 2, row_s=20)
    a(f"""v_xor_b32 v5, 32768, v5
v_xor_b32 v10, 32768, v10
s_add_u32 s20, s20, {NF2}
s_cmp_lt_u32 s20, 64
s_cbranch_scc1 L_F2_loop
s_endpgm""")

def second_role(a):
    a.label("L_second")
    a(f"""s_cmp_lt_u32 s18, {8*NF1}
s_cbranch_scc1 L_F1
s_sub_u32 s18, s18, {8*NF1}
s_cmp_lt_u32 s18, {10*NF2}
s_cbranch_scc1 L_F2
s_add_u32 s50, s18, {T0 - 10*NF2}
s_mov_b32 s51, {128 - 8*NF1 - 10*NF2}
s_mov_b32 s52, 640
s_waitcnt vmcnt(0)""")
    import k_head
    k_head.wait_count(a, "L_T_m", 4, k_head.CNT_MOD2, 40)
    a("s_branch L_T")
```

```python
MB = 1 << 20
WS_BYTES = 256 * MB
MOD_OFF   = 0
MODP_OFF  = 0x4000
PAR_OFF   = 0x8000
FLAG_OFF  = 7 * MB + 0x90000
FLAG_BYTES = 8 * 16384
FSTR = 16384
X1F_OFF   = 0x30000
STAT_OFF  = 0x40000
HF_OFF    = 1 * MB
MP_OFF    = 4 * MB
MP_STR    = 65536
RING_OFF  = 4 * MB
RING_P, RING_Y = 10240, 16384
PART_OFF  = 6 * MB
PX_OFF    = 8 * MB
PXM_OFF   = 12 * MB
X1_OFF    = 13 * MB
G_OFF     = 16 * MB
KX_OFF    = 24 * MB
QX_OFF    = 48 * MB
VX_OFF    = 72 * MB
U_OFF     = 96 * MB
Y_OFF     = 176 * MB
Y_STR     = 327680
H2_OFF    = 240 * MB
SENT      = 0xFF81FF81
K_X, K_MEM0, K_WQ, K_WK, K_WV, K_WO, K_SEG, K_BX, K_W1, K_B1, K_W2, K_B2, K_C, K_WMOD, K_OUT, K_DBG, K_WS = [8 * i for i in range(17)]
ROLE_K, ROLE_V, ROLE_O, ROLE_Q, ROLE_PX, ROLE_X1, ROLE_G, ROLE_T = 0, 1, 2, 3, 4, 5, 6, 7
import os
NF1, NF2, T0 = int(os.environ.get('NF1', 6)), int(os.environ.get('NF2', 4)), int(os.environ.get('T0', 440))
```

```python
from asmgen import Asm
from layout import *
from k_prep import srd, f2u, round_bf16
from k_main import spin_guard, stamp, stamp_flush
import k_main as km
import os

CAL_OFF = 7 * MB
DBG = 96
CNT_MOD, CNT_MOD2, CNT_HEAD, CNT_GRP = 0, 64, 128, 192

def head_load(a, vt):
    a(f"buffer_load_dword v{vt}, off, s[{DBG}:{DBG+3}], 0 offset:{CNT_HEAD} sc1\nbuffer_load_dword v{vt+1}, off, s[{DBG}:{DBG+3}], s94 sc1")

def wait_head(a, lbl, vt, preloaded=False):
    a(f"v_mov_b32 v{vt+2}, {163840 - 16}\ns_cmp_lg_u32 s17, 0\ns_cbranch_scc1 {lbl}_b\ns_branch {lbl}_{'t' if preloaded else 'in'}")
    a.label(lbl)
    a("s_sleep 8")
    a.label(lbl + "_in")
    head_load(a, vt)
    spin_guard(a, 39)
    a("s_waitcnt vmcnt(0)")
    a.label(lbl + "_t")
    a(f"""v_readfirstlane_b32 s19, v{vt}
v_readfirstlane_b32 s74, v{vt+1}
s_nop 0
s_and_b32 s22, s19, 255
s_cmp_lt_u32 s22, 64
s_cbranch_scc1 {lbl}
s_and_b32 s22, s74, 255
s_cmp_lt_u32 s22, 26
s_cbranch_scc1 {lbl}
ds_write_b64 v{vt+2}, v[{vt}:{vt+1}]
s_waitcnt lgkmcnt(0)""")
    a.label(lbl + "_b")
    a(f"""s_barrier
ds_read_b64 v[{vt}:{vt+1}], v{vt+2}
v_readfirstlane_b32 s19, v{vt}
v_readfirstlane_b32 s74, v{vt+1}
s_nop 0
s_and_b32 s19, s19, 256
s_lshl_b32 s19, s19, 5
s_mul_i32 s22, s95, 26
s_sub_u32 s74, s74, s22""")
    if os.environ.get('SAFE'): a("s_mov_b32 s74, 1")

def wait_count(a, lbl, vt, off, n):
    a(f"s_branch {lbl}_in")
    a.label(lbl)
    a("s_sleep 4")
    a.label(lbl + "_in")
    a(f"buffer_load_dword v{vt}, off, s[{DBG}:{DBG+3}], 0 offset:{off} sc1")
    spin_guard(a, 39)
    a(f"s_waitcnt vmcnt(0)\nv_cmp_gt_u32 vcc, {n}, v{vt}\ns_cbranch_vccnz {lbl}")

def gemv_loads(a, npass, col_s, row_s):
    a(f"""v_lshrrev_b32 v6, 3, v0
v_add_u32 v6, s{row_s}, v6
v_and_b32 v7, 7, v0
v_mul_u32_u24 v28, 7680, v6
v_lshl_add_u32 v28, v7, 4, v28
v_lshlrev_b32 v29, 1, v6""")
    for i in range(npass):
        a(f"s_add_u32 s24, s{col_s}, {i*32*7680}\nbuffer_load_dwordx4 v[{32+4*i}:{35+4*i}], v28, s[48:51], s24 offen {km.PH}")
    for i in range(npass):
        a(f"buffer_load_ushort v{8+i}, v29, s[44:47], 0 offen offset:{64*i}")

def gemv_math(a, npass, skip_lbl):
    for i in range(npass):
        r = 8 + i
        a(f"""v_lshlrev_b32 v{r}, 16, v{r}
v_mul_f32 v30, 0xbfb8aa3b, v{r}
v_exp_f32 v30, v30
v_add_f32 v30, 1.0, v30
v_rcp_f32 v30, v30
v_mul_f32 v{r}, v{r}, v30""")
        round_bf16(a, r, 30)
    stamp(a, 3)
    for j in range(8): a(f"v_mov_b32 v{112+j}, 0")
    for i in range(npass):
        for j in range(4):
            w = 32 + 4 * i + j
            a(f"""v_lshlrev_b32 v30, 16, v{w}
v_and_b32 v31, 0xffff0000, v{w}
v_fmac_f32 v{112+2*j}, v30, v{8+i}
v_fmac_f32 v{113+2*j}, v31, v{8+i}""")
    a(f"""v_lshlrev_b32 v30, 5, v0
ds_write_b128 v30, v[112:115]
ds_write_b128 v30, v[116:119] offset:16
s_waitcnt lgkmcnt(0)
s_barrier
s_cmp_lg_u32 s17, 0
s_cbranch_scc1 {skip_lbl}
v_lshlrev_b32 v30, 2, v0""")
    for i in range(32): a(f"ds_read_b32 v{32+i}, v30 offset:{256*i}")
    for st in (16, 8, 4, 2):
        for i in range(0, st, 2): a(f"v_pk_add_f32 v[{32+i}:{33+i}], v[{32+i}:{33+i}], v[{32+st+i}:{33+st+i}]")
    a("v_add_f32 v32, v32, v33")

def mod_rest(a):
    a("s_sub_u32 s36, s18, 40\ns_cmp_ge_u32 s36, 20\ns_cbranch_scc1 L_M_done\ns_add_u32 s36, s36, 20\ns_mov_b32 s37, 0")
    a.label("L_M_loop")
    a("s_lshl_b32 s3, s36, 7")
    gemv_loads(a, 20, 3, 37)
    gemv_math(a, 20, "L_M_next")
    round_bf16(a, 32, 31)
    a(f"""s_sub_u32 s25, s36, 40
s_cmp_lt_u32 s25, 10
s_cselect_b32 s24, 1.0, 0
v_add_f32 v32, s24, v32""")
    round_bf16(a, 32, 31)
    a(f"""s_lshl_b32 s3, s36, 8
buffer_store_dword v32, v30, s[4:7], s3 offen offset:{MOD_OFF} sc1
v_mov_b32 v31, 1
s_waitcnt vmcnt(0)
s_mov_b64 exec, 1
buffer_atomic_add v31, off, s[{DBG}:{DBG+3}], 0 offset:{CNT_MOD2}
s_mov_b64 exec, -1""")
    a.label("L_M_next")
    a("s_barrier\ns_add_u32 s36, s36, 20\ns_cmp_lt_u32 s36, 60\ns_cbranch_scc1 L_M_loop")
    a.label("L_M_done")
    wait_count(a, "L_M_w", 28, CNT_MOD2, 40)

def role_head(a):
    a.label("L_H")
    a(f"""s_load_dwordx4 s[28:31], s[0:1], {K_X}       ; x, mem0
s_load_dwordx4 s[32:35], s[0:1], {K_C}       ; c, w_mod
s_mov_b32 s39, 0
s_mov_b32 s43, 1
s_waitcnt lgkmcnt(0)""")
    srd(a, 8, 28, 2048 * 1280); srd(a, 12, 30, 8 * 1280); srd(a, 44, 32, 1280); srd(a, 48, 34, 640 * 7680)
    RAW = 200
    a(f"""v_lshrrev_b32 v4, 4, v0
v_mul_u32_u24 v5, 1280, v4
v_lshl_add_u32 v5, v3, 4, v5
s_mul_i32 s36, s18, {32*1280}
s_add_u32 s37, s36, {16*1280}
s_cmp_ge_u32 s18, 60
s_cbranch_scc1 L_H_nomod
s_mul_i32 s38, s18, 3277
s_lshr_b32 s38, s38, 16
s_mul_i32 s3, s38, 20
s_sub_u32 s3, s18, s3
s_lshl_b32 s3, s3, 7
s_mul_i32 s38, s38, 224""")
    gemv_loads(a, 7, 3, 38)
    def xloads():
        for tt in range(2):
            for i in range(5):
                a(f"buffer_load_dwordx4 v[{RAW+20*tt+4*i}:{RAW+20*tt+4*i+3}], v5, s[8:11], s{36+tt} offen offset:{256*i}")
    xloads()
    gemv_math(a, 7, "L_H_init")
    a(f"""s_lshl_b32 s3, s18, 8
s_add_u32 s3, s3, {MODP_OFF}
buffer_store_dword v32, v30, s[4:7], s3 offen sc1
v_mov_b32 v31, 1
s_waitcnt vmcnt(0)
s_mov_b64 exec, 1
buffer_atomic_add v31, off, s[{DBG}:{DBG+3}], 0 offset:{CNT_MOD}
s_mov_b64 exec, -1
s_branch L_H_init""")
    a.label("L_H_nomod")
    a(f"""s_cmp_lg_u32 s18, 63
s_cbranch_scc1 L_H_nocal
v_and_b32 v6, 3, v0
v_lshlrev_b32 v6, 8, v6
v_bfe_u32 v7, v0, 2, 1
v_lshl_add_u32 v6, v7, 13, v6
s_lshl_b32 s42, s17, 10
s_add_u32 s42, s42, {CAL_OFF}
buffer_load_dword v7, v6, s[4:7], s42 offen sc1
s_waitcnt vmcnt(0)
buffer_store_dword v7, v6, s[4:7], s42 offen sc1
s_waitcnt vmcnt(0)
s_mov_b32 s40, -1
s_mov_b32 s41, -1
s_add_u32 s38, s42, {km.NCAL*256}
s_mov_b64 exec, 1""")
    a.label("L_H_cal")
    for hf in range(2):
        a(f"""s_add_u32 s24, s42, {hf*8192}
s_memtime s[52:53]
s_waitcnt lgkmcnt(0)
buffer_load_dword v7, off, s[4:7], s24 sc1
s_waitcnt vmcnt(0)
s_memtime s[54:55]
s_waitcnt lgkmcnt(0)
s_sub_u32 s54, s54, s52
s_min_u32 s{40+hf}, s{40+hf}, s54""")
    a(f"""s_add_u32 s42, s42, 256
s_cmp_lt_u32 s42, s38
s_cbranch_scc1 L_H_cal
v_mov_b32 v6, s40
v_mov_b32 v7, s41
s_lshl_b32 s24, s17, 3
v_mov_b32 v8, s24
ds_write_b64 v8, v[6:7]
s_waitcnt lgkmcnt(0)
s_mov_b64 exec, -1""")
    a.label("L_H_nocal")
    a(f"""v_lshlrev_b32 v6, 4, v0
v_mov_b32 v8, {hex(SENT)}
s_sub_u32 s24, s18, 60
s_lshl_b32 s24, s24, 19
s_add_u32 s24, s24, {RING_OFF}""")
    for i in range(3):
        a(f"""v_add_u32 v13, {256*i}, v0
v_bfe_u32 v14, v13, 1, 3
v_mul_u32_u24 v14, 1280, v14
v_lshrrev_b32 v15, 4, v13
v_lshl_add_u32 v14, v15, 5, v14
v_and_b32 v15, 1, v13
v_lshl_add_u32 v14, v15, 4, v14
v_cmp_gt_u32 vcc, 640, v13
v_cndmask_b32 v14, -1, v14, vcc
buffer_load_dwordx4 v[{16+4*i}:{19+4*i}], v14, s[12:15], 0 offen""")
    a("v_mov_b32 v13, 0xffc0ffc0")
    for r in range(16, 28): a(f"v_cmp_eq_u32 vcc, v{r}, v8\nv_cndmask_b32 v{r}, v{r}, v13, vcc")
    a("v_cmp_gt_u32 vcc, 128, v0")
    for r in range(24, 28): a(f"v_cndmask_b32 v{r}, v8, v{r}, vcc")
    for i in range(3): a(f"s_add_u32 s25, s24, {4096*i}\nbuffer_store_dwordx4 v[{16+4*i}:{19+4*i}], v6, s[4:7], s25 offen sc1")
    a.label("L_H_armed")
    xloads()
    a.label("L_H_init")
    stamp(a, 4)
    a(f"""v_lshlrev_b32 v7, 3, v0
v_mov_b32 v12, 0
v_mov_b32 v13, 0
s_lshl_b32 s24, s18, 11
s_add_u32 s24, s24, {FLAG_OFF}
buffer_store_dwordx2 v[12:13], v7, s[4:7], s24 offen sc1
v_lshlrev_b32 v7, 2, v0
s_lshl_b32 s24, s18, 10
s_add_u32 s24, s24, {X1F_OFF}
buffer_store_dword v12, v7, s[4:7], s24 offen sc1
s_waitcnt vmcnt(2)""")
    for tt in range(2):
        X = 32 + 40 * tt
        for i in range(20): a(f"v_lshlrev_b32 v{X+2*i}, 16, v{RAW+20*tt+i}\nv_and_b32 v{X+2*i+1}, 0xffff0000, v{RAW+20*tt+i}")
        def rowsum(v):
            for sh in (8, 4, 2, 1): a(f"v_add_f32_dpp v{v}, v{v}, v{v} row_ror:{sh} row_mask:0xf bank_mask:0xf")
        a(f"v_pk_add_f32 v[28:29], v[{X}:{X+1}], v[{X+2}:{X+3}]")
        for i in range(4, 40, 2): a(f"v_pk_add_f32 v[28:29], v[28:29], v[{X+i}:{X+i+1}]")
        a("v_add_f32 v28, v28, v29")
        rowsum(28)
        a(f"v_mul_f32 v28, {hex(f2u(-1.0/640))}, v28")
        for i in range(0, 40, 2): a(f"v_pk_add_f32 v[{X+i}:{X+i+1}], v[{X+i}:{X+i+1}], v[28:29] op_sel_hi:[1,0]")
        a(f"v_pk_mul_f32 v[28:29], v[{X}:{X+1}], v[{X}:{X+1}]")
        for i in range(2, 40, 2): a(f"v_pk_fma_f32 v[28:29], v[{X+i}:{X+i+1}], v[{X+i}:{X+i+1}], v[28:29]")
        a("v_add_f32 v28, v28, v29")
        rowsum(28)
        a(f"""v_mov_b32 v30, {hex(f2u(1e-5))}
v_fmac_f32 v30, {hex(f2u(1.0/640))}, v28
v_rsq_f32 v30, v30""")
        for i in range(0, 40, 2): a(f"v_pk_mul_f32 v[{X+i}:{X+i+1}], v[{X+i}:{X+i+1}], v[30:31] op_sel_hi:[1,0]")
    stamp(a, 5)
    a("s_cmp_lg_u32 s17, 0\ns_cbranch_scc1 L_H_wm_b")
    wait_count(a, "L_H_wm", 28, CNT_MOD, 60)
    a.label("L_H_wm_b")
    a(f"s_barrier\nv_lshlrev_b32 v28, 2, v0")
    stamp(a, 6)
    for p in range(3):
        a(f"s_mov_b32 s24, {MODP_OFF + p*5120}")
        for i in range(4): a(f"buffer_load_dword v{112+5*p+i}, v28, s[4:7], s24 offen offset:{1024*i} sc1")
        a(f"s_mov_b32 s24, {MODP_OFF + p*5120 + 4096}\nbuffer_load_dword v{112+5*p+4}, v28, s[4:7], s24 offen sc1")
    a(f"""v_lshlrev_b32 v6, 4, v0
v_mov_b32 v8, {hex(SENT)}
v_mov_b32 v9, v8
v_mov_b32 v10, v8
v_mov_b32 v11, v8
s_lshl_b32 s24, s18, 13
s_add_u32 s24, s24, {PART_OFF}
buffer_store_dwordx4 v[8:11], v6, s[4:7], s24 offen sc1
s_add_u32 s24, s24, 4096
buffer_store_dwordx4 v[8:11], v6, s[4:7], s24 offen sc1
s_lshr_b32 s24, s18, 4
s_lshl_b32 s24, s24, 19
s_bfe_u32 s25, s18, 0x10003
s_lshl_b32 s25, s25, 17
s_add_u32 s24, s24, s25
s_and_b32 s25, s18, 7
s_mul_i32 s25, s25, 12288
s_add_u32 s24, s24, s25
s_add_u32 s24, s24, {RING_OFF}
s_and_b32 s25, s18, 15
s_cmp_eq_u32 s25, 0
s_cselect_b32 s24, {PART_OFF}, s24""")
    for i in range(3): a(f"s_add_u32 s25, s24, {4096*i}\nbuffer_store_dwordx4 v[8:11], v6, s[4:7], s25 offen sc1")
    a("v_cmp_le_u32 vcc, 128, v0\nv_cndmask_b32 v130, 0, 1.0, vcc")
    for i in range(5):
        a(f"v_add_f32 v{112+i}, v{112+i}, v{117+i}\nv_add_f32 v{112+i}, v{112+i}, v{122+i}")
        round_bf16(a, 112 + i, 29)
        if i >= 2:
            a(f"v_add_f32 v{112+i}, {'v130' if i == 2 else '1.0'}, v{112+i}")
            round_bf16(a, 112 + i, 29)
        a(f"ds_write_b32 v28, v{112+i} offset:{8192 + 1024*i}")
    a("s_waitcnt lgkmcnt(0)\ns_barrier\nv_lshlrev_b32 v28, 5, v3")
    for i in range(5):
        for hf in range(2):
            a(f"ds_read_b128 v[{112+8*i+4*hf}:{115+8*i+4*hf}], v28 offset:{8192 + 512*i+16*hf}")
            a(f"ds_read_b128 v[{152+8*i+4*hf}:{155+8*i+4*hf}], v28 offset:{8192 + 2560 + 512*i+16*hf}")
    a(f"""v_lshrrev_b32 v6, 2, v3
v_lshlrev_b32 v6, 10, v6
v_and_b32 v7, 3, v3
v_lshl_add_u32 v6, v7, 8, v6
v_xor_b32 v7, v4, v3
v_lshl_add_u32 v6, v7, 4, v6
v_lshrrev_b32 v8, 4, v0
v_xor_b32 v8, v8, v0
v_and_b32 v8, 15, v8
v_and_b32 v9, 0xf0, v0
v_or_b32 v8, v8, v9
v_lshlrev_b32 v8, 4, v8
v_lshlrev_b32 v7, 4, v0
s_mul_i32 s3, s18, 40960
s_add_u32 s3, s3, {HF_OFF}""")
    for i in range(5):
        for tt in range(2):
            X = 32 + 40 * tt + 8 * i; O = RAW + 20 * tt + 4 * i
            for j in range(0, 8, 2): a(f"v_pk_fma_f32 v[{X+j}:{X+j+1}], v[{X+j}:{X+j+1}], v[{152+8*i+j}:{153+8*i+j}], v[{112+8*i+j}:{113+8*i+j}]")
            for j in range(4): a(f"v_cvt_pk_bf16_f32 v{O+j}, v{X+2*j}, v{X+2*j+1}")
            a(f"ds_write_b128 v6, v[{O}:{O+3}] offset:{16384 + 20480*tt + 4096*i}")
    a("s_waitcnt lgkmcnt(0)\ns_barrier")
    for i in range(10): a(f"ds_read_b128 v[{32+4*i}:{35+4*i}], v8 offset:{16384 + 4096*i}")
    for i in range(10): a(f"s_add_u32 s24, s3, {4096*i}\nbuffer_store_dwordx4 v[{32+4*i}:{35+4*i}], v7, s[4:7], s24 offen sc1")
    stamp(a, 7)
    a(f"""s_cmp_lg_u32 s18, 63
s_cbranch_scc1 L_H_fin
v_mov_b32 v6, 0
ds_read_b128 v[8:11], v6
ds_read_b128 v[12:15], v6 offset:16
v_min3_u32 v8, v8, v10, v12
v_min3_u32 v9, v9, v11, v13
v_min_u32 v8, v8, v14
v_min_u32 v9, v9, v15
v_readfirstlane_b32 s40, v8
v_readfirstlane_b32 s41, v9
s_nop 0
s_cmp_lt_u32 s40, s41
s_cselect_b32 s43, 1, 257""")
    if os.environ.get('FORCEPAR'): a(f"s_mov_b32 s43, {1 + 256*int(os.environ['FORCEPAR'])}")
    if os.environ.get('CALDBG'): a(f"buffer_store_dwordx2 v[8:9], off, s[{DBG}:{DBG+3}], 0 offset:8")
    if km.STAMP:
        a(f"s_mov_b32 s24, {PAR_OFF}\nbuffer_store_dwordx2 v[8:9], off, s[4:7], s24 offset:4")
    a.label("L_H_fin")
    a(f"""v_mov_b32 v31, s43
s_waitcnt vmcnt(0)
s_barrier
s_cmp_lg_u32 s17, 0
s_cbranch_scc1 L_H_done
s_mov_b64 exec, 1
buffer_atomic_add v31, off, s[{DBG}:{DBG+3}], 0 offset:{CNT_HEAD}
s_mov_b64 exec, -1""")
    a.label("L_H_done")
    stamp(a, 1)
    a("s_cmp_lt_u32 s18, 40\ns_cbranch_scc1 L_H_r")
    mod_rest(a)
    a.label("L_H_r")
    wait_head(a, "L_H_wh", 28)
    stamp(a, 2); stamp_flush(a, 8, row=64)
```

```python
from asmgen import Asm
from layout import *
from k_prep import srd, f2u, round_bf16
from k_main import spin_guard, stamp, stamp_flush
import k_main as km
import os

CAL_OFF = 7 * MB + 0x80000
DBG = 96
CNT_MOD, CNT_ARR2, CNT_ARR, CNT_HEAD, CNT_MOD2, CNT_GRP = 0, 64, 96, 128, 160, 192

def head_load(a, vt):
    a(f"buffer_load_dword v{vt}, off, s[{DBG}:{DBG+3}], 0 offset:{CNT_HEAD} sc1\nbuffer_load_dword v{vt+1}, off, s[{DBG}:{DBG+3}], s94 sc1")

def wait_head(a, lbl, vt, preloaded=False):
    a(f"v_mov_b32 v{vt+2}, {163840 - 16}\ns_cmp_lg_u32 s17, 0\ns_cbranch_scc1 {lbl}_b\ns_branch {lbl}_{'t' if preloaded else 'in'}")
    a.label(lbl)
    a("s_sleep 3")
    a.label(lbl + "_in")
    head_load(a, vt)
    spin_guard(a, 39)
    a("s_waitcnt vmcnt(0)")
    a.label(lbl + "_t")
    a(f"""v_readfirstlane_b32 s19, v{vt}
v_readfirstlane_b32 s74, v{vt+1}
s_nop 0
s_and_b32 s22, s19, 255
s_cmp_lt_u32 s22, 64
s_cbranch_scc1 {lbl}
s_and_b32 s22, s74, 255
s_cmp_lt_u32 s22, 26
s_cbranch_scc1 {lbl}
ds_write_b64 v{vt+2}, v[{vt}:{vt+1}]
s_waitcnt lgkmcnt(0)""")
    a.label(lbl + "_b")
    a(f"""s_barrier
ds_read_b64 v[{vt}:{vt+1}], v{vt+2}
v_readfirstlane_b32 s19, v{vt}
v_readfirstlane_b32 s74, v{vt+1}
s_nop 0
s_and_b32 s19, s19, 512
s_lshl_b32 s19, s19, 4
s_mul_i32 s22, s95, 26
s_sub_u32 s74, s74, s22""")
    if os.environ.get('SAFE'): a("s_mov_b32 s74, 1")

def wait_count(a, lbl, vt, off, n, sleep=4):
    a(f"s_branch {lbl}_in")
    a.label(lbl)
    a(f"s_sleep {sleep}")
    a.label(lbl + "_in")
    a(f"buffer_load_dword v{vt}, off, s[{DBG}:{DBG+3}], 0 offset:{off} sc1")
    spin_guard(a, 39)
    a(f"s_waitcnt vmcnt(0)\nv_cmp_gt_u32 vcc, {n}, v{vt}\ns_cbranch_vccnz {lbl}")

def gemv_loads(a, npass, col_s, row_s):
    a(f"""v_lshrrev_b32 v6, 3, v0
v_add_u32 v6, s{row_s}, v6
v_and_b32 v7, 7, v0
v_mul_u32_u24 v28, 7680, v6
v_lshl_add_u32 v28, v7, 4, v28
v_lshlrev_b32 v29, 1, v6""")
    for i in range(npass):
        a(f"s_add_u32 s24, s{col_s}, {i*32*7680}\nbuffer_load_dwordx4 v[{32+4*i}:{35+4*i}], v28, s[48:51], s24 offen {km.PH}")
    for i in range(npass):
        a(f"buffer_load_ushort v{8+i}, v29, s[44:47], 0 offen offset:{64*i}")

def gemv_math(a, npass, skip_lbl):
    for i in range(npass):
        r = 8 + i
        a(f"""v_lshlrev_b32 v{r}, 16, v{r}
v_mul_f32 v30, 0xbfb8aa3b, v{r}
v_exp_f32 v30, v30
v_add_f32 v30, 1.0, v30
v_rcp_f32 v30, v30
v_mul_f32 v{r}, v{r}, v30""")
        round_bf16(a, r, 30)
    stamp(a, 3)
    for j in range(8): a(f"v_mov_b32 v{112+j}, 0")
    for i in range(npass):
        for j in range(4):
            w = 32 + 4 * i + j
            a(f"""v_lshlrev_b32 v30, 16, v{w}
v_and_b32 v31, 0xffff0000, v{w}
v_fmac_f32 v{112+2*j}, v30, v{8+i}
v_fmac_f32 v{113+2*j}, v31, v{8+i}""")
    a(f"""v_lshlrev_b32 v30, 5, v0
ds_write_b128 v30, v[112:115]
ds_write_b128 v30, v[116:119] offset:16
s_waitcnt lgkmcnt(0)
s_barrier
s_cmp_lg_u32 s17, 0
s_cbranch_scc1 {skip_lbl}
v_lshlrev_b32 v30, 2, v0""")
    for i in range(32): a(f"ds_read_b32 v{32+i}, v30 offset:{256*i}")
    for st in (16, 8, 4, 2):
        for i in range(0, st, 2): a(f"v_pk_add_f32 v[{32+i}:{33+i}], v[{32+i}:{33+i}], v[{32+st+i}:{33+st+i}]")
    a("v_add_f32 v32, v32, v33")

def mod_rest(a):
    a("s_sub_u32 s36, s18, 40\ns_cmp_ge_u32 s36, 20\ns_cbranch_scc1 L_M_done\ns_add_u32 s36, s36, 20\ns_mov_b32 s37, 0")
    a.label("L_M_loop")
    a("s_lshl_b32 s3, s36, 7")
    gemv_loads(a, 20, 3, 37)
    gemv_math(a, 20, "L_M_next")
    round_bf16(a, 32, 31)
    a(f"""s_sub_u32 s25, s36, 40
s_cmp_lt_u32 s25, 10
s_cselect_b32 s24, 1.0, 0
v_add_f32 v32, s24, v32""")
    round_bf16(a, 32, 31)
    a(f"""s_lshl_b32 s3, s36, 8
buffer_store_dword v32, v30, s[4:7], s3 offen offset:{MOD_OFF} sc1
v_mov_b32 v31, 1
s_waitcnt vmcnt(0)
s_mov_b64 exec, 1
buffer_atomic_add v31, off, s[{DBG}:{DBG+3}], 0 offset:{CNT_ARR2} sc0
s_waitcnt vmcnt(0)
v_add_u32 v31, 1, v31
v_cmp_eq_u32 vcc, 40, v31
s_cbranch_vccz L_M_notlast
buffer_store_dword v31, off, s[{DBG}:{DBG+3}], 0 offset:{CNT_MOD2} sc1""")
    a.label("L_M_notlast")
    a("s_mov_b64 exec, -1")
    a.label("L_M_next")
    a("s_barrier\ns_add_u32 s36, s36, 20\ns_cmp_lt_u32 s36, 60\ns_cbranch_scc1 L_M_loop")
    a.label("L_M_done")
    a("s_cmp_lg_u32 s17, 0\ns_cbranch_scc1 L_M_wb")
    wait_count(a, "L_M_w", 28, CNT_MOD2, 40, 16)
    a.label("L_M_wb")
    a("s_barrier")

def role_head(a):
    a.label("L_H")
    a(f"""s_load_dwordx4 s[28:31], s[0:1], {K_X}       ; x, mem0
s_load_dwordx4 s[32:35], s[0:1], {K_C}       ; c, w_mod
s_mov_b32 s39, 0
s_mov_b32 s43, 1
s_waitcnt lgkmcnt(0)""")
    srd(a, 8, 28, 2048 * 1280); srd(a, 12, 30, 8 * 1280); srd(a, 44, 32, 1280); srd(a, 48, 34, 640 * 7680)
    RAW = 200
    a(f"""v_lshrrev_b32 v4, 4, v0
v_mul_u32_u24 v5, 1280, v4
v_lshl_add_u32 v5, v3, 4, v5
s_mul_i32 s36, s18, {32*1280}
s_add_u32 s37, s36, {16*1280}
s_cmp_ge_u32 s18, 60
s_cbranch_scc1 L_H_nomod
s_mul_i32 s38, s18, 3277
s_lshr_b32 s38, s38, 16
s_mul_i32 s3, s38, 20
s_sub_u32 s3, s18, s3
s_lshl_b32 s3, s3, 7
s_mul_i32 s38, s38, 224""")
    gemv_loads(a, 7, 3, 38)
    def xloads():
        for tt in range(2):
            for i in range(5):
                a(f"buffer_load_dwordx4 v[{RAW+20*tt+4*i}:{RAW+20*tt+4*i+3}], v5, s[8:11], s{36+tt} offen offset:{256*i}")
    xloads()
    gemv_math(a, 7, "L_H_init")
    a(f"""s_lshl_b32 s3, s18, 8
s_add_u32 s3, s3, {MODP_OFF}
buffer_store_dword v32, v30, s[4:7], s3 offen sc1
v_mov_b32 v31, 1
s_waitcnt vmcnt(0)
s_mov_b64 exec, 1
buffer_atomic_add v31, off, s[{DBG}:{DBG+3}], 0 offset:{CNT_MOD}
s_mov_b64 exec, -1
s_branch L_H_init""")
    a.label("L_H_nomod")
    xloads()
    a(f"""v_lshlrev_b32 v6, 4, v0
v_mov_b32 v8, {hex(SENT)}
s_sub_u32 s24, s18, 60
s_lshl_b32 s24, s24, 19
s_add_u32 s24, s24, {RING_OFF}""")
    for i in range(3):
        a(f"""v_add_u32 v13, {256*i}, v0
v_bfe_u32 v14, v13, 1, 3
v_mul_u32_u24 v14, 1280, v14
v_lshrrev_b32 v15, 4, v13
v_lshl_add_u32 v14, v15, 5, v14
v_and_b32 v15, 1, v13
v_lshl_add_u32 v14, v15, 4, v14
v_cmp_gt_u32 vcc, 640, v13
v_cndmask_b32 v14, -1, v14, vcc
buffer_load_dwordx4 v[{16+4*i}:{19+4*i}], v14, s[12:15], 0 offen""")
    a("v_mov_b32 v13, 0xffc0ffc0")
    for r in range(16, 28): a(f"v_cmp_eq_u32 vcc, v{r}, v8\nv_cndmask_b32 v{r}, v{r}, v13, vcc")
    a("v_cmp_gt_u32 vcc, 128, v0")
    for r in range(24, 28): a(f"v_cndmask_b32 v{r}, v8, v{r}, vcc")
    for i in range(3): a(f"s_add_u32 s25, s24, {4096*i}\nbuffer_store_dwordx4 v[{16+4*i}:{19+4*i}], v6, s[4:7], s25 offen sc1")
    a(f"""s_cmp_lt_u32 s18, 61
s_cbranch_scc1 L_H_nocal
v_and_b32 v6, 3, v0
v_lshlrev_b32 v6, 8, v6
v_bfe_u32 v7, v0, 2, 1
v_lshl_add_u32 v6, v7, 13, v6
s_lshl_b32 s42, s17, 10
s_and_b32 s22, s18, 3
s_lshl_b32 s22, s22, 14
s_add_u32 s42, s42, s22
s_add_u32 s42, s42, {CAL_OFF}
buffer_load_dword v7, v6, s[4:7], s42 offen sc1
s_waitcnt vmcnt(0)
buffer_store_dword v7, v6, s[4:7], s42 offen sc1
s_waitcnt vmcnt(0)
s_mov_b32 s40, -1
s_mov_b32 s41, -1
s_add_u32 s38, s42, {km.NCAL*256}
s_mov_b64 exec, 1""")
    a.label("L_H_cal")
    for hf in range(2):
        a(f"""s_add_u32 s24, s42, {hf*8192}
s_memtime s[52:53]
s_waitcnt lgkmcnt(0)
buffer_load_dword v7, off, s[4:7], s24 sc1
s_waitcnt vmcnt(0)
s_memtime s[54:55]
s_waitcnt lgkmcnt(0)
s_sub_u32 s54, s54, s52
s_min_u32 s{40+hf}, s{40+hf}, s54""")
    a(f"""s_add_u32 s42, s42, 256
s_cmp_lt_u32 s42, s38
s_cbranch_scc1 L_H_cal
v_mov_b32 v6, s40
v_mov_b32 v7, s41
s_lshl_b32 s24, s17, 3
v_mov_b32 v8, s24
ds_write_b64 v8, v[6:7]
s_waitcnt lgkmcnt(0)
s_mov_b64 exec, -1""")
    a.label("L_H_nocal")
    a.label("L_H_init")
    stamp(a, 4)
    a(f"""v_lshlrev_b32 v7, 3, v0
v_mov_b32 v12, 0
v_mov_b32 v13, 0
s_lshl_b32 s24, s18, 11
s_add_u32 s24, s24, {FLAG_OFF}
buffer_store_dwordx2 v[12:13], v7, s[4:7], s24 offen sc1
v_lshlrev_b32 v7, 2, v0
s_lshl_b32 s24, s18, 10
s_add_u32 s24, s24, {X1F_OFF}
buffer_store_dword v12, v7, s[4:7], s24 offen sc1
s_waitcnt vmcnt(2)""")
    for tt in range(2):
        X = 32 + 40 * tt
        for i in range(20): a(f"v_lshlrev_b32 v{X+2*i}, 16, v{RAW+20*tt+i}\nv_and_b32 v{X+2*i+1}, 0xffff0000, v{RAW+20*tt+i}")
        def rowsum(v):
            for sh in (8, 4, 2, 1): a(f"v_add_f32_dpp v{v}, v{v}, v{v} row_ror:{sh} row_mask:0xf bank_mask:0xf")
        a(f"v_pk_add_f32 v[28:29], v[{X}:{X+1}], v[{X+2}:{X+3}]")
        for i in range(4, 40, 2): a(f"v_pk_add_f32 v[28:29], v[28:29], v[{X+i}:{X+i+1}]")
        a("v_add_f32 v28, v28, v29")
        rowsum(28)
        a(f"v_mul_f32 v28, {hex(f2u(-1.0/640))}, v28")
        for i in range(0, 40, 2): a(f"v_pk_add_f32 v[{X+i}:{X+i+1}], v[{X+i}:{X+i+1}], v[28:29] op_sel_hi:[1,0]")
        a(f"v_pk_mul_f32 v[28:29], v[{X}:{X+1}], v[{X}:{X+1}]")
        for i in range(2, 40, 2): a(f"v_pk_fma_f32 v[28:29], v[{X+i}:{X+i+1}], v[{X+i}:{X+i+1}], v[28:29]")
        a("v_add_f32 v28, v28, v29")
        rowsum(28)
        a(f"""v_mov_b32 v30, {hex(f2u(1e-5))}
v_fmac_f32 v30, {hex(f2u(1.0/640))}, v28
v_rsq_f32 v30, v30""")
        for i in range(0, 40, 2): a(f"v_pk_mul_f32 v[{X+i}:{X+i+1}], v[{X+i}:{X+i+1}], v[30:31] op_sel_hi:[1,0]")
    stamp(a, 5)
    a("s_cmp_lg_u32 s17, 0\ns_cbranch_scc1 L_H_wm_b")
    wait_count(a, "L_H_wm", 28, CNT_MOD, 60)
    a.label("L_H_wm_b")
    a(f"s_barrier\nv_lshlrev_b32 v28, 2, v0")
    stamp(a, 6)
    for p in range(3):
        a(f"s_mov_b32 s24, {MODP_OFF + p*5120}")
        for i in range(4): a(f"buffer_load_dword v{112+5*p+i}, v28, s[4:7], s24 offen offset:{1024*i} sc1")
        a(f"s_mov_b32 s24, {MODP_OFF + p*5120 + 4096}\nbuffer_load_dword v{112+5*p+4}, v28, s[4:7], s24 offen sc1")
    a(f"""v_lshlrev_b32 v6, 4, v0
v_mov_b32 v8, {hex(SENT)}
v_mov_b32 v9, v8
v_mov_b32 v10, v8
v_mov_b32 v11, v8
""")
    if km.XPUSH:
        a(f"s_mul_i32 s24, s18, 20480\ns_add_u32 s24, s24, {PART_OFF}")
        for i in range(5): a(f"s_add_u32 s25, s24, {4096*i}\nbuffer_store_dwordx4 v[8:11], v6, s[4:7], s25 offen sc1")
    else:
        a(f"""s_lshl_b32 s24, s18, 13
s_add_u32 s24, s24, {PART_OFF}
buffer_store_dwordx4 v[8:11], v6, s[4:7], s24 offen sc1
s_add_u32 s24, s24, 4096
buffer_store_dwordx4 v[8:11], v6, s[4:7], s24 offen sc1""")
    a(f"""s_lshr_b32 s24, s18, 4
s_lshl_b32 s24, s24, 19
s_bfe_u32 s25, s18, 0x10003
s_lshl_b32 s25, s25, 17
s_add_u32 s24, s24, s25
s_and_b32 s25, s18, 7
s_mul_i32 s25, s25, 12288
s_add_u32 s24, s24, s25
s_add_u32 s24, s24, {RING_OFF}
s_and_b32 s25, s18, 15
s_cmp_eq_u32 s25, 0
s_cselect_b32 s24, {PART_OFF}, s24""")
    for i in range(3): a(f"s_add_u32 s25, s24, {4096*i}\nbuffer_store_dwordx4 v[8:11], v6, s[4:7], s25 offen sc1")
    a("v_cmp_le_u32 vcc, 128, v0\nv_cndmask_b32 v130, 0, 1.0, vcc")
    for i in range(5):
        a(f"v_add_f32 v{112+i}, v{112+i}, v{117+i}\nv_add_f32 v{112+i}, v{112+i}, v{122+i}")
        round_bf16(a, 112 + i, 29)
        if i >= 2:
            a(f"v_add_f32 v{112+i}, {'v130' if i == 2 else '1.0'}, v{112+i}")
            round_bf16(a, 112 + i, 29)
        a(f"ds_write_b32 v28, v{112+i} offset:{8192 + 1024*i}")
    a("s_waitcnt lgkmcnt(0)\ns_barrier\nv_lshlrev_b32 v28, 5, v3")
    for i in range(5):
        for hf in range(2):
            a(f"ds_read_b128 v[{112+8*i+4*hf}:{115+8*i+4*hf}], v28 offset:{8192 + 512*i+16*hf}")
            a(f"ds_read_b128 v[{152+8*i+4*hf}:{155+8*i+4*hf}], v28 offset:{8192 + 2560 + 512*i+16*hf}")
    a(f"""v_lshrrev_b32 v6, 2, v3
v_lshlrev_b32 v6, 10, v6
v_and_b32 v7, 3, v3
v_lshl_add_u32 v6, v7, 8, v6
v_xor_b32 v7, v4, v3
v_lshl_add_u32 v6, v7, 4, v6
v_lshrrev_b32 v8, 4, v0
v_xor_b32 v8, v8, v0
v_and_b32 v8, 15, v8
v_and_b32 v9, 0xf0, v0
v_or_b32 v8, v8, v9
v_lshlrev_b32 v8, 4, v8
v_lshlrev_b32 v7, 4, v0
s_mul_i32 s3, s18, 40960
s_add_u32 s3, s3, {HF_OFF}""")
    for i in range(5):
        for tt in range(2):
            X = 32 + 40 * tt + 8 * i; O = RAW + 20 * tt + 4 * i
            for j in range(0, 8, 2): a(f"v_pk_fma_f32 v[{X+j}:{X+j+1}], v[{X+j}:{X+j+1}], v[{152+8*i+j}:{153+8*i+j}], v[{112+8*i+j}:{113+8*i+j}]")
            for j in range(4): a(f"v_cvt_pk_bf16_f32 v{O+j}, v{X+2*j}, v{X+2*j+1}")
            a(f"ds_write_b128 v6, v[{O}:{O+3}] offset:{16384 + 20480*tt + 4096*i}")
    a("s_waitcnt lgkmcnt(0)\ns_barrier")
    for i in range(10): a(f"ds_read_b128 v[{32+4*i}:{35+4*i}], v8 offset:{16384 + 4096*i}")
    for i in range(10): a(f"s_add_u32 s24, s3, {4096*i}\nbuffer_store_dwordx4 v[{32+4*i}:{35+4*i}], v7, s[4:7], s24 offen sc1")
    stamp(a, 7)
    a(f"""s_cmp_lt_u32 s18, 61
s_cbranch_scc1 L_H_fin
v_mov_b32 v6, 0
ds_read_b128 v[8:11], v6
ds_read_b128 v[12:15], v6 offset:16
v_min3_u32 v8, v8, v10, v12
v_min3_u32 v9, v9, v11, v13
v_min_u32 v8, v8, v14
v_min_u32 v9, v9, v15
v_readfirstlane_b32 s40, v8
v_readfirstlane_b32 s41, v9
s_nop 0
s_cmp_lt_u32 s40, s41
s_cselect_b32 s43, 1, 257""")
    if os.environ.get('FORCEPAR'): a(f"s_mov_b32 s43, {1 + 256*int(os.environ['FORCEPAR'])}")
    if os.environ.get('CALDBG'): a(f"buffer_store_dwordx2 v[8:9], off, s[{DBG}:{DBG+3}], 0 offset:8")
    if km.STAMP:
        a(f"s_mov_b32 s24, {PAR_OFF}\nbuffer_store_dwordx2 v[8:9], off, s[4:7], s24 offset:4")
    a.label("L_H_fin")
    a(f"""v_mov_b32 v31, s43
s_waitcnt vmcnt(0)
s_barrier
s_cmp_lg_u32 s17, 0
s_cbranch_scc1 L_H_done
s_mov_b64 exec, 1
buffer_atomic_add v31, off, s[{DBG}:{DBG+3}], 0 offset:{CNT_ARR} sc0
s_waitcnt vmcnt(0)
v_add_u32 v31, s43, v31
v_and_b32 v30, 255, v31
v_cmp_eq_u32 vcc, 64, v30
s_cbranch_vccz L_H_notlast
buffer_store_dword v31, off, s[{DBG}:{DBG+3}], 0 offset:{CNT_HEAD} sc1""")
    a.label("L_H_notlast")
    a("s_mov_b64 exec, -1")
    a.label("L_H_done")
    stamp(a, 1)
    wait_head(a, "L_H_wh", 28)
    a("s_cmp_lt_u32 s18, 40\ns_cbranch_scc1 L_H_r")
    mod_rest(a)
    a.label("L_H_r")
    stamp(a, 2); stamp_flush(a, 8, row=64)
```

```python
from asmgen import Asm
from layout import *
from k_prep import srd, f2u
import math

import os
STAMP = bool(os.environ.get('STAMP'))
ST_OFF = 244 * MB
def stamp(a, i):
    if STAMP: a(f"{'s_memtime' if os.environ.get('STAMP') == '2' else 's_memrealtime'} s[{76+2*i}:{77+2*i}]")
def stamp_flush(a, n, row_s=None, row=None, tmp=15):
    if not STAMP: return
    a("s_waitcnt lgkmcnt(0)\ns_lshl_b32 s92, s16, 2\ns_add_u32 s92, s92, s17\ns_mul_i32 s92, s92, 66")
    a(f"s_add_u32 s92, s92, s{row_s}" if row_s is not None else f"s_add_u32 s92, s92, {row}")
    a(f"s_lshl_b32 s92, s92, 5\ns_add_u32 s92, s92, {ST_OFF}\ns_mov_b64 exec, 1")
    for i in range(n): a(f"v_mov_b32 v{tmp}, s{76+2*i}\nbuffer_store_dword v{tmp}, off, s[4:7], s92 offset:{4*i}")
    a("s_mov_b64 exec, -1")
SLOT = 24576
NCAL = 4
NTU = os.environ.get('NTU', ''); NTK = os.environ.get('NTK', ''); NTT = os.environ.get('NTT', '')
XBF = int(os.environ.get('XBF', 0))
XPUSH = int(os.environ.get('XPUSH', 0))
TIMING = os.environ.get('TIMING')
SCHED = int(os.environ.get('SCHED', 0))
DP = int(os.environ.get('DP', 100)); DYL = int(os.environ.get('DYL', 12)); DM = int(os.environ.get('DM', 165)); DH = int(os.environ.get('DH', 60)); HSTR = int(os.environ.get('HSTR', 8))
RAMP = int(os.environ.get('RAMP', 1))
DIAG = os.environ.get('DIAG')
PW = os.environ.get('PW', ''); PA = os.environ.get('PA', ''); PH = os.environ.get('PH', '')
DW = int(os.environ.get('DW', 5)); DA = int(os.environ.get('DA', 5))
SPIN_MAX = 200000

def R(kind, i, n=1):
    return f"{kind}{i}" if n == 1 else f"{kind}[{i}:{i+n-1}]"

def lane_decomp(a):
    a("""v_and_b32 v1, 63, v0
v_lshrrev_b32 v2, 4, v1
v_and_b32 v3, 15, v1""")

def loader(a, stages, shift, tmp, stampload=False, depth=5, pol='', needpar=False, slow=0):
    vW = {}; need = {(s['kind'], s['style'], s['stride']) for s in stages}
    t = tmp
    rho, pi, swz, x, y = t, t + 1, t + 2, t + 3, t + 4
    a(f"""v_lshrrev_b32 v{rho}, 3, v1
v_and_b32 v{pi}, 7, v1
v_lshrrev_b32 v{x}, 1, v{pi}
v_lshrrev_b32 v{y}, 1, v{rho}
v_xor_b32 v{x}, v{x}, v{y}
v_lshlrev_b32 v{swz}, 5, v{x}
v_and_b32 v{x}, 1, v{pi}
v_lshl_add_u32 v{swz}, v{x}, 4, v{swz}""")
    nxt = t + 5
    for key in sorted(need):
        kind, style, stride = key
        v = nxt; nxt += 1; vW[key] = v
        if style == 'nat':
            a(f"v_lshrrev_b32 v{x}, 2, v{rho}\nv_and_b32 v{y}, 3, v{rho}\nv_lshl_add_u32 v{v}, v{x}, 3, v{y}")
        elif style == 'sp':
            a(f"v_bfe_u32 v{x}, v{rho}, 1, 1\nv_lshlrev_b32 v{v}, 3, v{x}\nv_lshrrev_b32 v{x}, 2, v{rho}\nv_lshl_add_u32 v{v}, v{x}, 2, v{v}\nv_and_b32 v{x}, 1, v{rho}\nv_add_u32 v{v}, v{v}, v{x}")
        else:
            a(f"v_mov_b32 v{v}, v{rho}")
        if kind == 'W':
            if style == 'lin':
                a(f"s_lshl_b32 s22, s17, 4")
            else:
                a(f"s_lshr_b32 s22, s17, 1\ns_lshl_b32 s22, s22, 5\ns_and_b32 s23, s17, 1\ns_lshl_b32 s23, s23, {2 if style == 'nat' else 1}\ns_add_u32 s22, s22, s23")
            a(f"v_add_u32 v{v}, s22, v{v}\ns_mov_b32 s22, {stride}\nv_mul_lo_u32 v{v}, v{v}, s22\nv_add_u32 v{v}, v{v}, v{swz}")
        else:
            a(f"s_and_b32 s22, s17, 1\ns_lshl_b32 s22, s22, {3 if style == 'lin' else 4}\nv_add_u32 v{v}, s22, v{v}\ns_mov_b32 s22, {stride}\nv_mul_lo_u32 v{v}, v{v}, s22\nv_add_u32 v{v}, v{v}, v{swz}")
            a(f"s_lshr_b32 s22, s17, 1\ns_mul_i32 s22, s22, 640\nv_add_u32 v{v}, s22, v{v}")
    a("s_mul_i32 s24, s17, 6144\ns_and_b32 s25, s17, 1\ns_mul_i32 s25, s25, 10240\ns_lshr_b32 s22, s17, 1\ns_mul_i32 s22, s22, 5120\ns_add_u32 s25, s25, s22")
    kinds = {s['kind'] for s in stages}
    aW = aO = None
    rr, cc = rho, pi
    a(f"""v_bfe_u32 v{rr}, v1, 2, 3               ; 4*(g&1) + r
v_and_b32 v{cc}, 3, v1
v_lshlrev_b32 v{cc}, 3, v{cc}
v_lshl_add_u32 v{cc}, v{rr}, 7, v{cc}      ; rho*128 + c*8
v_lshrrev_b32 v{rr}, 1, v{rr}              ; rho>>1
v_lshrrev_b32 v{y}, 5, v1                 ; gh""")
    def tile_addrs(n, ghmul):
        nonlocal nxt
        base = nxt; nxt += n
        for tt in range(n):
            a(f"""s_mul_i32 s22, s17, {n}
s_add_u32 s22, s22, {tt}
s_and_b32 s23, s22, 3
s_lshr_b32 s22, s22, 2
s_lshl_b32 s22, s22, 10
v_xor_b32 v{x}, s23, v{rr}
v_lshl_add_u32 v{base+tt}, v{x}, 5, v{cc}
v_add_u32 v{base+tt}, s22, v{base+tt}
v_mul_u32_u24 v{x}, {ghmul}, v{y}
v_add_u32 v{base+tt}, v{base+tt}, v{x}""")
        return base
    if 'W' in kinds: aW = tile_addrs(3, 3072)
    if 'O' in kinds: aO = tile_addrs(10, 10240)
    cur = nxt; nxt += 10
    assert nxt <= tmp + 32, nxt - tmp
    cnt = [6 if s['kind'] == 'W' else 5 for s in stages]
    def issue(n):
        s = stages[n]; slot = ((n + shift) % 6) * SLOT
        v = vW[(s['kind'], s['style'], s['stride'])]
        for i in range(cnt[n]):
            if s['kind'] == 'W':
                gh, cb = divmod(i, 3)
                rows = s['row0'] + (8 if s['style'] == 'lin' else 16) * gh
                off = rows * s['stride'] + cb * 128
                a(f"s_add_u32 m0, s24, {slot + i*1024}")
            else:
                off = s['row0'] * s['stride'] + i * 128
                a(f"s_add_u32 m0, s25, {slot + i*1024}")
            a(f"s_add_u32 s26, s{s['col']}, {off}\nbuffer_load_dwordx4 v{v}, s[{s['srd']}:{s['srd']+3}], s26 offen {pol} lds")
    N = len(stages)
    ramp = RAMP if stampload else depth
    issued = min(ramp, N)
    for n in range(issued): issue(n)
    fb = tmp + 36; extra = 0
    if any(x['dests'] is None for x in stages):
        a(f"s_mul_i32 s22, s17, 6144\nv_lshlrev_b32 v{x}, 4, v1\nv_add_u32 v{x}, s22, v{x}")
    for n in range(N):
        s = stages[n]
        later = sum(cnt[n+1:issued]) + extra
        a(f"s_waitcnt vmcnt({later})\ns_barrier")
        while issued < min(n + (1 if n < slow else depth + 1) + (1 if n < slow else 0), N): issue(issued); issued += 1
        if stampload and n == N - 2:
            import k_head
            k_head.head_load(a, tmp + 34 - 2); extra = 2
        slot = ((n + shift) % 6) * SLOT
        nt = 3 if s['kind'] == 'W' else 10
        base = aW if s['kind'] == 'W' else aO
        for tt in range(nt): a(f"v_add_u32 v{cur+tt}, {slot}, v{base+tt}")
        if s['dests'] is None:
            a(f"v_add_u32 v{cur+3}, {slot}, v{x}")
            for tt in range(3):
                for q in range(4): a(f"ds_read_b64_tr_b16 v[{fb+8*tt+2*q}:{fb+8*tt+2*q+1}], v{cur+tt} offset:{q*6144}")
            a("s_waitcnt lgkmcnt(0)\ns_barrier")
            for j in range(6): a(f"ds_write_b128 v{cur+3}, v[{fb+4*j}:{fb+4*j+3}] offset:{j*1024}")
        else:
            for tt in range(nt):
                for q in range(4 if s['kind'] == 'W' else 1):
                    k, r = s['dests'](tt, q)
                    a(f"ds_read_b64_tr_b16 {R(k, r, 2)}, v{cur+tt} offset:{q*6144}")
        a("s_waitcnt lgkmcnt(0)")
    a("s_waitcnt vmcnt(0)\ns_barrier")
    if STAMP and stampload:
        stamp(a, 1); a("s_memtime s[80:81]"); stamp_flush(a, 3, row=64, tmp=tmp); a("s_waitcnt vmcnt(0)")
    if stampload:
        import k_head
        loader.n = getattr(loader, 'n', 0) + 1
        k_head.wait_head(a, f"L_wh{loader.n}", tmp + 34 - 2, preloaded=True)
    return aW

def spin_guard(a, s):
    a(f"s_add_u32 s{s}, s{s}, 1\ns_cmp_gt_u32 s{s}, {SPIN_MAX}\ns_cbranch_scc1 L_exit")

def flag_addr(a, dst_s, role, head_s, wave_s=None):
    a(f"s_lshl_b32 s{dst_s}, s{head_s}, 8\ns_add_u32 s{dst_s}, s{dst_s}, {FLAG_OFF + role*FSTR}\ns_add_u32 s{dst_s}, s{dst_s}, s19")
    if wave_s is not None:
        a(f"s_lshl_b32 s22, s{wave_s}, 6\ns_add_u32 s{dst_s}, s{dst_s}, s22")

def proj_loop(a, pfx, src_off, seg0_s, nseg, out_base_s, sc, epilogue, flag_s=None, segstride=32*12288):
    HS = 40960
    a(f"""v_lshlrev_b32 v4, 4, v1                 ; lane*16
s_mul_i32 s22, s17, 10240
v_add_u32 v5, s22, v4
v_mov_b32 v6, 0
s_mov_b32 s28, 0
s_mov_b32 s29, {HS}                     ; next
s_mov_b32 s30, {2*HS}                   ; next-next""")
    def dma(seg_s, slot_s):
        a(f"s_min_u32 s23, s{seg_s}, 63\ns_mul_i32 s23, s23, {HS}\ns_add_u32 s23, s23, {src_off}\ns_mul_i32 s22, s17, 10240\ns_add_u32 s22, s22, s{slot_s}")
        for i in range(10):
            if i % 4 == 0:
                a(f"s_add_u32 m0, s22, {i*1024}\ns_add_u32 s26, s23, {i*1024}")
            a(f"buffer_load_dwordx4 v5, s[4:7], s26 offen offset:{(i%4)*1024} lds")
    dma(20, 28)
    a("s_add_u32 s31, s20, 1"); dma(31, 29)
    a("s_waitcnt vmcnt(10)")
    a.label(pfx + "_loop")
    a("s_barrier\ns_add_u32 s31, s20, 2")
    dma(31, 30)
    a("v_add_u32 v7, s28, v4")
    B = 16; ACC = 48
    def rd(kk):
        b = B + 8 * (kk % 3)
        a(f"ds_read_b128 v[{b}:{b+3}], v7 offset:{kk*1024}\nds_read_b128 v[{b+4}:{b+7}], v7 offset:{(20+kk)*1024}")
    rd(0); rd(1)
    for kk in range(20):
        if kk + 2 < 20: rd(kk + 2)
        b = B + 8 * (kk % 3)
        for tt in range(2):
            for t in range(3):
                acc = ACC + 8 * t + 4 * tt
                c = "0" if kk == 0 else f"v[{acc}:{acc+3}]"
                a(f"v_mfma_f32_16x16x32_bf16 v[{acc}:{acc+3}], a[{(kk*3+t)*4}:{(kk*3+t)*4+3}], v[{b+4*tt}:{b+4*tt+3}], {c}")
        if kk == 10:
            a("s_waitcnt vmcnt(10)")
            if flag_s is not None:
                a(f"v_mov_b32 v8, s20\ns_mov_b64 exec, 1\nbuffer_store_dword v8, v6, s[4:7], s{flag_s} offen sc1\ns_mov_b64 exec, -1")
    epilogue(a, ACC)
    a(f"s_mul_i32 s23, s20, {segstride}\ns_add_u32 s23, s23, s{out_base_s}")
    for t in range(3):
        o = 72 + 4 * t; acc = ACC + 8 * t
        for j in range(4): a(f"v_cvt_pk_bf16_f32 v{o+j}, v{acc+2*j}, v{acc+2*j+1}")
        a(f"buffer_store_dwordx4 v[{o}:{o+3}], v4, s[4:7], s23 offen offset:{t*1024} {sc}")
    a(f"""s_mov_b32 s22, s28
s_mov_b32 s28, s29
s_mov_b32 s29, s30
s_mov_b32 s30, s22
s_add_u32 s20, s20, 1
s_cmp_lt_u32 s20, s21
s_cbranch_scc1 {pfx}_loop
s_waitcnt vmcnt(0)""")
    if flag_s is not None:
        a(f"v_mov_b32 v8, s20\ns_mov_b64 exec, 1\nbuffer_store_dword v8, v6, s[4:7], s{flag_s} offen sc1\ns_mov_b64 exec, -1")

def proj_stream(a, pfx, src_off, out_base_s, flag_s):
    HS = 40960
    a(f"""v_lshlrev_b32 v4, 4, v1                 ; lane*16
s_mul_i32 s42, s17, 10240
v_add_u32 v5, s42, v4
v_mov_b32 v6, 0""")
    def dma_ops(seg_s, slot_s):
        ops = [[f"s_min_u32 s23, s{seg_s}, 63", f"s_mul_i32 s23, s23, {HS}", f"s_add_u32 s23, s23, {src_off}", f"s_add_u32 s22, s42, s{slot_s}"]]
        for i in range(10):
            o = []
            if i % 4 == 0: o += [f"s_add_u32 m0, s22, {i*1024}", f"s_add_u32 s26, s23, {i*1024}"]
            o.append(f"buffer_load_dwordx4 v5, s[4:7], s26 offen offset:{(i%4)*1024} sc1 lds")
            ops.append(o)
        return ops
    stamp(a, 3)
    for j in range(3):
        a(f"s_mov_b32 s31, {j}\ns_mov_b32 s30, {j*HS}")
        for o in dma_ops(31, 30):
            for x in o: a(x)
        if j == 0: a("s_waitcnt vmcnt(6)")
    B = 16; ACCS = (48, 72); O = 96
    def rd(kk, ad):
        b = B + 8 * (kk % 4)
        return [f"ds_read_b128 v[{b}:{b+3}], v{ad} offset:{(kk%20)*1024}", f"ds_read_b128 v[{b+4}:{b+7}], v{ad} offset:{(20+kk%20)*1024}"]
    a(f"""s_mov_b32 s28, 0
s_mov_b32 s43, s{out_base_s}
v_mov_b32 v7, v4
s_waitcnt vmcnt(20)
s_barrier""")
    stamp(a, 4)
    for x in rd(0, 7) + rd(1, 7): a(x)
    a("s_waitcnt lgkmcnt(0)")
    def epi_ops(acc):
        ops = []
        for t in range(3):
            o = O + 4 * t
            for j in range(4): ops.append(f"v_cvt_pk_bf16_f32 v{o+j}, v{acc+8*t+2*j}, v{acc+8*t+2*j+1}")
            ops.append(f"buffer_store_dwordx4 v[{o}:{o+3}], v4, s[4:7], s43 offen offset:{t*1024} sc1")
        return ops
    def body(par, first):
        acc = ACCS[par]; cur = 7 + par; nxt = 8 - par
        slots = []
        for kk in range(20):
            b = B + 8 * (kk % 4)
            for tt in range(2):
                for t in range(3):
                    d = acc + 8 * t + 4 * tt
                    c = "0" if kk == 0 else f"v[{d}:{d+3}]"
                    slots.append([f"v_mfma_f32_16x16x32_bf16 v[{d}:{d+3}], a[{(kk*3+t)*4}:{(kk*3+t)*4+3}], v[{b+4*tt}:{b+4*tt+3}], {c}", []])
        for kk in range(20):
            r = rd(kk + 2, cur if kk + 2 < 20 else nxt)
            slots[6*kk][1].append(r[0]); slots[6*kk + 1][1].append(r[1])
        if not first:
            for j, x in enumerate(epi_ops(ACCS[1 - par])): slots[2 + j + j // 5][1].append(x)
            slots[32][1].append(f"s_add_u32 s43, s43, {32*12288}")
        nst = 0 if first else 3
        slots[33][1] += [f"s_add_u32 s29, s28, {HS}", f"s_cmp_eq_u32 s29, {4*HS}", "s_cselect_b32 s29, 0, s29"]
        slots[34][1] += [f"v_add_u32 v{nxt}, s29, v4", "v_mov_b32 v9, s20"]
        slots[35][1] += [f"s_waitcnt vmcnt({10 + nst})", "s_barrier"]
        slots[38][1] += [f"s_add_u32 s30, s28, {3*HS}", f"s_sub_u32 s31, s30, {4*HS}", f"s_cmp_ge_u32 s30, {4*HS}"]
        slots[39][1] += ["s_cselect_b32 s30, s31, s30", "s_add_u32 s31, s20, 3"]
        ops = dma_ops(31, 30)
        slots[40][1] += ops[0][:2]; slots[41][1] += ops[0][2:]
        for i in range(10): slots[(44, 47, 51, 56, 59, 63, 68, 71, 75, 80)[i]][1] += ops[1 + i]
        return slots
    def flag(n):
        return [f"s_waitcnt vmcnt({n})", "s_mov_b64 exec, 1", f"buffer_store_dword v9, v6, s[4:7], s{flag_s} offen sc1", "s_mov_b64 exec, -1"]
    def emit(par, first):
        sl = body(par, first)
        if not first: sl[64][1] += flag(6)
        for mf, fl in sl:
            a(mf)
            fl = sorted(fl, key=lambda x: 1 if x.startswith('v_') else 0)
            for f in fl: a(f)
        a("s_mov_b32 s28, s29\ns_add_u32 s20, s20, 1")
    emit(0, True)
    for x in epi_ops(ACCS[0]): a(x)
    stamp(a, 5)
    a(f"v_mov_b32 v9, s20\ns_add_u32 s43, s43, {32*12288}")
    for x in flag(0): a(x)
    stamp(a, 6)
    if os.environ.get('VE', '1') == '2':
        emit(1, True)
        for x in epi_ops(ACCS[1]): a(x)
        a(f"v_mov_b32 v9, s20\ns_add_u32 s43, s43, {32*12288}")
        for x in flag(0): a(x)
        emit(0, True)
    else:
        emit(1, True)
        emit(0, False)
    stamp(a, 7); stamp_flush(a, 8, row=64)
    if STAMP: a("s_waitcnt vmcnt(0)")
    a("s_waitcnt lgkmcnt(0)")
    a.label(pfx + "_loop")
    emit(1, False)
    a(f"s_cmp_eq_u32 s20, 64\ns_cbranch_scc1 {pfx}_fin")
    emit(0, False)
    a(f"s_waitcnt lgkmcnt(0)\ns_branch {pfx}_loop")
    a.label(pfx + "_fin")
    for x in epi_ops(ACCS[1]): a(x)
    a("v_mov_b32 v9, s20")
    for x in flag(0): a(x)
    a("s_waitcnt vmcnt(0) lgkmcnt(0)\ns_barrier")

def w_stages(srd_, stride, col, style, dest_fn, n=10, resident=()):
    st = []
    for c in range(n):
        st.append(dict(kind='W', srd=srd_, stride=stride, col=col, style=style, row0=64 * c,
                       dests=None if c in resident else (lambda t, q, c=c: dest_fn(c, t, q))))
    return st

def role_proj(a):
    a.label("L_proj")
    a("s_mul_i32 s32, s18, 384")
    SLOW = int(os.environ.get('SLOW', 5))
    stg = w_stages(8, 12288, 32, 'nat', lambda c, t, q: ('a', ((2*c + (q >> 1)) * 3 + t) * 4 + 2 * (q & 1)))
    if SLOW:
        a(f"s_cmp_eq_u32 s27, {ROLE_V}\ns_cbranch_scc1 L_proj_v")
        loader(a, stg, 0, 16, True, depth=DW, pol=PW, slow=SLOW)
        a("s_branch L_proj_go")
        a.label("L_proj_v")
    loader(a, stg, 0, 16, True, depth=DW, pol=PW)
    a.label("L_proj_go")
    a(f"""s_mov_b32 s33, {KX_OFF}
s_cmp_eq_u32 s27, {ROLE_V}
s_cselect_b32 s33, {VX_OFF}, s33
s_cmp_eq_u32 s27, {ROLE_Q}
s_cselect_b32 s33, {QX_OFF}, s33
s_mul_i32 s22, s18, 12288
s_add_u32 s33, s33, s22
s_mul_i32 s22, s17, 3072
s_add_u32 s33, s33, s22
s_lshl_b32 s34, s27, 14
s_add_u32 s34, s34, s19
s_cmp_eq_u32 s27, {ROLE_V}
s_cselect_b32 s22, 8192, 0
s_xor_b32 s34, s34, s22
s_lshl_b32 s22, s18, 8
s_add_u32 s34, s34, s22
s_lshl_b32 s22, s17, 6
s_add_u32 s34, s34, s22
s_add_u32 s34, s34, {FLAG_OFF}
s_mov_b32 s20, 0
s_mov_b32 s21, 64""")
    proj_stream(a, "L_proj", HF_OFF, 33, 34)
    stamp(a, 0)
    if STAMP: a("s_memtime s[78:79]")
    stamp_flush(a, 2, row=65)
    if STAMP: a("s_waitcnt vmcnt(0)")
    a(f"""s_min_u32 s22, s27, 2                   ; K, V, Q -> 0, 1, 2
s_lshl_b32 s22, s22, 5
s_add_u32 s18, s18, s22
s_branch L_second""")

def role_oworker(a):
    a.label("L_ow")
    a("s_mul_i32 s32, s18, 245760")
    st = [dict(kind='O', srd=8, stride=1280, col=32, style='lin', row0=16 * q,
               dests=(lambda t, qq, q=q: ('a', (t * 6 + (q >> 1)) * 4 + 2 * (q & 1)))) for q in range(12)]
    loader(a, st, 0, 16, True, depth=DW, pol=PW)
    flag_addr(a, 34, ROLE_O, 18, 17)
    flag_addr(a, 35, ROLE_V, 18)
    a("s_xor_b32 s35, s35, 8192")
    a(f"""v_lshlrev_b32 v4, 4, v1                 ; lane*16
v_and_b32 v5, 3, v1
v_lshlrev_b32 v5, 6, v5
v_mov_b32 v6, 0
s_mul_i32 s36, s18, 12288
s_mul_i32 s22, s17, 3072
s_add_u32 s36, s36, s22
s_add_u32 s36, s36, {VX_OFF}
s_lshl_b32 s37, s18, 10
s_mul_i32 s22, s17, {10*32768}
s_add_u32 s37, s37, s22
s_add_u32 s37, s37, {U_OFF}
s_mul_i32 s38, s17, 3072
s_mov_b32 s28, 0
s_mov_b32 s29, 12288
s_mov_b32 s20, 0
s_mov_b32 s39, 0""")
    def waitflag(lbl, need_s):
        a(f"s_branch {lbl}_in")
        a.label(lbl)
        a("s_sleep 2")
        a.label(lbl + "_in")
        a(f"buffer_load_dword v9, v5, s[4:7], s35 offen sc1")
        spin_guard(a, 39)
        a(f"s_waitcnt vmcnt(0)\nv_cmp_gt_u32 vcc, s{need_s}, v9\ns_cbranch_vccnz {lbl}")
    def dma(seg_s, slot_s):
        a(f"s_min_u32 s23, s{seg_s}, 63\ns_mul_i32 s23, s23, {32*12288}\ns_add_u32 s23, s23, s36\ns_add_u32 m0, s38, s{slot_s}")
        for i in range(3): a(f"buffer_load_dwordx4 v4, s[4:7], s23 offen offset:{i*1024} sc1 lds")
    a("s_mov_b32 s31, 1")
    waitflag("L_ow_w0", 31)
    stamp(a, 3)
    a("s_mov_b32 s31, 0\ns_mov_b32 s30, 0"); dma(31, 30)
    a("s_waitcnt vmcnt(0)\ns_barrier")
    stamp(a, 4); stamp_flush(a, 5, row=64)
    AS = (16, 64)
    ACC = 112; OB = 128
    AD = 140
    def aread(A0):
        return [f"ds_read_b128 v[{A0+4*T}:{A0+4*T+3}], v{AD} offset:{1024*T}" for T in range(12)]
    def aswap(A0):
        return [f"v_swap_b32 v{A0+8*p+2+j}, v{A0+8*p+4+j}" for p in range(6) for j in range(2)]
    a(f"v_mov_b32 v{AD}, v4")
    for x in aread(AS[0]) + aswap(AS[0]): a(x)
    a("s_mov_b32 s43, s37")
    def epi(t):
        acc = ACC + 8 * (t % 2); o = OB + 4 * (t % 2)
        return [f"v_cvt_pk_bf16_f32 v{o}, v{acc}, v{acc+1}", f"v_cvt_pk_bf16_f32 v{o+1}, v{acc+4}, v{acc+5}",
                f"v_cvt_pk_bf16_f32 v{o+2}, v{acc+2}, v{acc+3}", f"v_cvt_pk_bf16_f32 v{o+3}, v{acc+6}, v{acc+7}",
                f"buffer_store_dwordx4 v[{o}:{o+3}], v4, s[4:7], s43 offen sc1", "s_add_u32 s43, s43, 32768"]
    def emit(par, first, tag=""):
        A0 = AS[par]
        slots = []
        for t in range(10):
            acc = ACC + 8 * (t % 2)
            for p in range(6):
                for tt in range(2):
                    c = "0" if p == 0 else f"v[{acc+4*tt}:{acc+4*tt+3}]"
                    slots.append([f"v_mfma_f32_16x16x32_bf16 v[{acc+4*tt}:{acc+4*tt+3}], v[{A0+8*p+4*tt}:{A0+8*p+4*tt+3}], a[{(t*6+p)*4}:{(t*6+p)*4+3}], {c}", []])
        for t in range(10):
            if t == 0 and first: continue
            e = epi((t - 1) % 10)
            for jj in range(4): slots[12*t + 2 + jj][1].append(e[jj])
            slots[12*t + 7][1].append(e[4]); slots[12*t + 8][1].append(e[5])
        if not first: slots[9][1].append(f"s_add_u32 s43, s43, {30*32768}")
        slots[10][1] += ["s_add_u32 s31, s20, 2", "s_min_u32 s31, s31, 64"]
        slots[22][1] += ["s_add_u32 s28, s28, 12288", "s_cmp_eq_u32 s28, 36864", "s_cselect_b32 s28, 0, s28"]
        slots[23][1] += ["s_add_u32 s23, s20, 1", "s_min_u32 s23, s23, 63", f"s_mul_i32 s23, s23, {32*12288}"]
        slots[24][1] += ["s_add_u32 s23, s23, s36", "s_add_u32 m0, s38, s28"]
        slots[33][1] += ["s_waitcnt vmcnt(5)" if not first else "s_waitcnt vmcnt(2)", "v_cmp_gt_u32 vcc, s31, v9"]
        slots[46][1] += ["v_mov_b32 v8, s20", f"v_add_u32 v{AD}, s28, v4"]
        lbl = f"L_ow_x{par}{int(first)}{tag}"
        def out(lo, hi):
            for mf, fl in slots[lo:hi]:
                a(mf)
                for f in sorted(fl, key=lambda x: 1 if x.startswith('v_') else 0): a(f)
        def ost(i):
            if os.environ.get('OST'): a(f"s_memrealtime s[{76+2*i}:{77+2*i}]")
        ost(0)
        out(0, 35)
        a(f"s_cbranch_vccz {lbl}_go")
        waitflag(lbl, 31)
        a.label(lbl + "_go")
        ost(1)
        for i in range(3): slots[35 + i][1].append(f"buffer_load_dwordx4 v4, s[4:7], s23 offen offset:{i*1024} sc1 lds")
        if os.environ.get('OST'):
            slots[59][1].append("s_memrealtime s[80:81]"); slots[61][1].append("s_memrealtime s[82:83]")
            slots[92][1].append("s_memrealtime s[84:85]"); slots[94][1].append("s_memrealtime s[86:87]")
        if not first: slots[60][1] += ["s_waitcnt vmcnt(7)", "s_mov_b64 exec, 1", "buffer_store_dword v8, v6, s[4:7], s34 offen sc1", "s_mov_b64 exec, -1"]
        slots[93][1] += [f"s_waitcnt vmcnt({5 if first else 6})", "s_barrier"]
        for k, x in enumerate(aread(AS[1 - par])): slots[(94, 95, 96, 97, 98, 99, 100, 101, 102, 104, 105, 106)[k]][1].insert(0, x)
        for k, x in enumerate(aswap(AS[1 - par])): slots[(102, 104, 105, 106, 107, 108, 109, 114, 116, 117, 118, 119)[k]][1].append(x)
        slots[102][1].insert(1, "buffer_load_dword v9, v5, s[4:7], s35 offen sc1")
        out(35, 120)
        if os.environ.get('OST'):
            a("s_waitcnt lgkmcnt(0)\ns_mov_b32 m0, s20")
            for i in range(6): a(f"v_writelane_b32 v{200+i}, s{76+2*i}, m0")
        a("s_add_u32 s20, s20, 1\ns_waitcnt lgkmcnt(0)")
    NE = int(os.environ.get('NE', 1))
    a("s_mov_b32 s28, 0\ns_waitcnt lgkmcnt(0)")
    a.label("L_ow_e")
    for t in range(10):
        acc = ACC + 8 * (t % 2)
        for p in range(6):
            for tt in range(2):
                c = "0" if p == 0 else f"v[{acc+4*tt}:{acc+4*tt+3}]"
                a(f"v_mfma_f32_16x16x32_bf16 v[{acc+4*tt}:{acc+4*tt+3}], v[{AS[0]+8*p+4*tt}:{AS[0]+8*p+4*tt+3}], a[{(t*6+p)*4}:{(t*6+p)*4+3}], {c}")
                k = 2 * p + tt - 2
                if t > 0 and 0 <= k < 6: a(epi(t - 1)[k])
        if t == 5: a("buffer_load_dword v9, v5, s[4:7], s35 offen sc1")
    for x in epi(9): a(x)
    stamp(a, 0)
    a(f"""s_add_u32 s43, s43, {30*32768}
s_add_u32 s20, s20, 1
v_mov_b32 v8, s20
s_add_u32 s31, s20, 1
s_add_u32 s28, s28, 12288
s_cmp_eq_u32 s28, 36864
s_cselect_b32 s28, 0, s28
v_cmp_gt_u32 vcc, s31, v9
s_cbranch_vccnz L_ow_e1""")
    dma(20, 28)
    a("""s_waitcnt vmcnt(3)
s_mov_b64 exec, 1
buffer_store_dword v8, v6, s[4:7], s34 offen sc1
s_mov_b64 exec, -1
s_waitcnt vmcnt(1)
s_branch L_ow_e2""")
    a.label("L_ow_e1")
    a("""s_waitcnt vmcnt(0)
s_mov_b64 exec, 1
buffer_store_dword v8, v6, s[4:7], s34 offen sc1
s_mov_b64 exec, -1""")
    waitflag("L_ow_w1", 31)
    dma(20, 28)
    a("s_waitcnt vmcnt(0)")
    a.label("L_ow_e2")
    stamp(a, 1); stamp_flush(a, 2, row_s=20)
    a(f"v_add_u32 v{AD}, s28, v4\ns_barrier")
    for x in aread(AS[0]) + aswap(AS[0]): a(x)
    a(f"s_waitcnt lgkmcnt(0)\ns_cmp_lt_u32 s20, {NE}\ns_cbranch_scc1 L_ow_e")
    a("buffer_load_dword v9, v5, s[4:7], s35 offen sc1")
    emit(0, True)
    a.label("L_ow_loop")
    emit(1, False)
    a("s_cmp_eq_u32 s20, 64\ns_cbranch_scc1 L_ow_fin")
    emit(0, False)
    a("s_cmp_lt_u32 s20, 64\ns_cbranch_scc1 L_ow_loop")
    a.label("L_ow_fin")
    for x in epi(9): a(x)
    a("""s_waitcnt vmcnt(0)
v_mov_b32 v8, s20
s_mov_b64 exec, 1
buffer_store_dword v8, v6, s[4:7], s34 offen sc1
s_mov_b64 exec, -1
s_barrier""")
    stamp(a, 0)
    if STAMP: a("s_memtime s[78:79]")
    stamp_flush(a, 2, row=65)
    if os.environ.get('OST'):
        a(f"s_lshl_b32 s22, s18, 2\ns_add_u32 s22, s22, s17\ns_lshl_b32 s22, s22, 11\ns_add_u32 s22, s22, {ST_OFF + 4096}\nv_lshlrev_b32 v15, 2, v1")
        for i in range(6): a(f"buffer_store_dword v{200+i}, v15, s[4:7], s22 offen offset:{256*i}")
    a("s_add_u32 s18, s18, 96\ns_branch L_second")

def remap(a, v, t):
    a(f"v_lshrrev_b32 v{t}, 13, v{v}\nv_and_b32 v{v}, 8191, v{v}\nv_lshl_add_u32 v{v}, v{t}, 14, v{v}")

def span_off(a, dst, step_s, plus, base, shift):
    a(f"s_add_u32 s{dst}, s{step_s}, {plus}\ns_lshl_b32 s{dst}, s{dst}, {shift}\ns_add_u32 s{dst}, s{dst}, {base}\ns_lshr_b32 s22, s{dst}, 8\ns_and_b32 s22, s22, 8192\ns_xor_b32 s22, s22, s19\ns_add_u32 s{dst}, s{dst}, s22")

def idx_reg(a, v):
    a(f"v_and_b32 v{v}, 1, v1\nv_cmp_eq_u32 vcc, 0, v{v}\nv_mov_b32 v{v}, 0xeeee\nv_mov_b32 v{v+1}, 0x4444\nv_cndmask_b32 v{v}, v{v}, v{v+1}, vcc")

def check(a, regs, acc):
    regs = list(regs)
    first = True
    while regs:
        if first:
            x = regs[:3]; regs = regs[3:]; a(f"v_max3_u32 v{acc}, v{x[0]}, v{x[1]}, v{x[2]}"); first = False
        elif len(regs) >= 2:
            x = regs[:2]; regs = regs[2:]; a(f"v_max3_u32 v{acc}, v{acc}, v{x[0]}, v{x[1]}")
        else:
            a(f"v_max_u32 v{acc}, v{acc}, v{regs[0]}"); regs = []

def ring_off(a, dst, plus):
    a(f"s_add_u32 s{dst}, s20, {plus}\ns_and_b32 s{dst}, s{dst}, 3\ns_lshl_b32 s{dst}, s{dst}, 17\ns_add_u32 s{dst}, s{dst}, s73")

def ring_setup(a):
    a(f"s_and_b32 s73, s16, 3\ns_lshl_b32 s73, s73, 19\ns_add_u32 s73, s73, {RING_OFF}")

MEMLDS = 6 * SLOT
def mem_poll_setup(a, vA):
    a(f"""s_mul_i32 s22, s17, 2560
v_lshlrev_b32 v{vA}, 4, v1
v_add_u32 v{vA}, s22, v{vA}
v_add_u32 v{vA+2}, {MEMLDS}, v{vA}
v_lshlrev_b32 v{vA+1}, 3, v1
v_add_u32 v{vA+1}, s22, v{vA+1}
v_add_u32 v{vA+3}, {MEMLDS}, v{vA+1}""")

PIPE = os.environ.get('PIPE', '2')
def mem_poll(a, lbl, vA, SA, SB, T):
    if STAMP: a("s_mov_b32 s91, s39")
    stamp(a, 0)
    if STAMP: a("s_waitcnt lgkmcnt(0)")
    def issue(S):
        for i in range(2): a(f"buffer_load_dwordx4 v[{S[i]}:{S[i]+3}], v{vA}, s[4:7], s40 offen offset:{1024*i} sc1")
        a(f"buffer_load_dwordx2 v[{S[2]}:{S[2]+1}], v{vA+1}, s[4:7], s40 offen offset:2048 sc1")
    def test(S, n):
        p, q, r = S
        a(f"""s_waitcnt vmcnt({n+2})
ds_write_b128 v{vA+2}, v[{p}:{p+3}]
v_max3_u32 v{T}, v{p}, v{p+1}, v{p+2}
s_waitcnt vmcnt({n+1})
ds_write_b128 v{vA+2}, v[{q}:{q+3}] offset:1024
v_max3_u32 v{T}, v{T}, v{p+3}, v{q}
v_max3_u32 v{T}, v{T}, v{q+1}, v{q+2}
s_waitcnt vmcnt({n})
ds_write_b64 v{vA+3}, v[{r}:{r+1}] offset:2048
v_max3_u32 v{T}, v{T}, v{q+3}, v{r}
v_max_u32 v{T}, v{T}, v{r+1}
v_cmp_eq_u32 vcc, s41, v{T}""")
    if PIPE == '0':
        a.label(lbl); issue(SA); spin_guard(a, 39); test(SA, 0); a(f"s_cbranch_vccnz {lbl}")
    else:
        a("s_waitcnt vmcnt(0)")
        issue(SA)
        a(f"s_sleep {PIPE}")
        a.label(lbl)
        issue(SB); spin_guard(a, 39); test(SA, 3)
        a(f"s_cbranch_vccz {lbl}_ok")
        issue(SA); test(SB, 3)
        a(f"s_cbranch_vccnz {lbl}")
        a.label(lbl + "_ok")
    stamp(a, 1)
    a("s_waitcnt lgkmcnt(0)\ns_barrier")

def emit_stream(a, slots):
    for mf, fl in slots:
        a(mf)
        fl = sorted(fl, key=lambda x: 1 if x.startswith('v_') else 0)
        for f in fl: a(f)

def role_R(a):
    a.label("L_R")
    ring_setup(a)
    a(f"""s_and_b32 s44, s16, 3                   ; die
s_lshl_b32 s45, s18, 2
s_add_u32 s45, s45, s17
v_lshrrev_b32 v14, 5, v1
v_mul_u32_u24 v14, 640, v14
v_and_b32 v15, 31, v1
v_lshl_add_u32 v4, v15, 4, v14
v_add_u32 v4, {RING_P}, v4
v_mul_u32_u24 v14, 1280, v2
v_lshl_add_u32 v8, v3, 3, v14
v_add_u32 v8, {RING_P + 512}, v8
s_lshl_b32 s23, s45, 11
s_add_u32 s23, s23, {RING_Y}
v_lshlrev_b32 v11, 4, v1
v_add_u32 v10, s23, v11                 ; Y offset
s_lshl_b32 s36, s45, 15
s_lshl_b32 s24, s44, 13
s_add_u32 s36, s36, s24
s_add_u32 s36, s36, {U_OFF}
s_mul_i32 s24, s45, 6554
s_lshr_b32 s24, s24, 16
s_lshl_b32 s24, s24, 6
s_lshl_b32 s22, s44, 11
s_add_u32 s24, s24, s22
v_and_b32 v12, 7, v1
v_lshlrev_b32 v12, 8, v12
v_add_u32 v12, s24, v12
s_add_u32 s35, s19, {FLAG_OFF + ROLE_O*FSTR}
s_mov_b32 s46, s19
s_lshl_b32 s22, s18, 14
s_add_u32 s46, s46, s22
s_lshl_b32 s22, s17, 11
s_add_u32 s46, s46, s22
s_add_u32 s46, s46, {PART_OFF}
v_lshlrev_b32 v14, 3, v1
s_lshl_b32 s22, s44, 9
v_add_u32 v18, s22, v14
v_xor_b32 v19, 512, v18
v_xor_b32 v28, 1024, v18
v_xor_b32 v29, 1536, v18
v_lshlrev_b32 v20, 6, v2
v_and_b32 v15, 1, v1
v_lshl_add_u32 v20, v15, 5, v20
v_bfe_u32 v14, v1, 1, 3
v_lshl_add_u32 v20, v14, 2, v20
s_lshl_b32 s22, s45, 8
v_add_u32 v20, s22, v20
v_cmp_eq_u32 vcc, 0, v15
v_mov_b32 v30, 0x03020706
v_mov_b32 v31, 0x05040100
v_cndmask_b32 v30, v30, v31, vcc
s_mov_b32 s41, {hex(SENT)}
s_mov_b32 s39, 0
s_mov_b32 s70, 0
s_mov_b32 s20, 0""")
    if XBF:
        a("""v_lshlrev_b32 v14, 2, v1
s_lshl_b32 s22, s44, 9
v_add_u32 v18, s22, v14
v_xor_b32 v19, 512, v18
v_xor_b32 v28, 1024, v18
v_xor_b32 v29, 1536, v18""")
    if XPUSH:
        a(f"""s_lshl_b32 s46, s45, 14
s_add_u32 s46, s46, s19
s_add_u32 s46, s46, {PART_OFF}
v_lshlrev_b32 v14, 3, v1
s_lshl_b32 s22, s44, 11
v_add_u32 v18, s22, v14
v_xor_b32 v19, {2048 + 512}, v18         ; outboxes
v_xor_b32 v28, {4096 + 1024}, v18
v_xor_b32 v29, {6144 + 1536}, v18""")
    idx_reg(a, 16)
    a(f"""s_mul_i32 s22, s17, 1280
v_add_u32 v5, s22, v4
v_lshrrev_b32 v14, 5, v1
v_mul_u32_u24 v14, 640, v14
v_and_b32 v15, 31, v1
v_lshl_add_u32 v6, v15, 2, v14
v_add_u32 v6, s22, v6
v_add_u32 v6, {RING_P + 512}, v6
s_lshl_b32 s22, s17, 10
v_add_u32 v7, s22, v11
s_lshl_b32 s22, s17, 8
v_lshlrev_b32 v9, 2, v1
v_add_u32 v9, s22, v9
v_add_u32 v9, 4096, v9
v_mov_b32 v22, v11
v_lshlrev_b32 v23, 8, v2
v_lshl_add_u32 v23, v3, 3, v23
v_add_u32 v23, 4096, v23""")
    for sl in range(4):
        a(f"""s_add_u32 s22, s73, {sl << 17}
buffer_load_dwordx4 v[32:35], v10, s[4:7], s22 offen sc1
buffer_load_dwordx4 v[36:39], v10, s[4:7], s22 offen offset:1024 sc1
buffer_load_dwordx4 v[40:43], v5, s[4:7], s22 offen sc1
buffer_load_dword v44, v6, s[4:7], s22 offen sc1
buffer_load_dword v45, v20, s[4:7], s22 offen sc1
s_add_u32 s22, s46, {(sl << 18) if not XPUSH else 0}
buffer_load_dwordx2 v[46:47], v18, s[4:7], s22 offen sc1""".replace("v[32:35]", f"v[{128+16*sl}:{131+16*sl}]").replace("v[36:39]", f"v[{132+16*sl}:{135+16*sl}]").replace("v[40:43]", f"v[{136+16*sl}:{139+16*sl}]").replace("v44", f"v{140+16*sl}").replace("v45", f"v{141+16*sl}").replace("v[46:47]", f"v[{142+16*sl}:{143+16*sl}]"))
    a("s_waitcnt vmcnt(0)\nv_mov_b32 v21, s41\nv_mov_b32 v96, s41\nv_mov_b32 v97, s41\ns_cmp_lg_u32 s74, 0\ns_cbranch_scc1 L_R_safe")
    UB = 64; YB = 56; PB = 32; PM = 48; D = 24
    a.dup_begin()
    a.label("L_R_loop")
    ring_off(a, 43, 2)
    a(f"""buffer_store_dword v21, v20, s[4:7], s43 offen @loc
""")
    if XPUSH:
        a(f"""s_add_u32 s42, s20, 1
s_and_b32 s42, s42, 1
s_mul_i32 s42, s42, {40*16384}
s_add_u32 s42, s42, s46
s_cmp_eq_u32 s20, 0
s_cselect_b32 s42, 0xf0000000, s42""")
        for r in (1, 2, 3): a(f"buffer_store_dwordx2 v[96:97], v18, s[4:7], s42 offen offset:{512*r} sc1")
        a(f"s_and_b32 s42, s20, 1\ns_mul_i32 s42, s42, {40*16384}\ns_add_u32 s42, s42, s46")
    else:
        a(f"""s_add_u32 s42, s20, 2
s_and_b32 s42, s42, 3
s_lshl_b32 s42, s42, 18
s_add_u32 s42, s42, s46
{'buffer_store_dword v96' if XBF else 'buffer_store_dwordx2 v[96:97]'}, v18, s[4:7], s42 offen sc1
s_xor_b32 s42, s42, {2 << 18}""")
    a("s_add_u32 s31, s20, 1\ns_cmp_ge_u32 s70, s31\ns_cbranch_scc1 L_R_fok")
    a("s_branch L_R_fl_in")
    a.label("L_R_fl")
    a(f"s_sleep {os.environ.get('RSL', 4)}")
    a.label("L_R_fl_in")
    a("buffer_load_dword v13, v12, s[4:7], s35 offen sc1")
    spin_guard(a, 39)
    a("s_waitcnt vmcnt(0)")
    dpp8(a, "v_min_u32", 13)
    a("v_readfirstlane_b32 s70, v13\ns_nop 0\ns_cmp_lt_u32 s70, s31\ns_cbranch_scc1 L_R_fl")
    a.label("L_R_fok")
    a(f"s_mul_i32 s23, s20, {40*32768}\ns_add_u32 s23, s23, s36\ns_add_u32 s24, s23, 4096")
    for i in range(8):
        a(f"buffer_load_dwordx4 v[{UB+4*i}:{UB+4*i+3}], v11, s[4:7], s{23 + i//4} offen offset:{(i%4)*1024} sc1 {NTU}")
    RF = os.environ.get('RF', 'r')
    if 'r' in RF:
        a("s_add_u32 s22, s20, 2\ns_cmp_lt_u32 s70, s22\ns_cselect_b32 s22, s35, 0xf0000000\nbuffer_load_dword v13, v12, s[4:7], s22 offen sc1")
    ring_off(a, 40, 0); ring_off(a, 43, 1)
    a("s_waitcnt vmcnt(0)")
    if 'r' in RF:
        dpp8(a, "v_min_u32", 13)
        a("v_readfirstlane_b32 s22, v13\ns_nop 0\ns_max_u32 s70, s70, s22")
    stamp(a, 0)
    if STAMP: a("s_waitcnt lgkmcnt(0)")
    if os.environ.get('RCOOP', '1') == '1':
        a(f"v_mov_b64 v[{D}:{D+1}], 0\nv_mov_b64 v[{D+2}:{D+3}], 0")
        def ppass(b):
            a(f"buffer_load_dwordx4 v[{b}:{b+3}], v5, s[4:7], s40 offen sc1\nbuffer_load_dword v{b+4}, v6, s[4:7], s40 offen sc1")
        def pcheck(b, n):
            a(f"""s_waitcnt vmcnt({n+1})
ds_write_b128 v7, v[{b}:{b+3}]
v_max3_u32 v15, v{b}, v{b+1}, v{b+2}
s_waitcnt vmcnt({n})
ds_write_b32 v9, v{b+4}
v_max3_u32 v15, v15, v{b+3}, v{b+4}
v_cmp_eq_u32 vcc, s41, v15""")
        PA_, PB_ = 100, 108
        a.label("L_R_pollY")
        for i in range(2): a(f"buffer_load_dwordx4 v[{YB+4*i}:{YB+4*i+3}], v10, s[4:7], s40 offen offset:{i*1024} sc1")
        if PIPE != '0': a(f"s_sleep {os.environ.get('PIPER', '1')}")
        ppass(PA_)
        spin_guard(a, 39)
        check(a, range(YB, YB + 8), 14)
        a("v_cmp_eq_u32 vcc, s41, v14\ns_cbranch_vccnz L_R_pollY")
        stamp(a, 1)
        if PIPE == '0':
            pcheck(PA_, 0)
            a("s_cbranch_vccz L_R_pok")
            a.label("L_R_pollP")
            ppass(PA_); spin_guard(a, 39); pcheck(PA_, 0)
            a("s_cbranch_vccnz L_R_pollP")
        else:
            a.label("L_R_pollP")
            ppass(PB_); spin_guard(a, 39); pcheck(PA_, 2)
            a("s_cbranch_vccz L_R_pok")
            ppass(PA_); pcheck(PB_, 2)
            a("s_cbranch_vccnz L_R_pollP")
        a.label("L_R_pok")
        stamp(a, 2)
        a("s_waitcnt lgkmcnt(0)\ns_barrier")
        for m in range(4): a(f"ds_read_b128 v[{PB+4*m}:{PB+4*m+3}], v22 offset:{1024*m}")
        a(f"ds_read2_b64 v[{PM}:{PM+3}], v23 offset0:0 offset1:16")
        for m in range(4): a(f"v_smfmac_f32_16x16x64_bf16 v[{D}:{D+3}], v[{PB+4*m}:{PB+4*m+3}], v[{UB+8*m}:{UB+8*m+7}], v16")
        a(f"v_smfmac_f32_16x16x64_bf16 v[{D}:{D+3}], v[{PM}:{PM+3}], v[{YB}:{YB+7}], v16")
    else:
        a.label("L_R_pollY")
        for i in range(2): a(f"buffer_load_dwordx4 v[{YB+4*i}:{YB+4*i+3}], v10, s[4:7], s40 offen offset:{i*1024} sc1")
        spin_guard(a, 39)
        check(a, range(YB, YB + 8), 14)
        a("v_cmp_eq_u32 vcc, s41, v14\ns_cbranch_vccnz L_R_pollY")
        stamp(a, 1)
        if STAMP: a("s_waitcnt lgkmcnt(0)")
        a.label("L_R_pollP")
        for i in range(2): a(f"buffer_load_dwordx2 v[{PM+2*i}:{PM+2*i+1}], v8, s[4:7], s40 offen offset:{640*i} sc1")
        for i in range(4): a(f"buffer_load_dwordx4 v[{PB+4*i}:{PB+4*i+3}], v4, s[4:7], s40 offen offset:{1280*i} sc1")
        spin_guard(a, 39)
        a(f"v_mov_b64 v[{D}:{D+1}], 0\nv_mov_b64 v[{D+2}:{D+3}], 0")
        a(f"v_smfmac_f32_16x16x64_bf16 v[{D}:{D+3}], v[{PM}:{PM+3}], v[{YB}:{YB+7}], v16")
        a(f"v_max3_u32 v14, v{PM}, v{PM+1}, v{PM+2}\nv_max_u32 v14, v14, v{PM+3}")
        for m in range(4):
            a(f"v_smfmac_f32_16x16x64_bf16 v[{D}:{D+3}], v[{PB+4*m}:{PB+4*m+3}], v[{UB+8*m}:{UB+8*m+7}], v16")
            a(f"v_max3_u32 v14, v14, v{PB+4*m}, v{PB+4*m+1}\nv_max3_u32 v14, v14, v{PB+4*m+2}, v{PB+4*m+3}")
        a("v_cmp_eq_u32 vcc, s41, v14\ns_cbranch_vccnz L_R_pollP")
        stamp(a, 2)
    a(f"""v_add_f32 v{D}, v{D}, v{D+1}
v_add_f32 v{D+1}, v{D+2}, v{D+3}""")
    if XBF: a(f"""v_cvt_pk_bf16_f32 v{D+2}, v{D}, v{D+1}
buffer_store_dword v{D+2}, v18, s[4:7], s42 offen sc1
v_lshlrev_b32 v{D}, 16, v{D+2}
v_and_b32 v{D+1}, 0xffff0000, v{D+2}""")
    for v in ((19, 28, 29) if XPUSH else (() if XBF else (18,))): a(f"buffer_store_dwordx2 v[{D}:{D+1}], v{v}, s[4:7], s42 offen sc1")
    stamp(a, 5)
    if STAMP: a("s_mov_b32 s91, s39")
    xw = os.environ.get('XW', 's6')
    if xw.startswith('s'): a(f"s_sleep {xw[1:]}")
    elif xw: a(f"s_waitcnt vmcnt({xw})")
    a.label("L_R_pollX")
    for x, v in enumerate((19, 28, 29)):
        if XBF: a(f"buffer_load_dword v{44+x}, v{v}, s[4:7], s42 offen sc1")
        elif XPUSH: a(f"buffer_load_dwordx2 v[{32+2*x}:{33+2*x}], v18, s[4:7], s42 offen offset:{512*(x+1)} sc1")
        else: a(f"buffer_load_dwordx2 v[{32+2*x}:{33+2*x}], v{v}, s[4:7], s42 offen sc1")
    spin_guard(a, 39)
    if XBF: a(f"""v_lshlrev_b32 v32, 16, v44
v_and_b32 v33, 0xffff0000, v44
v_pk_add_f32 v[40:41], v[{D}:{D+1}], v[32:33]
v_lshlrev_b32 v34, 16, v45
v_and_b32 v35, 0xffff0000, v45
v_lshlrev_b32 v36, 16, v46
v_and_b32 v37, 0xffff0000, v46
v_pk_add_f32 v[42:43], v[34:35], v[36:37]
v_pk_add_f32 v[40:41], v[40:41], v[42:43]
v_cvt_pk_bf16_f32 v40, v40, v41
v_max3_u32 v14, v44, v45, v46""")
    else: a(f"""v_pk_add_f32 v[40:41], v[{D}:{D+1}], v[32:33]
v_max3_u32 v14, v32, v33, v34
v_pk_add_f32 v[42:43], v[34:35], v[36:37]
v_max3_u32 v15, v35, v36, v37
v_pk_add_f32 v[40:41], v[40:41], v[42:43]
v_cvt_pk_bf16_f32 v40, v40, v41
v_max_u32 v14, v14, v15""")
    a(f"""v_cmp_eq_u32 vcc, s41, v14
v_mov_b32_dpp v41, v40 quad_perm:[1,0,3,2] row_mask:0xf bank_mask:0xf
v_perm_b32 v40, v41, v40, v30
s_cbranch_vccnz L_R_pollX
buffer_store_dword v40, v20, s[4:7], s43 offen @loc""")
    stamp(a, 3)
    a("s_barrier")
    if STAMP: a("s_sub_u32 s84, s39, s91")
    stamp_flush(a, 6, row_s=20)
    a(f"""s_add_u32 s20, s20, 1
s_cmp_lt_u32 s20, 63
s_cbranch_scc1 L_R_loop
s_endpgm""")
    a.dup_end("L_R_safe")

def role_V(a):
    a.label("L_V")
    def wv(c, t):
        f = c * 3 + t
        return ('a', 240 + 8 * f) if f < 2 else ('v', 128 + 8 * (f - 2))
    a("s_mul_i32 s32, s18, 384\ns_mul_i32 s33, s18, 245760")
    st = [dict(kind='O', srd=12, stride=1280, col=33, style='nat', row0=64 * (q >> 2) + 32 * ((q >> 1) & 1) + 4 * (q & 1),
               dests=(lambda t, qq, q=q: ('a', (t * 3 + (q >> 2)) * 8 + 2 * (q & 3)))) for q in range(12)]
    sv = w_stages(8, 12288, 32, 'sp', lambda c, t, q: (wv(c, t)[0], wv(c, t)[1] + 2 * q), resident=(6, 7, 8, 9))
    st = [x for c in range(6) for x in (st[2*c], sv[c], st[2*c+1])] + sv[6:]
    aW = loader(a, st, 0, 40, True, depth=DA, pol=PA, needpar=True)
    a("s_mul_i32 s22, s17, 6144\nv_lshlrev_b32 v4, 4, v1\nv_add_u32 v4, s22, v4\nv_add_u32 v5, 49152, v4")
    mem_poll_setup(a, 10)
    idx_reg(a, 16)
    VIMG = 4 * SLOT
    a(f"""v_lshlrev_b32 v18, 4, v1
v_add_u32 v18, {MEMLDS}, v18
s_mul_i32 s22, s17, 768
v_lshlrev_b32 v19, 6, v2                ; rows 2g (+32B: 2g+1)
v_bfe_u32 v15, v1, 1, 1
v_lshl_add_u32 v19, v15, 4, v19
v_bfe_u32 v15, v1, 2, 2
v_lshl_add_u32 v19, v15, 2, v19
v_and_b32 v15, 1, v1
v_lshl_add_u32 v19, v15, 1, v19
v_add_u32 v19, s22, v19
v_add_u32 v19, {VIMG}, v19
v_lshlrev_b32 v20, 4, v1
v_add_u32 v20, {VIMG}, v20
v_mov_b32 v15, v2
s_mul_i32 s22, s17, 10
v_add_u32 v15, s22, v15
v_lshlrev_b32 v21, 11, v15              ; ct*2K
s_and_b32 s22, s18, 7
s_lshl_b32 s22, s22, 8
v_add_u32 v21, s22, v21
v_lshl_add_u32 v21, v3, 4, v21
s_mov_b32 s41, {hex(SENT)}
s_mov_b32 s39, 0
s_mov_b32 s20, 0""")
    M = 24; ACC = 64; WIN = 80; VA = 80; P = 24; YA = 24
    for j in range(4): a(f"v_mov_b32 v{124+j}, s41")
    ring_setup(a)
    flag_addr(a, 35, ROLE_T, 18, 17)
    a("s_cmp_eq_u32 s17, 1\ns_cselect_b32 s35, s35, 0xf0000000")
    a(f"""s_lshr_b32 s44, s18, 3
s_mul_i32 s44, s44, 81920
s_add_u32 s44, s44, {Y_OFF}
v_mov_b32 v22, 0
s_cmp_lg_u32 s74, 0
s_cbranch_scc1 L_V_safe""")
    a.dup_begin()
    def winread(c, t, w):
        off = (c - 6) * SLOT + t * 2048
        base = 4
        if off >= 49152: base = 5; off -= 49152
        return [f"ds_read_b128 v[{WIN+8*w+4*hh}:{WIN+8*w+4*hh+3}], v{base} offset:{off + hh*1024}" for hh in range(2)]
    a.label("L_V_loop")
    ring_off(a, 40, 0)
    a(f"s_add_u32 s42, s40, {RING_Y}\nv_mov_b32 v23, s20")
    for j in range(4):
        for x in winread(6 + j, 0, j): a(x)
    for j in range(0, 12, 2): a(f"v_mov_b64 v[{ACC+j}:{ACC+j+1}], 0")
    a("s_waitcnt lgkmcnt(0)")
    mem_poll(a, "L_V_poll", 10, (112, 116, 120), (6, 76, 2), 15)
    for c in (6, 7, 8, 9, 0, 1): a(f"ds_read_b128 v[{M+4*c}:{M+4*c+3}], v18 offset:{c*1024}")
    def post_v(t):
        d = ACC + 4 * t
        return [f"v_add_f32 v{d}, v{d}, v{d+1}", f"v_add_f32 v{d+2}, v{d+2}, v{d+3}", f"v_cvt_pk_bf16_f32 v{d}, v{d}, v{d+2}",
                f"ds_write_b16 v19, v{d} offset:{t*256}", f"ds_write_b16_d16_hi v19, v{d} offset:{t*256+32}"]
    seq = [(0, 6), (0, 7), (0, 8), (0, 9)] + [(t, c) for c in range(6) for t in (0, 1)] + [(1, 6), (1, 7), (1, 8), (1, 9)] \
        + [(2, c) for c in range(10)]
    slots = []
    for t, c in seq:
        d = ACC + 4 * t
        if c >= 6: src = f"v[{WIN+8*(c-6)}:{WIN+8*(c-6)+7}]"
        else: src = R(*wv(c, t), 8)
        slots.append((f"v_smfmac_f32_16x16x64_bf16 v[{d}:{d+3}], v[{M+4*c}:{M+4*c+3}], {src}, v16", []))
    for j, c in enumerate((2, 3, 4, 5)): slots[j][1].append(f"ds_read_b128 v[{M+4*c}:{M+4*c+3}], v18 offset:{c*1024}")
    for j in range(4):
        r = winread(6 + j, 1, j); slots[4 + 2*j][1].append(r[0]); slots[5 + 2*j][1].append(r[1])
        r = winread(6 + j, 2, j); slots[16 + 2*j][1].append(r[0]); slots[17 + 2*j][1].append(r[1])
    slots[13][1].append("s_waitcnt vmcnt(0)")
    for j, x in enumerate(post_v(0)): slots[(19, 20, 21, 24, 24)[j]][1].append(x)
    for j, x in enumerate(post_v(1)): slots[(22, 23, 24, 28, 29)[j]][1].append(x)
    slots[14][1].extend(["s_mov_b64 exec, 1", "buffer_store_dword v23, v22, s[4:7], s35 offen sc1", "s_mov_b64 exec, -1"])
    emit_stream(a, slots)
    for j in range(0, 8, 2): a(f"v_mov_b64 v[{YA+j}:{YA+j+1}], 0")
    for x in post_v(2): a(x)
    for j in range(8, 40, 2): a(f"v_mov_b64 v[{YA+j}:{YA+j+1}], 0")
    stamp(a, 2)
    a("s_waitcnt lgkmcnt(0)\ns_barrier")
    for c in range(3): a(f"ds_read_b128 v[{VA+4*c}:{VA+4*c+3}], v20 offset:{c*1024}")
    YO = 112
    def post_y(t):
        d = YA + 4 * t
        return [f"v_add_f32 v{d}, v{d}, v{d+1}", f"v_add_f32 v{d+2}, v{d+2}, v{d+3}", f"v_cvt_pk_bf16_f32 v{YO+t}, v{d}, v{d+2}"]
    def xpose(gp):
        o = YO + 4 * gp
        return [f"v_permlane32_swap_b32 v{o}, v{o+2}", f"v_permlane32_swap_b32 v{o+1}, v{o+3}",
                f"v_permlane16_swap_b32 v{o}, v{o+1}", f"v_permlane16_swap_b32 v{o+2}, v{o+3}"]
    def store_y(gp):
        o = YO + 4 * gp
        return [f"s_add_u32 s26, s42, {gp*8192}", f"buffer_store_dwordx4 v[{o}:{o+3}], v21, s[4:7], s26 offen @loc"]
    slots = []
    for t in range(10):
        d = YA + 4 * t
        for c in range(3):
            slots.append((f"v_smfmac_f32_16x16x64_bf16 v[{d}:{d+3}], v[{VA+4*c}:{VA+4*c+3}], a[{(t*3+c)*8}:{(t*3+c)*8+7}], v16", []))
    for t in range(8):
        for j, x in enumerate(post_y(t)): slots[3*t + 4 + j][1].append(x)
    for j, x in enumerate(xpose(0)): slots[17 + j][1].append(x)
    slots[21][1].extend(store_y(0))
    p8 = post_y(8)
    slots[28][1].append(p8[0]); slots[29][1].append(p8[1])
    emit_stream(a, slots)
    for x in [p8[2]] + xpose(1) + store_y(1) + post_y(9) + xpose(2): a(x)
    st2 = store_y(2)
    for x in [st2[0], "s_mov_b32 exec_hi, 0", st2[1], "s_mov_b32 exec_hi, -1"]: a(x)
    stamp(a, 3)
    a(f"s_xor_b32 s42, s42, {2 << 17}\ns_mul_i32 s43, s20, {Y_STR}\ns_add_u32 s43, s43, s44")
    for gp in range(3):
        if gp == 2: a("s_mov_b32 exec_hi, 0")
        a(f"""s_add_u32 s26, s42, {gp*8192}
buffer_store_dwordx4 v[124:127], v21, s[4:7], s26 offen @loc
s_add_u32 s26, s43, {gp*8192}
buffer_store_dwordx4 v[{YO+4*gp}:{YO+4*gp+3}], v21, s[4:7], s26 offen sc1""")
    a("s_mov_b32 exec_hi, -1")
    stamp_flush(a, 4, row_s=20)
    a(f"""s_add_u32 s20, s20, 1
s_cmp_lt_u32 s20, 64
s_cbranch_scc1 L_V_loop
v_mov_b32 v23, s20
s_waitcnt vmcnt(0)
s_barrier
s_mov_b64 exec, 1
buffer_store_dword v23, v22, s[4:7], s35 offen sc1
s_endpgm""")
    a.dup_end("L_V_safe")

SCL = (192 ** -0.5) * math.log2(math.e)
def xlane(a, op, v, t, ror8):
    if ror8: a(f"{op}_dpp v{v}, v{v}, v{v} row_ror:8 row_mask:0xf bank_mask:0xf")
    a(f"v_mov_b32 v{t}, v{v}\nv_permlane16_swap_b32 v{t}, v{v}\n{op} v{v}, v{v}, v{t}")
    a(f"v_mov_b32 v{t}, v{v}\nv_permlane32_swap_b32 v{t}, v{v}\n{op} v{v}, v{v}, v{t}")

def dpp8(a, op, v):
    for m in ("quad_perm:[1,0,3,2]", "quad_perm:[2,3,0,1]", "row_half_mirror"):
        a(f"{op}_dpp v{v}, v{v}, v{v} {m} row_mask:0xf bank_mask:0xf")

def role_A(a):
    a.label("L_A")
    def fr(m, c, t):
        f = (c * 3 + t) if m == 0 else (24 + c * 3 + t)
        return ('a', 8 * f) if f < 32 else ('v', 152 + 8 * (f - 32))
    a("s_mul_i32 s32, s18, 384")
    sq = w_stages(8, 12288, 32, 'sp', lambda c, t, q: (fr(0, c, t)[0], fr(0, c, t)[1] + 2 * q), resident=(8, 9))
    sk = w_stages(12, 12288, 32, 'sp', lambda c, t, q: (fr(1, c, t)[0], fr(1, c, t)[1] + 2 * q), resident=(7, 8, 9))
    st = [x for c in range(10) for x in (sq[c], sk[c])]
    resid = {(1, 7): 0, (0, 8): 1, (1, 8): 2, (0, 9): 3, (1, 9): 4}
    aW = loader(a, st, 3, 40, True, depth=DA, pol=PA, needpar=True)
    a("s_mul_i32 s22, s17, 6144\nv_lshlrev_b32 v4, 4, v1\nv_add_u32 v4, s22, v4\nv_add_u32 v5, 61440, v4")
    mem_poll_setup(a, 10)
    idx_reg(a, 16)
    SP = MEMLDS + 10240
    SROW = 176; SWV = 8 * SROW
    XP = 5 * SLOT
    a(f"""v_lshlrev_b32 v30, 4, v1                ; lane*16
v_add_u32 v18, {MEMLDS}, v30
v_mul_u32_u24 v19, {SROW}, v3
v_lshl_add_u32 v19, v2, 4, v19
s_mul_i32 s22, s17, {SWV}
s_add_u32 s22, s22, {SP}
v_add_u32 v19, s22, v19
v_lshrrev_b32 v31, 3, v1                ; i
v_mul_u32_u24 v21, {SROW}, v31
v_add_u32 v21, {SP}, v21
v_and_b32 v15, 1, v1
v_lshl_add_u32 v21, v15, 4, v21
v_bfe_u32 v15, v1, 1, 1                 ; hf
v_lshl_add_u32 v20, v15, 6, v21
v_lshl_add_u32 v21, v15, 3, v21
v_add_u32 v21, 128, v21
v_bfe_u32 v15, v1, 2, 1
v_lshl_add_u32 v20, v15, 5, v20
s_and_b32 s22, s18, 7
s_mul_i32 s22, s22, 640
s_add_u32 s22, s22, {RING_P}
v_lshlrev_b32 v22, 8, v15
v_lshl_add_u32 v22, v31, 5, v22
v_and_b32 v15, 3, v1
v_lshl_add_u32 v22, v15, 3, v22
v_add_u32 v22, s22, v22
v_lshlrev_b32 v23, 4, v31
v_lshl_add_u32 v23, v15, 2, v23
v_add_u32 v23, s22, v23
v_add_u32 v23, 512, v23""")
    SEL = 6
    a(f"""v_lshlrev_b32 v15, 1, v2
v_sub_u32 v15, v3, v15                  ; n - 2g
v_mov_b32 v26, 0x3f80
v_mov_b32 v27, 0x3f800000""")
    for j in range(2):
        base = (0, 8)[j]
        a(f"""v_mov_b32 v{SEL+j}, 0
v_cmp_eq_u32 vcc, {base}, v15
v_cndmask_b32 v{SEL+j}, v{SEL+j}, v26, vcc
v_cmp_eq_u32 vcc, {base+1}, v15
v_cndmask_b32 v{SEL+j}, v{SEL+j}, v27, vcc""")
    a("""v_bfe_u32 v26, v1, 1, 3
s_and_b32 s22, s17, 1
s_lshl_b32 s22, s22, 3
v_add_u32 v26, s22, v26                 ; query n
v_and_b32 v27, 1, v1                    ; p
v_lshlrev_b32 v15, 2, v2
v_lshl_add_u32 v15, v27, 1, v15
v_sub_u32 v15, v26, v15                 ; n - (4g + 2p)""")
    for r in range(2): a(f"v_cmp_le_i32 s[{44+2*r}:{45+2*r}], {r}, v15")
    a("s_nop 4\ns_cmp_ge_u32 s17, 2")
    for r in range(2):
        a(f"s_cselect_b64 s[{48+2*r}:{49+2*r}], s[{44+2*r}:{45+2*r}], 0\ns_cselect_b64 s[{44+2*r}:{45+2*r}], -1, s[{44+2*r}:{45+2*r}]")
    a(f"""s_mul_i32 s22, s17, 5120
s_add_u32 s22, s22, {XP}
v_add_u32 v17, s22, v30
v_lshlrev_b32 v28, 4, v26
v_lshl_add_u32 v28, v27, 3, v28         ; n*16 + p*8
v_lshl_add_u32 v31, v2, 8, v28
s_lshr_b32 s22, s17, 1
s_lshl_b32 s22, s22, 11
s_add_u32 s22, s22, {XP}
v_add_u32 v0, s22, v31
v_add_u32 v0, 1024, v0
v_and_b32 v15, 1, v2
v_lshlrev_b32 v14, 4, v26
v_lshl_add_u32 v14, v15, 3, v14
v_lshl_add_u32 v14, v27, 8, v14
v_add_u32 v14, s22, v14
v_add_u32 v14, 512, v14
v_mov_b32 v3, v28
s_mul_i32 s36, s18, 12288
s_mul_i32 s22, s17, 3072
s_add_u32 s36, s36, s22
s_lshr_b32 s22, s17, 1
s_lshl_b32 s37, s22, 15
s_lshl_b32 s23, s18, 10
s_add_u32 s37, s37, s23
s_add_u32 s37, s37, {PX_OFF}
s_lshl_b32 s38, s22, 13
s_lshl_b32 s23, s18, 8
s_add_u32 s38, s38, s23
s_add_u32 s38, s38, {PXM_OFF}
v_and_b32 v2, 1, v1
v_mul_u32_u24 v2, {(ROLE_Q - ROLE_K) * FSTR}, v2
v_mov_b32 v1, v30
s_mov_b32 s62, {hex(f2u(SCL))}
s_mov_b32 s63, {hex(f2u(SCL))}
s_mov_b32 s64, 0xff800000
s_mov_b32 s65, {hex(f2u(-1e9 / (192 ** -0.5)))}
s_mov_b32 s66, 0x00ff00ff
s_mov_b32 s67, 0x00ff00ff
s_mov_b32 s68, 0x0f0f0f0f
s_mov_b32 s69, 0x0f0f0f0f
s_mov_b32 s70, 0
s_mov_b32 s41, {hex(SENT)}
s_mov_b32 s39, 0
s_mov_b32 s20, 0""")
    flag_addr(a, 35, ROLE_K, 18, 17)
    a(f"s_add_u32 s72, s35, {(ROLE_PX - ROLE_K) * FSTR}\ns_cmp_eq_u32 s17, 1\ns_cselect_b32 s72, s72, 0xf0000000\nv_mov_b32 v8, s41\nv_mov_b32 v9, s41\nv_add_u32 v30, {2*SWV}, v21")
    X = 24; M = 32; ACC = 72; WIN = 88; KX = 104; KN = 116; QX = 128; S = 140
    P = M
    ring_setup(a)
    kxsrc = [0, 1, 4, 5, 2, 3, 6, 7, 8, 9, 10, 11]
    def winread(m, c, t, w):
        off = resid[(m, c)] * SLOT + t * 2048; base = 4
        if off + 1024 > 65535: base = 5; off -= 61440
        return [f"ds_read_b128 v[{WIN+8*w+4*hh}:{WIN+8*w+4*hh+3}], v{base} offset:{off + hh*1024}" for hh in range(2)]
    regs_ = []
    for c in range(6): regs_ += [(0, c), (1, c)]
    regs_ += [(1, 6), (0, 6), (0, 7)]
    lds_ = [(0, 8), (1, 8), (0, 9), (1, 9), (1, 7)]
    seq = []
    for i in range(5): seq += [lds_[i]] + regs_[3*i:3*i+3]
    QF = os.environ.get('QF', '1') == '1'
    lds2 = [(0, 8), (0, 9), (1, 7), (1, 8), (1, 9)]; regs2 = [(0, c) for c in range(8)] + [(1, c) for c in range(7)]
    seq2 = []
    for i in range(5): seq2 += [lds2[i]] + regs2[3*i:3*i+3]
    if not QF: lds2, seq2 = lds_, seq
    ldsfr = [(m, c, t) for t in range(2) for (m, c) in lds_] + [(m, c, 2) for (m, c) in lds2]
    def waitflags(lbl):
        a(f"s_cmp_ge_u32 s70, s31\ns_cbranch_scc1 {lbl}_ok")
        a(f"s_branch {lbl}_in")
        a.label(lbl)
        a("s_sleep 3")
        a.label(lbl + "_in")
        a("buffer_load_dword v15, v2, s[4:7], s35 offen sc1")
        spin_guard(a, 39)
        a(f"s_waitcnt vmcnt(0)\nv_readlane_b32 s70, v15, 0\nv_readlane_b32 s71, v15, 1\ns_nop 0\ns_min_u32 s70, s70, s71\ns_cmp_lt_u32 s70, s31\ns_cbranch_scc1 {lbl}")
        a.label(lbl + "_ok")
    if DIAG: a("s_memrealtime s[82:83]\ns_waitcnt lgkmcnt(0)")
    a("s_mov_b32 s31, 1")
    waitflags("L_A_f0")
    a(f"s_add_u32 s23, s36, {KX_OFF}")
    for t in range(3): a(f"buffer_load_dwordx4 v[{KN+4*t}:{KN+4*t+3}], v1, s[4:7], s23 offen offset:{t*1024} sc1")
    a("s_waitcnt vmcnt(0)\ns_cmp_lg_u32 s74, 0\ns_cbranch_scc1 L_A_safe")
    a.dup_begin()
    a.label("L_A_loop")
    a("s_add_u32 s31, s20, 2\ns_min_u32 s31, s31, 64")
    waitflags("L_A_fl")
    for j in range(0, 12, 2): a(f"v_mov_b64 v[{KX+j}:{KX+j+1}], v[{KN+kxsrc[j]}:{KN+kxsrc[j]+1}]")
    ring_off(a, 40, 0)
    a("s_add_u32 s22, s20, 3\ns_min_u32 s22, s22, 64\ns_cmp_lt_u32 s70, s22\ns_cselect_b32 s64, s35, 0xf0000000")
    a(f"""s_add_u32 s23, s20, 1
s_min_u32 s23, s23, 63
s_mul_i32 s23, s23, {32*12288}
s_add_u32 s23, s23, s36
s_add_u32 s42, s23, {KX_OFF}
s_mul_i32 s23, s20, {32*12288}
s_add_u32 s23, s23, s36
s_add_u32 s43, s23, {QX_OFF}""")
    for x in winread(*ldsfr[0], 0) + winread(*ldsfr[1], 1): a(x)
    for j in range(0, 16, 2): a(f"v_mov_b64 v[{ACC+j}:{ACC+j+1}], 0")
    a("s_waitcnt lgkmcnt(0)")
    mem_poll(a, "L_A_poll", 10, (S, S + 4, S + 8), (QX, QX + 4, QX + 8), 15)
    corder = []
    for (m, c) in seq:
        if c not in corder: corder.append(c)
    mread = lambda c: f"ds_read_b128 v[{M+4*c}:{M+4*c+3}], v18 offset:{c*1024}"
    if STAMP: a("s_sub_u32 s86, s39, s91")
    if DIAG: a("s_cmp_lg_u32 s20, 1\ns_cbranch_scc1 L_dg1\ns_memrealtime s[78:79]\ns_waitcnt lgkmcnt(0)\nL_dg1:")
    for c in corder[:6]: a(mread(c))
    slots = []
    for t in range(3):
        dq = ACC + 8 * (t % 2)
        for n, (m, c) in enumerate(seq if t < 2 else seq2):
            d = dq + 4 * m
            if (m, c) in resid:
                k = 5 * t + n // 4; w = k % 2
                src = f"v[{WIN+8*w}:{WIN+8*w+7}]"
            else: src = R(*fr(m, c, t), 8)
            slots.append([f"v_smfmac_f32_16x16x64_bf16 v[{d}:{d+3}], v[{M+4*c}:{M+4*c+3}], {src}, v16", []])
    for k in range(13):
        r = winread(*ldsfr[k + 2], k % 2)
        slots[4*k][1].append(r[0]); slots[4*k + 1][1].append(r[1])
        slots[4*k + 7][1].append(f"@touch v[{WIN+8*(k%2)}:{WIN+8*(k%2)+7}]")
    for j, c in enumerate(corder[6:]): slots[(2, 3, 6, 10)[j]][1].insert(0, mread(c))
    slots[13][1].append("s_waitcnt vmcnt(1)" if 'a' in os.environ.get('RF', 'r') else "s_waitcnt vmcnt(0)")
    for t in range(3):
        slots[(14, 18, 22)[t]][1].append(f"buffer_load_dwordx4 v[{QX+4*t}:{QX+4*t+3}], v1, s[4:7], s43 offen offset:{t*1024} sc1 {NTK}")
        slots[(26, 30, 34)[t]][1].append(f"buffer_load_dwordx4 v[{KN+4*t}:{KN+4*t+3}], v1, s[4:7], s42 offen offset:{t*1024} sc1 {NTK}")
    RF = os.environ.get('RF', 'r')
    if 'a' in RF: slots[11][1].append("buffer_load_dword v15, v2, s[4:7], s64 offen sc1")
    FS = int(os.environ.get('FS', 15))
    slots[FS - (2 if FS > 15 else 1)][1].append(f"v_mov_b32 v{S}, s20")
    slots[FS][1] += ["s_mov_b64 exec, 1", f"buffer_store_dword v{S}, v1, s[4:7], s72 offen sc1", "s_mov_b64 exec, -1"]
    def cvts(t):
        dq = ACC + 8 * (t % 2); dk = dq + 4
        return [f"v_add_f32 v{dk}, v{dk}, v{dk+1}", f"v_add_f32 v{dk+2}, v{dk+2}, v{dk+3}", f"v_cvt_pk_bf16_f32 v{dk+1}, v{dk}, v{dk+2}",
                f"v_add_f32 v{dq}, v{dq}, v{dq+1}", f"v_add_f32 v{dq+2}, v{dq+2}, v{dq+3}", f"v_cvt_pk_bf16_f32 v{dk}, v{dq}, v{dq+2}"]
    def tmf(t):
        dq = ACC + 8 * (t % 2); dk = dq + 4
        return f"v_mfma_f32_16x16x16_bf16 v[{dq}:{dq+3}], v[{dk}:{dk+1}], v[{SEL}:{SEL+1}], 0"
    def xcv(t):
        dq = ACC + 8 * (t % 2); x = X + 2 * t
        return [f"v_cvt_pk_bf16_f32 v{x}, v{dq}, v{dq+1}", f"v_cvt_pk_bf16_f32 v{x+1}, v{dq+2}, v{dq+3}"]
    extra = {}
    for t in (0, 1):
        b = 20 * (t + 1)
        for j, x in enumerate(cvts(t)): slots[b + j][1].append(x)
        extra[b + 6] = [tmf(t)]
        for j, x in enumerate(xcv(t)): slots[b + 9 + j][1].append(x)
    for j in range(4): slots[31 + j][1].append(f"v_mov_b64 v[{ACC+2*j}:{ACC+2*j+1}], 0")
    sc32 = [f"v_mfma_f32_16x16x32_bf16 v[{S+4*j}:{S+4*j+3}], v[{src}:{src+3}], v[{X}:{X+3}], 0" for j, src in enumerate((X, KX, KX + 4))]
    Y = ACC + 12; XQ = ACC + 14
    if QF:
        slots[52][1].append(f"v_add_f32 v{ACC}, v{ACC}, v{ACC+1}"); slots[53][1].append(f"v_add_f32 v{ACC+2}, v{ACC+2}, v{ACC+3}")
        slots[54][1].append(f"v_cvt_pk_bf16_f32 v{Y}, v{ACC}, v{ACC+2}")
        extra[52] = [sc32[1]]; extra[53] = [sc32[2]]
        extra[55] = [f"v_mfma_f32_16x16x16_bf16 v[{ACC+8}:{ACC+11}], v[{Y}:{Y+1}], v[{SEL}:{SEL+1}], 0"]
        slots[57][1].append(f"v_cvt_pk_bf16_f32 v{XQ}, v{ACC+8}, v{ACC+9}"); slots[58][1].append(f"v_cvt_pk_bf16_f32 v{XQ+1}, v{ACC+10}, v{ACC+11}")
    full = []
    for i, (mf, fl) in enumerate(slots):
        full.append((mf, fl))
        for e in extra.get(i, []): full.append((e, []))
    emit_stream(a, full)
    if QF:
        dk = ACC + 4
        for j in (1, 2): a(f"v_mfma_f32_16x16x16_bf16 v[{S+4*j}:{S+4*j+3}], v[{KX+6+2*j}:{KX+7+2*j}], v[{XQ}:{XQ+1}], v[{S+4*j}:{S+4*j+3}]")
        a(f"""v_add_f32 v{dk}, v{dk}, v{dk+1}
v_add_f32 v{dk+2}, v{dk+2}, v{dk+3}
v_cvt_pk_bf16_f32 v{Y+1}, v{dk}, v{dk+2}
v_mfma_f32_16x16x16_bf16 v[{ACC}:{ACC+3}], v[{Y}:{Y+1}], v[{SEL}:{SEL+1}], 0
s_mov_b64 exec, s[66:67]
ds_write_b128 v19, v[{S+4}:{S+7}]
s_mov_b64 exec, -1""")
        a(sc32[0])
        for x in xcv(2): a(x)
        a(f"""v_mfma_f32_16x16x16_bf16 v[{S}:{S+3}], v[{X+4}:{X+5}], v[{X+4}:{X+5}], v[{S}:{S+3}]
s_mov_b64 exec, s[66:67]
ds_write_b128 v19, v[{S+8}:{S+11}] offset:64
s_mov_b32 exec_lo, 0
ds_write_b128 v19, v[{S}:{S+3}] offset:96""")
    else:
        cv = cvts(2)
        for x in (cv[0], sc32[0], cv[1], cv[2], sc32[1], cv[3], cv[4], cv[5], tmf(2), sc32[2]): a(x)
        for x in xcv(2): a(x)
        for j, src in enumerate((X + 4, KX + 8, KX + 10)):
            a(f"v_mfma_f32_16x16x16_bf16 v[{S+4*j}:{S+4*j+3}], v[{src}:{src+1}], v[{X+4}:{X+5}], v[{S+4*j}:{S+4*j+3}]")
        a("s_mov_b64 exec, s[66:67]")
        for j in range(3): a(f"ds_write_b128 v19, v[{S+4*j}:{S+4*j+3}] offset:{(96, 0, 64)[j]}")
    stamp(a, 2)
    a("s_mov_b64 exec, -1\ns_cmp_lg_u32 s17, 0\ns_waitcnt lgkmcnt(0)\ns_barrier\ns_cbranch_scc1 L_A_x")
    T = M
    a(f"""ds_read_b128 v[{T}:{T+3}], v20
ds_read_b128 v[{T+8}:{T+11}], v20 offset:{SWV}
ds_read2_b64 v[{T+4}:{T+7}], v21 offset0:0 offset1:{SWV//8}
ds_read_b128 v[{T+12}:{T+15}], v20 offset:{2*SWV}
ds_read_b128 v[{T+16}:{T+19}], v20 offset:{3*SWV}
ds_read2_b64 v[{T+20}:{T+23}], v30 offset0:0 offset1:{SWV//8}
v_pk_add_f32 v[{T}:{T+1}], v[{T}:{T+1}], v[{T+8}:{T+9}]
v_pk_add_f32 v[{T+2}:{T+3}], v[{T+2}:{T+3}], v[{T+10}:{T+11}]
v_pk_add_f32 v[{T+4}:{T+5}], v[{T+4}:{T+5}], v[{T+6}:{T+7}]
v_pk_add_f32 v[{T}:{T+1}], v[{T}:{T+1}], v[{T+12}:{T+13}]
v_pk_add_f32 v[{T+2}:{T+3}], v[{T+2}:{T+3}], v[{T+14}:{T+15}]
v_pk_add_f32 v[{T}:{T+1}], v[{T}:{T+1}], v[{T+16}:{T+17}]
v_pk_add_f32 v[{T+2}:{T+3}], v[{T+2}:{T+3}], v[{T+18}:{T+19}]
v_pk_add_f32 v[{T+4}:{T+5}], v[{T+4}:{T+5}], v[{T+20}:{T+21}]
v_max3_f32 v{T+8}, v{T}, v{T+1}, v{T+2}
v_pk_add_f32 v[{T+4}:{T+5}], v[{T+4}:{T+5}], v[{T+22}:{T+23}]
v_max_f32 v{T+8}, v{T+8}, v{T+3}
v_max3_f32 v{T+8}, v{T+8}, v{T+4}, v{T+5}""")
    mx = T + 8
    if os.environ.get('LM', '1') == '1':
        rm = T + 10; D8 = ("quad_perm:[1,0,3,2]", "quad_perm:[2,3,0,1]", "row_half_mirror")
        fm = lambda j: f"v_pk_fma_f32 v[{T+j}:{T+j+1}], v[{T+j}:{T+j+1}], s[62:63], v[{mx}:{mx+1}] op_sel_hi:[1,1,0] neg_lo:[0,0,1] neg_hi:[0,0,1]"
        a(f"""v_mul_f32 v{mx}, s62, v{mx}
{fm(0)}
{fm(2)}
v_max_f32_dpp v{rm}, v{mx}, v{mx} {D8[0]} row_mask:0xf bank_mask:0xf
{fm(4)}
v_exp_f32 v{T}, v{T}
v_max_f32_dpp v{rm}, v{rm}, v{rm} {D8[1]} row_mask:0xf bank_mask:0xf
v_exp_f32 v{T+1}, v{T+1}
v_exp_f32 v{T+2}, v{T+2}
v_max_f32_dpp v{rm}, v{rm}, v{rm} {D8[2]} row_mask:0xf bank_mask:0xf
v_exp_f32 v{T+3}, v{T+3}
v_sub_f32 v{rm}, v{mx}, v{rm}
v_exp_f32 v{T+4}, v{T+4}
v_exp_f32 v{T+5}, v{T+5}
v_exp_f32 v{rm}, v{rm}
v_pk_add_f32 v[{mx}:{mx+1}], v[{T}:{T+1}], v[{T+2}:{T+3}]
v_pk_fma_f32 v[{mx}:{mx+1}], v[{T+4}:{T+5}], 0.5, v[{mx}:{mx+1}] op_sel_hi:[1,0,1]
v_add_f32 v{mx}, v{mx}, v{mx+1}
v_mul_f32 v{mx}, v{mx}, v{rm}""")
        sc = lambda j: f"v_pk_mul_f32 v[{T+j}:{T+j+1}], v[{T+j}:{T+j+1}], v[{rm}:{rm+1}] op_sel_hi:[1,0]"
        a(f"""{sc(0)}
{sc(2)}
v_add_f32_dpp v{mx}, v{mx}, v{mx} {D8[0]} row_mask:0xf bank_mask:0xf
{sc(4)}
v_add_f32_dpp v{mx}, v{mx}, v{mx} {D8[1]} row_mask:0xf bank_mask:0xf
v_add_f32_dpp v{mx}, v{mx}, v{mx} {D8[2]} row_mask:0xf bank_mask:0xf
v_rcp_f32 v{mx}, v{mx}""")
    else:
        dpp8(a, "v_max_f32", mx)
        a(f"v_mul_f32 v{mx}, s62, v{mx}")
        for j in (0, 2, 4): a(f"v_pk_fma_f32 v[{T+j}:{T+j+1}], v[{T+j}:{T+j+1}], s[62:63], v[{mx}:{mx+1}] op_sel_hi:[1,1,0] neg_lo:[0,0,1] neg_hi:[0,0,1]")
        for j in range(6): a(f"v_exp_f32 v{T+j}, v{T+j}")
        a(f"""v_pk_add_f32 v[{mx}:{mx+1}], v[{T}:{T+1}], v[{T+2}:{T+3}]
v_pk_fma_f32 v[{mx}:{mx+1}], v[{T+4}:{T+5}], 0.5, v[{mx}:{mx+1}] op_sel_hi:[1,0,1]
v_add_f32 v{mx}, v{mx}, v{mx+1}""")
        dpp8(a, "v_add_f32", mx)
        a(f"v_rcp_f32 v{mx}, v{mx}")
    a(f"""v_pk_mul_f32 v[{T}:{T+1}], v[{T}:{T+1}], v[{mx}:{mx+1}] op_sel_hi:[1,0]
v_pk_mul_f32 v[{T+2}:{T+3}], v[{T+2}:{T+3}], v[{mx}:{mx+1}] op_sel_hi:[1,0]
v_pk_mul_f32 v[{T+4}:{T+5}], v[{T+4}:{T+5}], v[{mx}:{mx+1}] op_sel_hi:[1,0]
v_cvt_pk_bf16_f32 v{T}, v{T}, v{T+1}
v_cvt_pk_bf16_f32 v{T+1}, v{T+2}, v{T+3}
buffer_store_dwordx2 v[{T}:{T+1}], v22, s[4:7], s40 offen @loc
v_cvt_pk_bf16_f32 v{T+2}, v{T+4}, v{T+5}
s_mov_b64 exec, s[68:69]
buffer_store_dword v{T+2}, v23, s[4:7], s40 offen @loc
s_mov_b64 exec, -1""")
    stamp(a, 3)
    if STAMP: a("s_waitcnt lgkmcnt(0)")
    a("s_waitcnt vmcnt(2)\ns_branch L_A_x1")
    a.label("L_A_x")
    XS = M + 12
    a("s_waitcnt vmcnt(0)")
    a.label("L_A_x1")
    if 'a' in RF: a("v_readlane_b32 s22, v15, 0\nv_readlane_b32 s71, v15, 1\ns_nop 0\ns_min_u32 s22, s22, s71\ns_max_u32 s70, s70, s22")
    a(f"v_swap_b32 v{QX+2}, v{QX+4}\nv_swap_b32 v{QX+3}, v{QX+5}")
    tl = ((0, 0), (1, 0), (0, 1), (1, 1), (2, 1))
    for j, (kt, qt) in enumerate(tl):
        src = (X, KX, KX + 4)[kt]
        a(f"v_mfma_f32_16x16x32_bf16 v[{XS+4*j}:{XS+4*j+3}], v[{src}:{src+3}], v[{QX+4*qt}:{QX+4*qt+3}], 0")
    for j, (kt, qt) in enumerate(tl):
        src = (X + 4, KX + 8, KX + 10)[kt]
        a(f"v_mfma_f32_16x16x16_bf16 v[{XS+4*j}:{XS+4*j+3}], v[{src}:{src+1}], v[{QX+8+2*qt}:{QX+9+2*qt}], v[{XS+4*j}:{XS+4*j+3}]")
    for j in range(5): a(f"ds_write_b128 v17, v[{XS+4*j}:{XS+4*j+3}] offset:{1024*j}")
    a("s_waitcnt lgkmcnt(0)\ns_barrier")
    for w in range(4): a(f"ds_read2st64_b64 v[{T+8+4*w}:{T+11+4*w}], v0 offset0:{10*w} offset1:{10*w+2}")
    for w in range(2): a(f"ds_read2st64_b64 v[{T+24+4*w}:{T+27+4*w}], v14 offset0:{20*w} offset1:{20*w+10}")
    a(f"""s_lshl_b32 s33, s20, 16
s_add_u32 s33, s33, s37
s_lshl_b32 s34, s20, 14
s_add_u32 s34, s34, s38
v_mov_b32 v{T+6}, s65""")
    for j in (0, 2):
        a(f"v_pk_add_f32 v[{T+j}:{T+j+1}], v[{T+8+j}:{T+9+j}], v[{T+12+j}:{T+13+j}]")
    for w in (2, 3):
        for j in (0, 2): a(f"v_pk_add_f32 v[{T+j}:{T+j+1}], v[{T+j}:{T+j+1}], v[{T+8+4*w+j}:{T+9+4*w+j}]")
    a(f"""v_pk_add_f32 v[{T+4}:{T+5}], v[{T+24}:{T+25}], v[{T+26}:{T+27}]
v_pk_add_f32 v[{T+28}:{T+29}], v[{T+28}:{T+29}], v[{T+30}:{T+31}]
v_pk_add_f32 v[{T+4}:{T+5}], v[{T+4}:{T+5}], v[{T+28}:{T+29}]""")
    for r in range(4): a(f"v_cndmask_b32 v{T+r}, v{T+6}, v{T+r}, s[{44+2*r}:{45+2*r}]")
    mx = T + 8; tm = T + 10
    a(f"v_max3_f32 v{mx}, v{T}, v{T+1}, v{T+2}\nv_max3_f32 v{tm}, v{T+3}, v{T+4}, v{T+5}\nv_max_f32 v{mx}, v{mx}, v{tm}")
    a(f"v_max_f32_dpp v{mx}, v{mx}, v{mx} quad_perm:[1,0,3,2] row_mask:0xf bank_mask:0xf")
    xlane(a, "v_max_f32", mx, tm, False)
    a(f"v_mul_f32 v{mx}, s62, v{mx}")
    for j in (0, 2, 4): a(f"v_pk_fma_f32 v[{T+j}:{T+j+1}], v[{T+j}:{T+j+1}], s[62:63], v[{mx}:{mx+1}] op_sel_hi:[1,1,0] neg_lo:[0,0,1] neg_hi:[0,0,1]")
    for j in range(6): a(f"v_exp_f32 v{T+j}, v{T+j}")
    a(f"""v_pk_add_f32 v[{mx}:{mx+1}], v[{T}:{T+1}], v[{T+2}:{T+3}]
v_pk_fma_f32 v[{mx}:{mx+1}], v[{T+4}:{T+5}], 0.5, v[{mx}:{mx+1}] op_sel_hi:[1,0,1]
v_add_f32 v{mx}, v{mx}, v{mx+1}
v_add_f32_dpp v{mx}, v{mx}, v{mx} quad_perm:[1,0,3,2] row_mask:0xf bank_mask:0xf""")
    xlane(a, "v_add_f32", mx, tm, False)
    a(f"v_rcp_f32 v{mx}, v{mx}")
    for j in (0, 2, 4): a(f"v_pk_mul_f32 v[{T+j}:{T+j+1}], v[{T+j}:{T+j+1}], v[{mx}:{mx+1}] op_sel_hi:[1,0]")
    a(f"""v_cvt_pk_bf16_f32 v{T}, v{T}, v{T+1}
v_cvt_pk_bf16_f32 v{T+1}, v{T+2}, v{T+3}
v_cvt_pk_bf16_f32 v{T+2}, v{T+4}, v{T+5}
buffer_store_dwordx2 v[{T}:{T+1}], v31, s[4:7], s33 offen sc1
v_permlane16_swap_b32 v{T+2}, v{T+3}
s_mov_b64 exec, 0xffff
buffer_store_dwordx2 v[{T+2}:{T+3}], v3, s[4:7], s34 offen sc1
s_mov_b64 exec, -1
s_cmp_lg_u32 s17, 0
s_cbranch_scc1 L_A_next""")
    a(f"""s_xor_b32 s23, s40, {2 << 17}
buffer_store_dwordx2 v[8:9], v22, s[4:7], s23 offen @loc
s_mov_b64 exec, s[68:69]
buffer_store_dword v8, v23, s[4:7], s23 offen @loc
s_mov_b64 exec, -1""")
    a.label("L_A_next")
    if TIMING == '2':
        a(f"""s_cmp_lg_u32 s16, 0
s_cbranch_scc1 L_tmx
s_cmp_lg_u32 s17, 1
s_cbranch_scc1 L_tmx
s_memrealtime s[86:87]
s_lshl_b32 s88, s20, 2
s_add_u32 s88, s88, {ST_OFF}
s_waitcnt lgkmcnt(0)
v_mov_b32 v15, s86
s_mov_b64 exec, 1
buffer_store_dword v15, off, s[4:7], s88
s_mov_b64 exec, -1
L_tmx:""")
    if TIMING:
        for st_, reg in ((1, 78), (4, 80), (32, 82), (63, 84)):
            a(f"s_cmp_lg_u32 s20, {st_}\ns_cbranch_scc1 L_tm{st_}\ns_memrealtime s[{reg}:{reg+1}]\ns_waitcnt lgkmcnt(0)\nL_tm{st_}:")
    stamp(a, 4); stamp_flush(a, 6, row_s=20)
    a(f"""s_add_u32 s20, s20, 1
s_cmp_lt_u32 s20, 64
s_cbranch_scc1 L_A_loop""")
    a(f"""v_mov_b32 v15, s20
s_waitcnt vmcnt(0)
s_barrier
s_mov_b64 exec, 1
buffer_store_dword v15, v1, s[4:7], s72 offen sc1
s_mov_b64 exec, -1""")
    if TIMING:
        a("s_cmp_lg_u32 s16, 0\ns_cbranch_scc1 L_exit\ns_cmp_lg_u32 s17, 0\ns_cbranch_scc1 L_exit\ns_mov_b64 exec, 1")
        for j, reg in enumerate((76, 78, 80, 82, 84)): a(f"v_mov_b32 v15, s{reg}\nbuffer_store_dword v15, off, s[96:99], 0 offset:{16+4*j}")
    if DIAG:
        x = {'0': 76, '1': 78, '2': 80, '3': 82}[DIAG]
        a(f"""s_memrealtime s[80:81]
s_waitcnt lgkmcnt(0)
s_cmp_lg_u32 s16, 0
s_cbranch_scc1 L_exit
s_sub_u32 s84, s{x}, s76
s_lshl_b32 s84, s84, 2
s_add_u32 s84, s84, 30000
s_add_u32 s84, s84, s76
L_dg2:
s_memrealtime s[86:87]
s_waitcnt lgkmcnt(0)
s_sub_u32 s85, s86, s84
s_cmp_lt_i32 s85, 0
s_cbranch_scc1 L_dg2""")
    stamp(a, 0)
    if STAMP: a("s_memtime s[78:79]")
    stamp_flush(a, 2, row=65)
    a("s_endpgm")
    a.dup_end("L_A_safe")

def gen_main():
    a = Asm()
    a(f"""s_cmp_ge_u32 s2, 256
s_cbranch_scc1 L_exit""")
    if os.environ.get('NOPF') is None:
        a("""s_getpc_b64 s[8:9]
L_pc:
s_mov_b32 s10, L_codeend-L_pc
s_mov_b32 s11, 0x20000
s_lshr_b32 s3, s2, 3
s_lshl_b32 s3, s3, 12
v_lshlrev_b32 v1, 4, v0
buffer_load_dwordx4 v[248:251], v1, s[8:11], s3 offen""")
    a(f"""s_load_dwordx2 s[24:25], s[0:1], {K_WS}
s_load_dwordx2 s[96:97], s[0:1], {K_DBG}
s_load_dwordx8 s[68:75], s[0:1], {K_WQ}
""")
    a("""s_lshr_b32 s16, s2, 3
s_lshl_b32 s16, s16, 2
s_and_b32 s3, s2, 3
s_or_b32 s16, s16, s3
s_and_b32 s3, s2, 4
s_lshl_b32 s3, s3, 5
s_or_b32 s16, s16, s3""")
    a(f"""v_lshrrev_b32 v1, 6, v0
s_nop 0
v_readfirstlane_b32 s17, v1
s_waitcnt lgkmcnt(0)
s_mov_b32 s98, 256
s_mov_b32 s99, 0x20000
s_mov_b32 s39, 0""")
    stamp(a, 0)
    if DIAG or TIMING: a("s_memrealtime s[76:77]\ns_waitcnt lgkmcnt(0)")
    srd(a, 4, 24, WS_BYTES)
    lane_decomp(a)
    WB = 640 * 6144 * 2
    import k_head
    a(f"""s_getreg_b32 s95, hwreg(HW_REG_XCC_ID, 0, 4)
s_and_b32 s95, s95, 7
s_mul_i32 s22, s95, s95
s_lshl_b32 s22, s22, 16
s_lshl_b32 s95, s95, 8
s_add_u32 s95, s95, s22
s_add_u32 s95, s95, 1
s_and_b32 s94, s16, 3
s_lshl_b32 s94, s94, 2
s_add_u32 s94, s94, {k_head.CNT_GRP}
s_cmp_ge_u32 s16, 104
s_cbranch_scc1 L_nogrp
s_cmp_lg_u32 s17, 0
s_cbranch_scc1 L_nogrp
v_mov_b32 v4, s95
s_mov_b64 exec, 1
buffer_atomic_add v4, off, s[96:99], s94
s_mov_b64 exec, -1""")
    a.label("L_nogrp")
    a(f"""s_and_b32 s18, s16, 3
s_lshl_b32 s18, s18, 3
s_bfe_u32 s22, s16, 0x30002
s_add_u32 s18, s18, s22
s_lshr_b32 s27, s16, 5                  ; 0 A, 1 V, 2-3 R/idle, 4 K, 5 V, 6 O, 7 Q
s_mov_b32 s10, {WB}
s_mov_b32 s11, 0x20000
s_mov_b32 s14, {WB}
s_mov_b32 s15, 0x20000
s_mov_b64 s[8:9], s[68:69]
s_mov_b64 s[12:13], s[70:71]
s_cmp_eq_u32 s27, 0
s_cbranch_scc1 L_A
s_mov_b64 s[8:9], s[72:73]
s_mov_b64 s[12:13], s[74:75]
s_cmp_eq_u32 s27, 1
s_cbranch_scc1 L_V
s_cmp_ge_u32 s27, 4
s_cbranch_scc1 L_work
s_sub_u32 s18, s16, 64""")
    import k_head
    k_head.role_head(a)
    a(f"""s_sub_u32 s50, s16, 104
s_mov_b32 s51, 24
s_mov_b32 s52, {T0}
s_sub_u32 s22, s16, 64
s_cmp_ge_u32 s22, 40
s_cbranch_scc1 L_T
s_lshr_b32 s18, s22, 2
s_branch L_R""")
    a.label("L_exit")
    a("s_endpgm")
    a.label("L_work")
    a(f"""s_sub_u32 s27, s27, 4
s_cmp_eq_u32 s27, {ROLE_V}
s_cbranch_scc1 L_proj
s_mov_b64 s[8:9], s[70:71]
s_cmp_eq_u32 s27, {ROLE_K}
s_cbranch_scc1 L_proj
s_mov_b64 s[8:9], s[68:69]
s_cmp_eq_u32 s27, {ROLE_Q}
s_cbranch_scc1 L_proj
s_mov_b64 s[8:9], s[74:75]
s_branch L_ow""")
    import k_tail
    role_R(a); k_tail.role_attn(a); role_proj(a); k_tail.second_role(a); k_tail.role_f1(a); k_tail.role_f2(a); role_oworker(a); role_V(a); role_A(a)
    a.label("L_codeend")
    return a.finish(), dict(vgpr=512, sgpr=100, acc=256)
```

```python
from asmgen import Asm
from layout import *
from k_prep import srd, f2u
import k_main as km
from k_main import loader, w_stages, R, SLOT, spin_guard, span_off, xlane, check, stamp, stamp_flush
import math, os

BACKOFF = int(os.environ.get('BACKOFF', 3))
def wait_flags(a, lbl, voff, base_s, need_s, cache_s=None, tmp=15):
    if cache_s is not None: a(f"s_cmp_eq_u32 s{cache_s}, 64\ns_cbranch_scc1 {lbl}_ok")
    a(f"s_branch {lbl}_in")
    a.label(lbl)
    a(f"s_sleep {BACKOFF}")
    a.label(lbl + "_in")
    a(f"buffer_load_dword v{tmp}, v{voff}, s[4:7], s{base_s} offen sc1")
    spin_guard(a, 39)
    a(f"s_waitcnt vmcnt(0)\nv_cmp_gt_u32 vcc, s{need_s}, v{tmp}\ns_cbranch_vccnz {lbl}")
    if cache_s is not None:
        a(f"v_cmp_gt_u32 vcc, 64, v{tmp}\ns_cbranch_vccnz {lbl}_ok\ns_mov_b32 s{cache_s}, 64")
        a.label(lbl + "_ok")

def put_flag(a, val_s, addr_s, vz, vt):
    a(f"v_mov_b32 v{vt}, s{val_s}\ns_waitcnt vmcnt(0)\ns_mov_b64 exec, 1\nbuffer_store_dword v{vt}, v{vz}, s[4:7], s{addr_s} offen sc1\ns_mov_b64 exec, -1")

def put_flag_wg(a, lbl, val_s, addr_s, vz, vt):
    a(f"""v_mov_b32 v{vt}, s{val_s}
s_cmp_lg_u32 s17, 0
s_waitcnt vmcnt(0)
s_barrier
s_cbranch_scc1 {lbl}
s_mov_b64 exec, 1
buffer_store_dword v{vt}, v{vz}, s[4:7], s{addr_s} offen sc1
s_mov_b64 exec, -1""")
    a.label(lbl)

def wait_flags_wg(a, lbl, voff, base_s, need_s):
    a(f"s_cmp_lg_u32 s17, 0\ns_cbranch_scc1 {lbl}_b")
    wait_flags(a, lbl, voff, base_s, need_s)
    a.label(lbl + "_b")
    a("s_barrier")

def role_attn(a):
    a.label("L_T")
    if os.environ.get('NOT'): a("s_endpgm")
    a(f"""s_load_dwordx2 s[24:25], s[0:1], {K_X}
s_waitcnt lgkmcnt(0)""")
    srd(a, 8, 24, 2048 * 1280)
    a(f"""v_lshlrev_b32 v4, 4, v1
v_mov_b32 v5, 0
s_lshl_b32 s22, s17, 13
s_add_u32 s28, s22, {U_OFF}
s_add_u32 s29, s22, {PX_OFF}
s_lshl_b32 s22, s17, 11
s_add_u32 s30, s22, {PXM_OFF}            ; PXM
s_mul_i32 s33, s17, 81920
s_add_u32 s33, s33, {Y_OFF}
v_and_b32 v6, 31, v1
v_lshlrev_b32 v6, 6, v6
v_add_u32 v6, s22, v6
v_lshrrev_b32 v7, 5, v1
v_mul_u32_u24 v7, {(ROLE_T - ROLE_PX)*FSTR}, v7
v_and_b32 v15, 31, v1
v_lshl_add_u32 v7, v15, 8, v7
v_add_u32 v7, 64, v7
s_add_u32 s34, s19, {FLAG_OFF + ROLE_O*FSTR}
s_add_u32 s35, s19, {FLAG_OFF + ROLE_PX*FSTR}
s_lshl_b32 s22, s17, 13
v_add_u32 v8, s22, v4
s_lshr_b32 s53, s17, 1
s_and_b32 s54, s17, 1
s_lshl_b32 s24, s53, 12
s_lshl_b32 s25, s54, 10
s_add_u32 s24, s24, s25
v_add_u32 v9, s24, v4
v_mul_u32_u24 v10, 1280, v3
v_lshl_add_u32 v10, v2, 3, v10
v_lshrrev_b32 v15, 1, v2
v_lshlrev_b32 v11, 8, v15
v_lshl_add_u32 v11, v3, 4, v11
v_and_b32 v15, 1, v2
v_lshl_add_u32 v11, v15, 9, v11
v_lshlrev_b32 v12, 3, v3
v_lshlrev_b32 v13, 4, v2
s_mov_b32 s39, 0
s_mov_b32 s46, 0""")
    def decode(t, seg, cg):
        a(f"s_mul_i32 s{seg}, s{t}, 6554\ns_lshr_b32 s{seg}, s{seg}, 16\ns_mul_i32 s22, s{seg}, 10\ns_sub_u32 s{cg}, s{t}, s22")
    ACC = 40; PB = 72; PM = 136; YB = 152; XR = 32
    def uops(ub):
        ops = []
        for ct in range(4):
            for k in range(8):
                r = 128 * ub + (k * 4 + ct) * 4
                ops.append((f"s_add_u32 s22, s49, {ct*32768 + k*1024}\n" if k % 4 == 0 else "") +
                           f"buffer_load_dwordx4 a[{r}:{r+3}], v4, s[4:7], s22 offen offset:{(k%4)*1024} sc1")
        return ops
    TW = int(os.environ.get('TW', 0))
    a("s_cmp_lt_u32 s16, 128\ns_cbranch_scc1 L_T_gentle")
    a.dup_begin()
    def ld(x):
        a(x + (' ' + km.NTT if (km.NTT and (' a[' in x or km.NTT.endswith(' '))) else ''))
        if TW: a(f"s_waitcnt vmcnt({TW}) @only2")
    decode(50, 20, 32)
    a("s_add_u32 s31, s20, 1")
    wait_flags(a, "L_T_wu", 6, 34, 31)
    a(f"s_lshl_b32 s49, s50, 17\ns_add_u32 s49, s49, s28")
    for x in uops(0): ld(x)
    a.label("L_T_loop")
    for ub in range(2):
        decode(50, 20, 32)
        a(f"""s_lshl_b32 s24, s32, 1
s_add_u32 s24, s24, s53                 ; kk
s_lshl_b32 s22, s24, 7
s_add_u32 s23, s22, {MOD_OFF + 2*2560}
buffer_load_dwordx4 v[16:19], v13, s[4:7], s23 offen sc1
buffer_load_dwordx4 v[20:23], v13, s[4:7], s23 offen offset:64 sc1
s_add_u32 s23, s22, {MOD_OFF + 4*2560}
buffer_load_dwordx4 v[24:27], v13, s[4:7], s23 offen sc1
buffer_load_dwordx4 v[28:31], v13, s[4:7], s23 offen offset:64 sc1
s_lshl_b32 s25, s20, 1
s_add_u32 s25, s25, s54
s_mul_i32 s47, s25, {16*1280}
s_lshl_b32 s22, s24, 6
s_add_u32 s47, s47, s22
buffer_load_dwordx2 v[{XR}:{XR+1}], v10, s[8:11], s47 offen
buffer_load_dwordx2 v[{XR+2}:{XR+3}], v10, s[8:11], s47 offen offset:32
s_mul_i32 s44, s25, 20
s_add_u32 s44, s44, s24
s_lshl_b32 s45, s44, 7
s_add_u32 s45, s45, {STAT_OFF}
s_lshl_b32 s44, s44, 10
s_lshl_b32 s36, s50, 6
s_add_u32 s36, s36, {X1F_OFF}
s_mul_i32 s42, s20, {Y_STR}
s_add_u32 s42, s42, s33
s_lshl_b32 s22, s32, 13
s_add_u32 s42, s42, s22
s_lshl_b32 s40, s20, 16
s_add_u32 s40, s40, s29
s_lshl_b32 s43, s20, 14
s_add_u32 s43, s43, s30
s_add_u32 s50, s50, s51""")
        decode(50, 31, 48)
        a("s_add_u32 s31, s31, 1\ns_min_u32 s31, s31, 64")
        wait_flags(a, f"L_T_wu{ub}", 6, 34, 31, cache_s=46)
        a("s_add_u32 s31, s20, 1")
        a("s_waitcnt vmcnt(0)")
        wait_flags_wg(a, f"L_T_wp{ub}", 7, 35, 31)
        stamp(a, 0)
        for k in range(8):
            for qt in range(2):
                if k % 4 == 0: a(f"s_add_u32 s{22+qt}, s40, {qt*32768 + k*1024}")
                ld(f"buffer_load_dwordx4 v[{PB+8*k+4*qt}:{PB+8*k+4*qt+3}], v4, s[4:7], s{22+qt} offen offset:{(k%4)*1024} sc1")
        for qt in range(2):
            a(f"s_add_u32 s22, s43, {qt*8192}")
            for k in range(2): ld(f"buffer_load_dwordx4 v[{PM+8*k+4*qt}:{PM+8*k+4*qt+3}], v4, s[4:7], s22 offen offset:{k*1024} sc1")
        def yloads():
            for ct in range(4):
                a(f"s_add_u32 s22, s42, {ct*2048}")
                for k in range(2): ld(f"buffer_load_dwordx4 v[{YB+16*k+4*ct}:{YB+16*k+4*ct+3}], v4, s[4:7], s22 offen offset:{k*1024} sc1")
        yloads()
        a(f"s_lshl_b32 s49, s50, 17\ns_add_u32 s49, s49, s28\ns_cmp_ge_u32 s50, s52\ns_cselect_b32 s49, 0xf0000000, s49")
        uo = uops(1 - ub)
        for k in range(8):
            for ct in range(4):
                for qt in range(2):
                    acc = ACC + 8 * ct + 4 * qt; r = 128 * ub + (k * 4 + ct) * 4
                    c = "0" if k == 0 else f"v[{acc}:{acc+3}]"
                    a(f"v_mfma_f32_16x16x32_bf16 v[{acc}:{acc+3}], a[{r}:{r+3}], v[{PB+8*k+4*qt}:{PB+8*k+4*qt+3}], {c}")
                    if k >= 4: ld(uo.pop(0))
        stamp(a, 2)
        for k in range(2):
            for ct in range(4):
                for qt in range(2):
                    acc = ACC + 8 * ct + 4 * qt
                    a(f"v_mfma_f32_16x16x32_bf16 v[{acc}:{acc+3}], v[{YB+16*k+4*ct}:{YB+16*k+4*ct+3}], v[{PM+8*k+4*qt}:{PM+8*k+4*qt+3}], v[{acc}:{acc+3}]")
        stamp(a, 3)
        for j in range(8): a(f"ds_write_b128 v8, v[{ACC+4*j}:{ACC+4*j+3}] offset:{1024*j}")
        a("s_waitcnt lgkmcnt(0)\ns_barrier")
        stamp(a, 4)
        T = 72
        for w in range(4):
            for u in range(2): a(f"ds_read_b128 v[{T+8*w+4*u}:{T+8*w+4*u+3}], v9 offset:{8192*w + 2048*u}")
        for j in range(0, 8, 2): a(f"v_pk_add_f32 v[{T+j}:{T+j+1}], v[{T+j}:{T+j+1}], v[{T+8+j}:{T+9+j}]")
        for j in range(0, 8, 2): a(f"v_pk_add_f32 v[{T+16+j}:{T+17+j}], v[{T+16+j}:{T+17+j}], v[{T+24+j}:{T+25+j}]")
        for j in range(0, 8, 2): a(f"v_pk_add_f32 v[{T+j}:{T+j+1}], v[{T+j}:{T+j+1}], v[{T+16+j}:{T+17+j}]")
        X = T + 8
        for j in range(4): a(f"v_lshlrev_b32 v{X+2*j}, 16, v{XR+j}\nv_and_b32 v{X+2*j+1}, 0xffff0000, v{XR+j}")
        for j in range(0, 8, 2): a(f"v_pk_fma_f32 v[{X+j}:{X+j+1}], v[{T+j}:{T+j+1}], v[{16+j}:{17+j}], v[{X+j}:{X+j+1}]")
        O = T + 16
        for j in range(4): a(f"v_cvt_pk_bf16_f32 v{O+j}, v{X+2*j}, v{X+2*j+1}")
        for j in range(4): a(f"v_lshlrev_b32 v{X+2*j}, 16, v{O+j}\nv_and_b32 v{X+2*j+1}, 0xffff0000, v{O+j}")
        for j in range(0, 8, 2): a(f"v_pk_mul_f32 v[{T+j}:{T+j+1}], v[{X+j}:{X+j+1}], v[{24+j}:{25+j}]")
        for j in range(4): a(f"v_cvt_pk_bf16_f32 v{O+4+j}, v{T+2*j}, v{T+2*j+1}")
        a(f"""v_permlane16_swap_b32 v{O}, v{O+2}
v_permlane16_swap_b32 v{O+1}, v{O+3}
v_permlane16_swap_b32 v{O+4}, v{O+6}
v_permlane16_swap_b32 v{O+5}, v{O+7}
s_add_u32 s22, s44, {H2_OFF}
buffer_store_dwordx4 v[{O+4}:{O+7}], v11, s[4:7], s22 offen sc1
s_add_u32 s22, s44, {X1_OFF}
buffer_store_dwordx4 v[{O}:{O+3}], v11, s[4:7], s22 offen sc1""")
        S = O + 8
        a(f"v_add_f32 v{S}, v{X}, v{X+1}\nv_mul_f32 v{S+1}, v{X}, v{X}")
        for j in range(2, 8): a(f"v_add_f32 v{S}, v{S}, v{X+j}")
        for j in range(1, 8): a(f"v_fmac_f32 v{S+1}, v{X+j}, v{X+j}")
        xlane(a, "v_add_f32", S, S + 2, False); xlane(a, "v_add_f32", S + 1, S + 3, False)
        a(f"""s_mov_b64 exec, 0xffff
buffer_store_dwordx2 v[{S}:{S+1}], v12, s[4:7], s45 offen sc1
s_mov_b64 exec, -1
v_xor_b32 v8, 32768, v8
v_xor_b32 v9, 32768, v9""")
        stamp(a, 5)
        put_flag_wg(a, f"L_T_pf{ub}", 31, 36, 5, 15)
        stamp(a, 1); stamp_flush(a, 6, row_s=20)
        a("s_cmp_ge_u32 s50, s52\ns_cbranch_scc1 L_exit")
    a("s_branch L_T_loop")
    a.dup_end("L_T_gentle")

def role_f1(a):
    a.label("L_F1")
    if os.environ.get('NOT'): a("s_endpgm")
    a(f"""s_load_dwordx4 s[28:31], s[0:1], {K_W1}      ; w1, b1
s_lshr_b32 s20, s18, 3
s_and_b32 s33, s18, 7
s_mul_i32 s32, s33, 384
s_waitcnt lgkmcnt(0)""")
    srd(a, 8, 28, 640 * 3072); srd(a, 12, 30, 3072)
    loader(a, w_stages(8, 3072, 32, 'nat', lambda c, t, q: ('a', ((2*c + (q >> 1)) * 3 + t) * 4 + 2 * (q & 1))), 0, 16, depth=int(os.environ.get('DF', 5)))
    import k_head
    k_head.wait_count(a, "L_F1_m", 4, k_head.CNT_MOD2, 40)
    C = 104
    a(f"""s_mul_i32 s22, s17, 96
s_add_u32 s22, s22, s32
v_lshlrev_b32 v4, 3, v2""")
    for t in range(3): a(f"buffer_load_dwordx2 v[{96+2*t}:{97+2*t}], v4, s[12:15], s22 offen offset:{32*t}")
    a(f"v_lshlrev_b32 v4, 5, v2\ns_mov_b32 s22, {MOD_OFF + 4*2560}\ns_mov_b32 s23, {MOD_OFF + 3*2560}")
    for half in range(4):
        for k5 in range(5):
            kk = 5 * half + k5
            for tt in range(2):
                for hh in range(2):
                    r = 128 + 16 * k5 + 8 * tt + 4 * hh
                    a(f"buffer_load_dwordx4 v[{r}:{r+3}], v4, s[4:7], s{22+tt} offen offset:{kk*128 + 16*hh} sc1")
        for k5 in range(5):
            kk = 5 * half + k5
            for tt in range(2):
                r = 128 + 16 * k5 + 8 * tt; o = 16 + 8 * k5 + 4 * tt
                for j in range(4): a(f"v_cvt_pk_bf16_f32 v{o+j}, v{r+2*j}, v{r+2*j+1}")
                for t in range(3):
                    acc = C + 8 * t + 4 * tt
                    c = "0" if kk == 0 else f"v[{acc}:{acc+3}]"
                    a(f"v_mfma_f32_16x16x32_bf16 v[{acc}:{acc+3}], a[{(kk*3+t)*4}:{(kk*3+t)*4+3}], v[{o}:{o+3}], {c}")
    for t in range(3):
        a(f"""v_lshlrev_b32 v8, 16, v{96+2*t}
v_and_b32 v9, 0xffff0000, v{96+2*t}
v_lshlrev_b32 v10, 16, v{97+2*t}
v_and_b32 v11, 0xffff0000, v{97+2*t}""")
        for r in range(4): a(f"v_add_f32 v{C+8*t+4+r}, v{C+8*t+4+r}, v{8+r}")
    a(f"""v_lshlrev_b32 v4, 4, v1
s_mul_i32 s42, s17, 10240
v_add_u32 v5, s42, v4
v_mov_b32 v6, 0
v_mov_b32 v7, v4
v_min_u32 v8, 9, v1
v_lshlrev_b32 v8, 6, v8
v_mul_u32_u24 v9, 640, v2
v_lshl_add_u32 v9, v3, 3, v9
s_mul_i32 s36, s33, 12288
s_mul_i32 s22, s17, 3072
s_add_u32 s36, s36, s22
s_add_u32 s36, s36, {G_OFF}
s_lshl_b32 s34, s18, 7
s_xor_b32 s22, s19, 8192
s_add_u32 s34, s34, s22
s_add_u32 s34, s34, {FLAG_OFF + ROLE_G*FSTR}
s_mov_b32 s28, 0
s_mov_b32 s44, {hex(f2u(-2.0 * math.sqrt(2.0 / math.pi) * math.log2(math.e)))}
s_mov_b32 s45, {hex(f2u(-2.0 * math.sqrt(2.0 / math.pi) * math.log2(math.e) * 0.044715))}
s_mov_b32 s46, {hex(f2u(1.0 / 640))}
s_mov_b32 s39, 0""")
    B = 16; ACC = 48; ST = 128
    a.label("L_F1_loop")
    a(f"s_add_u32 s31, s20, 1\ns_mul_i32 s35, s20, 640\ns_add_u32 s35, s35, {X1F_OFF}")
    wait_flags_wg(a, "L_F1_w", 8, 35, 31)
    stamp(a, 0)
    a(f"s_mul_i32 s23, s20, 40960\ns_add_u32 s23, s23, {H2_OFF}\ns_add_u32 s22, s42, s28")
    for i in range(10):
        if i % 4 == 0: a(f"s_add_u32 m0, s22, {i*1024}\ns_add_u32 s26, s23, {i*1024}")
        a(f"buffer_load_dwordx4 v5, s[4:7], s26 offen offset:{(i%4)*1024} sc1 lds")
    a(f"s_mul_i32 s23, s20, 5120\ns_add_u32 s23, s23, {STAT_OFF}")
    for tt in range(2):
        r = ST + 12 * tt
        for j in range(5): a(f"buffer_load_dwordx2 v[{r+2*j}:{r+2*j+1}], v9, s[4:7], s23 offen offset:{2560*tt + 128*j} sc1")
    a("s_waitcnt vmcnt(10)\ns_barrier")
    stamp(a, 2)
    def rd(kk):
        b = B + 8 * (kk % 4)
        return [f"ds_read_b128 v[{b}:{b+3}], v7 offset:{kk*1024}", f"ds_read_b128 v[{b+4}:{b+7}], v7 offset:{(20+kk)*1024}"]
    for x in rd(0) + rd(1): a(x)
    slots = []
    for kk in range(20):
        b = B + 8 * (kk % 4)
        for tt in range(2):
            for t in range(3):
                d = ACC + 8 * t + 4 * tt
                c = "0" if kk == 0 else f"v[{d}:{d+3}]"
                slots.append([f"v_mfma_f32_16x16x32_bf16 v[{d}:{d+3}], a[{(kk*3+t)*4}:{(kk*3+t)*4+3}], v[{b+4*tt}:{b+4*tt+3}], {c}", []])
    for kk in range(18):
        r = rd(kk + 2); slots[6*kk][1].append(r[0]); slots[6*kk + 1][1].append(r[1])
    sops = []
    for tt in range(2):
        r = ST + 12 * tt
        for j in (2, 4, 6, 8): sops += [f"v_add_f32 v{r}, v{r}, v{r+j}", f"v_add_f32 v{r+1}, v{r+1}, v{r+j+1}"]
        for sw in ("v_permlane16_swap_b32", "v_permlane32_swap_b32"):
            sops += [f"v_mov_b32 v{r+2}, v{r}", f"v_mov_b32 v{r+3}, v{r+1}", f"{sw} v{r+2}, v{r}", f"{sw} v{r+3}, v{r+1}",
                     f"v_add_f32 v{r}, v{r}, v{r+2}", f"v_add_f32 v{r+1}, v{r+1}, v{r+3}"]
        sops += [f"v_mul_f32 v{r}, s46, v{r}", f"v_mul_f32 v{r+2}, v{r}, v{r}", f"v_fma_f32 v{r+1}, v{r+1}, s46, -v{r+2}",
                 f"v_max_f32 v{r+1}, 0, v{r+1}", f"v_add_f32 v{r+1}, {hex(f2u(1e-5))}, v{r+1}", f"v_rsq_f32 v{r+1}, v{r+1}"]
    for j, x in enumerate(sops): slots[20 + (j * 3) // 2][1].append(x)
    km.emit_stream(a, slots)
    stamp(a, 3)
    a("v_mov_b32 v92, s44")
    a(f"s_mul_i32 s23, s20, {8*12288}\ns_add_u32 s23, s23, s36")
    for t in range(3):
        for tt in range(2):
            b = ACC + 8 * t + 4 * tt; mu = ST + 12 * tt
            for r in range(4): a(f"v_fma_f32 v{b+r}, -v{mu}, v{C+8*t+r}, v{b+r}")
            for r in range(4): a(f"v_fma_f32 v{b+r}, v{b+r}, v{mu+1}, v{C+8*t+4+r}")
            for r in (0, 2): a(f"v_pk_mul_f32 v[{88+r}:{89+r}], v[{b+r}:{b+r+1}], v[{b+r}:{b+r+1}]")
            for r in range(4): a(f"v_fma_f32 v{88+r}, v{88+r}, s45, v92")
            for r in (0, 2): a(f"v_pk_mul_f32 v[{88+r}:{89+r}], v[{88+r}:{89+r}], v[{b+r}:{b+r+1}]")
            for r in range(4): a(f"v_exp_f32 v{88+r}, v{88+r}")
            for r in (0, 2): a(f"v_pk_add_f32 v[{88+r}:{89+r}], v[{88+r}:{89+r}], 1.0 op_sel_hi:[1,0]")
            for r in range(4): a(f"v_rcp_f32 v{88+r}, v{88+r}")
            for r in (0, 2): a(f"v_pk_mul_f32 v[{b+r}:{b+r+1}], v[{b+r}:{b+r+1}], v[{88+r}:{89+r}]")
        o = 72 + 4 * t; acc = ACC + 8 * t
        for j in range(4): a(f"v_cvt_pk_bf16_f32 v{o+j}, v{acc+2*j}, v{acc+2*j+1}")
        a(f"buffer_store_dwordx4 v[{o}:{o+3}], v4, s[4:7], s23 offen offset:{t*1024} sc1")
    a("s_xor_b32 s28, s28, 65536\nv_xor_b32 v7, 0x10000, v7")
    stamp(a, 4)
    put_flag_wg(a, "L_F1_pf", 31, 34, 6, 15)
    stamp(a, 1); stamp_flush(a, 5, row_s=20)
    a(f"""s_add_u32 s20, s20, {NF1}
s_cmp_lt_u32 s20, 64
s_cbranch_scc1 L_F1_loop
s_endpgm""")

def role_f2(a):
    a.label("L_F2")
    if os.environ.get('NOT'): a("s_endpgm")
    a(f"""s_load_dwordx4 s[28:31], s[0:1], {K_W2}      ; w2, b2
s_load_dwordx2 s[34:35], s[0:1], {K_OUT}
s_mul_i32 s20, s18, 6554
s_lshr_b32 s20, s20, 16
s_mul_i32 s3, s20, 10
s_sub_u32 s18, s18, s3
s_waitcnt lgkmcnt(0)""")
    srd(a, 8, 28, 1536 * 1280); srd(a, 12, 30, 1280); srd(a, 48, 34, 2048 * 1280)
    a(f"""v_lshrrev_b32 v8, 3, v1                 ; rho
v_and_b32 v9, 7, v1
v_lshrrev_b32 v10, 1, v9
v_lshrrev_b32 v11, 1, v8
v_xor_b32 v10, v10, v11
v_lshlrev_b32 v10, 5, v10
v_and_b32 v9, 1, v9
v_lshl_add_u32 v10, v9, 4, v10
v_mul_u32_u24 v8, 1280, v8
v_add_u32 v8, v8, v10
s_mul_i32 s32, s17, {384*1280}
s_lshl_b32 s22, s18, 7
s_add_u32 s32, s32, s22
s_mul_i32 s33, s17, 32768
v_bfe_u32 v9, v1, 2, 3
v_and_b32 v10, 3, v1
v_lshlrev_b32 v10, 3, v10
v_lshl_add_u32 v10, v9, 7, v10
v_lshrrev_b32 v9, 1, v9
v_lshrrev_b32 v11, 5, v1
v_lshl_add_u32 v10, v11, 10, v10
v_add_u32 v10, s33, v10
s_waitcnt vmcnt(0)""")
    for t in range(4): a(f"v_xor_b32 v11, {t}, v9\nv_lshl_add_u32 v{12+t}, v11, 5, v10")
    def piece(u):
        a(f"s_add_u32 m0, s33, {(u % 32)*1024}\ns_add_u32 s26, s32, {u*8*1280}\nbuffer_load_dwordx4 v8, s[8:11], s26 offen lds")
    for u in range(32): piece(u)
    issued = 32
    for q in range(24):
        a(f"s_waitcnt vmcnt({issued - 2*q - 2})")
        for t in range(4):
            r = ((q >> 1) * 4 + t) * 4 + 2 * (q & 1)
            a(f"ds_read_b64_tr_b16 a[{r}:{r+1}], v{12+t} offset:{((2*q) % 32)*1024}")
        if issued < 48:
            a("s_waitcnt lgkmcnt(0)")
            piece(issued); piece(issued + 1); issued += 2
    a("s_waitcnt lgkmcnt(0)\ns_barrier")
    import k_head
    k_head.wait_count(a, "L_F2_m", 4, k_head.CNT_MOD2, 40)
    a(f"""v_lshlrev_b32 v4, 4, v1
s_lshl_b32 s22, s18, 7
s_lshl_b32 s23, s17, 5
s_add_u32 s40, s22, s23
v_lshlrev_b32 v7, 3, v2
buffer_load_dwordx2 v[8:9], v7, s[12:15], s40 offen
v_lshlrev_b32 v7, 4, v2
s_lshl_b32 s22, s40, 1
s_add_u32 s22, s22, {MOD_OFF + 5*2560}
buffer_load_dwordx4 v[160:163], v7, s[4:7], s22 offen sc1
v_mul_u32_u24 v6, 1280, v3
v_lshl_add_u32 v6, v2, 3, v6
v_lshlrev_b32 v16, 16, v8
v_and_b32 v17, 0xffff0000, v8
v_lshlrev_b32 v18, 16, v9
v_and_b32 v19, 0xffff0000, v9
s_lshl_b32 s22, s17, 13
v_add_u32 v5, s22, v4
s_lshl_b32 s22, s17, 11
v_add_u32 v10, s22, v4
s_mul_i32 s41, s17, 24576
s_add_u32 s41, s41, {G_OFF}
v_and_b32 v11, 7, v1
v_lshlrev_b32 v11, 7, v11
s_xor_b32 s22, s19, 8192
v_add_u32 v11, s22, v11
v_lshrrev_b32 v12, 1, v2
v_lshlrev_b32 v12, 8, v12
v_lshl_add_u32 v12, v3, 4, v12
v_and_b32 v13, 1, v2
v_lshl_add_u32 v12, v13, 3, v12
s_lshl_b32 s44, s18, 11
s_lshl_b32 s22, s17, 9
s_add_u32 s44, s44, s22
s_add_u32 s44, s44, {X1_OFF}
s_mov_b32 s39, 0
s_waitcnt vmcnt(0)""")
    GB = 64; ACC = 24
    a.label("L_F2_loop")
    a(f"""s_add_u32 s31, s20, 1
s_mul_i32 s22, s20, {(65536 + NF1 - 1) // NF1}
s_lshr_b32 s22, s22, 16
s_mul_i32 s22, s22, {NF1}
s_sub_u32 s35, s20, s22
s_lshl_b32 s35, s35, 10
s_add_u32 s35, s35, {FLAG_OFF + ROLE_G*FSTR}""")
    wait_flags_wg(a, "L_F2_w", 11, 35, 31)
    stamp(a, 0)
    a(f"s_mul_i32 s23, s20, {8*12288}\ns_add_u32 s23, s23, s41")
    for T in range(24):
        if T % 4 == 0: a(f"s_add_u32 s22, s23, {T*1024}")
        a(f"buffer_load_dwordx4 v[{GB+4*T}:{GB+4*T+3}], v4, s[4:7], s22 offen offset:{(T%4)*1024} sc1")
    a(f"""s_mul_i32 s23, s20, {32*1280}
s_add_u32 s42, s23, s40
s_add_u32 s43, s42, {16*1280}
s_mul_i32 s22, s20, 40960
s_add_u32 s22, s22, s44
buffer_load_dwordx2 v[20:21], v12, s[4:7], s22 offen sc1
s_add_u32 s22, s22, 20480
buffer_load_dwordx2 v[22:23], v12, s[4:7], s22 offen sc1""")
    for p in range(12):
        b = GB + 8 * p
        a(f"v_swap_b32 v{b+2}, v{b+4}\nv_swap_b32 v{b+3}, v{b+5}")
        for t in range(4):
            for tt in range(2):
                acc = ACC + 8 * t + 4 * tt
                c = "0" if p == 0 else f"v[{acc}:{acc+3}]"
                a(f"v_mfma_f32_16x16x32_bf16 v[{acc}:{acc+3}], a[{(p*4+t)*4}:{(p*4+t)*4+3}], v[{b+4*tt}:{b+4*tt+3}], {c}")
    stamp(a, 2)
    for j in range(8): a(f"ds_write_b128 v5, v[{ACC+4*j}:{ACC+4*j+3}] offset:{1024*j}")
    a("s_waitcnt lgkmcnt(0)\ns_barrier")
    stamp(a, 3)
    for w in range(4):
        for tt in range(2): a(f"ds_read_b128 v[{64+8*w+4*tt}:{67+8*w+4*tt}], v10 offset:{8192*w + 1024*tt}")
    for j in range(0, 8, 2): a(f"v_pk_add_f32 v[{64+j}:{65+j}], v[{64+j}:{65+j}], v[{72+j}:{73+j}]\nv_pk_add_f32 v[{80+j}:{81+j}], v[{80+j}:{81+j}], v[{88+j}:{89+j}]")
    for j in range(0, 8, 2): a(f"v_pk_add_f32 v[{64+j}:{65+j}], v[{64+j}:{65+j}], v[{80+j}:{81+j}]")
    for tt in range(2):
        o = 64 + 4 * tt; x = 20 + 2 * tt
        for j in range(4): a(f"v_add_f32 v{o+j}, v{o+j}, v{16+j}")
        a(f"""v_lshlrev_b32 v72, 16, v{x}
v_and_b32 v73, 0xffff0000, v{x}
v_lshlrev_b32 v74, 16, v{x+1}
v_and_b32 v75, 0xffff0000, v{x+1}""")
        for j in range(4): a(f"v_fmac_f32 v{72+j}, v{o+j}, v{160+j}")
        a(f"""v_cvt_pk_bf16_f32 v{56+2*tt}, v72, v73
v_cvt_pk_bf16_f32 v{57+2*tt}, v74, v75
buffer_store_dwordx2 v[{56+2*tt}:{57+2*tt}], v6, s[48:51], s{42+tt} offen""")
    stamp(a, 1); stamp_flush(a, 4, row_s=20)
    a(f"""v_xor_b32 v5, 32768, v5
v_xor_b32 v10, 32768, v10
s_add_u32 s20, s20, {NF2}
s_cmp_lt_u32 s20, 64
s_cbranch_scc1 L_F2_loop""")
    if km.TIMING: a("s_memrealtime s[76:77]\ns_waitcnt lgkmcnt(0)\nv_mov_b32 v15, s76\ns_mov_b64 exec, 1\nbuffer_atomic_umax v15, off, s[96:99], 0 offset:40")
    a("s_endpgm")

def second_role(a):
    a.label("L_second")
    a(f"""s_cmp_lt_u32 s18, {8*NF1}
s_cbranch_scc1 L_F1
s_sub_u32 s18, s18, {8*NF1}
s_cmp_lt_u32 s18, {10*NF2}
s_cbranch_scc1 L_F2
s_add_u32 s50, s18, {T0 - 10*NF2}
s_mov_b32 s51, {128 - 8*NF1 - 10*NF2}
s_mov_b32 s52, 640
s_waitcnt vmcnt(0)""")
    import k_head
    k_head.wait_count(a, "L_T_m", 4, k_head.CNT_MOD2, 40)
    a("s_branch L_T")
```
